```python
import torch

def _softmax(x, axis=-1):
    return torch.softmax(x, dim=axis)

def _gelu(x):
    return torch.nn.functional.gelu(x, approximate='tanh')

def _silu(x):
    return torch.nn.functional.silu(x)

def _sigmoid(x):
    return torch.sigmoid(x)

def _layernorm(x, axis=-1, eps=1e-05):
    m = x.mean(dim=axis, keepdim=True)
    v = x.var(dim=axis, keepdim=True, unbiased=False)
    return (x - m) / torch.sqrt(v + eps)

def _scatter_add(tgt, idx, src, axis=0):
    return tgt.clone().index_add_(axis, idx, src)

def _segment_sum(src, seg, n):
    out = torch.zeros((n,) + src.shape[1:], dtype=src.dtype)
    return out.index_add_(0, seg, src)

def _pad(x, pw):
    flat = tuple((v for pair in reversed(pw) for v in pair))
    return torch.nn.functional.pad(x, flat)
kernel_name = 'standalone__molecular_angular_painn__graph'

def setup_inputs():

    _w = lambda a: (lambda t: t.to(torch.bfloat16) if t.is_floating_point() else t)(torch.as_tensor(a))
    N, deg, D = (25000, 16, 128)
    n_rbf = max(4, 4)
    E = N * deg
    cutoff = 5.0
    freqs = (torch.arange(1, n_rbf + 1) * torch.pi / cutoff).to(float)
    return {'sv': _w((lambda *s: torch.randn(*s, dtype=torch.bfloat16) * 0.4)(N, 4, D) * 0.3), 'pos': _w((lambda *s: torch.randn(*s, dtype=torch.bfloat16) * 3.2)(N, 3) * 1.2), 'src': _w((lambda lo, hi, *s: torch.randint(lo, hi, s))(0, N, E).to(torch.int64)), 'dst': _w((lambda lo, hi, *s: torch.randint(lo, hi, s))(0, N, E).to(torch.int64)), 'freqs': _w(freqs), 'w_phi1': _w((lambda *s: torch.randn(*s, dtype=torch.bfloat16) * 3.2)(D, D) / D ** 0.5), 'w_phi2': _w((lambda *s: torch.randn(*s, dtype=torch.bfloat16) * 3.2)(D, 3 * D) / D ** 0.5), 'w_rbf': _w((lambda *s: torch.randn(*s, dtype=torch.bfloat16) * 3.2)(n_rbf, 3 * D) / n_rbf ** 0.5)}

def reference(sv, pos, src, dst, freqs, w_phi1, w_phi2, w_rbf):
    N, _, D = sv.shape
    E = src.shape[0]
    PI, cutoff = (3.141592653589793, 5.0)
    s, v = (sv[:, 0, :].clone(), sv[:, 1:, :].clone())
    r_vec = pos[src] - pos[dst]
    d = torch.sqrt((r_vec * r_vec).sum(-1) + 1e-08)
    r_hat = r_vec / d[:, None]
    rbf = torch.sin(d[:, None] * freqs[None, :]) / d[:, None]
    fcut = 0.5 * (torch.cos(PI * d / cutoff) + 1.0)
    fcut = torch.where(d < cutoff, fcut, 0.0 * d)
    Wf = rbf @ w_rbf * fcut[:, None]
    phi = (_silu(s @ w_phi1) @ w_phi2)[src]
    m = phi * Wf
    m_s, m_vv, m_vr = (m[:, :D].clone(), m[:, D:2 * D].clone(), m[:, 2 * D:].clone())
    ds = _segment_sum(m_s, dst, N)
    dv_e = m_vv[:, None, :] * v[src] + m_vr[:, None, :] * r_hat[:, :, None]
    dv = _segment_sum(dv_e.reshape(E, 3 * D), dst, N).reshape(N, 3, D)
    return sv + torch.concatenate([ds[:, None, :], dv], axis=1)
```

```python
import re

TRANS = ("v_exp_f32", "v_log_f32", "v_rcp_f32", "v_rsq_f32", "v_sqrt_f32", "v_sin_f32", "v_cos_f32")

_REG = re.compile(r"^(-?)(abs\()?([vsa])(\d+)\)?$")
_RNG = re.compile(r"^([vsa])\[(\d+):(\d+)\]$")


def regs_of(op):
    op = op.strip()
    m = _RNG.match(op)
    if m:
        return {f"{m.group(1)}{i}" for i in range(int(m.group(2)), int(m.group(3)) + 1)}
    m = _REG.match(op)
    if m:
        return {f"{m.group(3)}{m.group(4)}"}
    if op in ("vcc", "exec", "m0", "scc"):
        return {op}
    if op in ("vcc_lo", "vcc_hi"):
        return {"vcc"}
    if op in ("exec_lo", "exec_hi"):
        return {"exec"}
    return set()


def split_ops(rest):
    out, depth, cur = [], 0, ""
    for ch in rest:
        if ch in "[(":
            depth += 1
        elif ch in "])":
            depth -= 1
        if ch == "," and depth == 0:
            out.append(cur.strip())
            cur = ""
        else:
            cur += ch
    if cur.strip():
        out.append(cur.strip())
    return out


class Ins:
    __slots__ = ("text", "op", "kind", "w", "r", "dpp", "srcc", "ab", "wide_store", "guards", "cost",
                 "lanesel", "vsrc_lane", "idx", "mods")

    def __init__(self, text, guards=None):
        self.text = text
        self.guards = guards
        self.dpp = False
        self.srcc = set()
        self.ab = set()
        self.wide_store = set()
        self.lanesel = set()
        self.vsrc_lane = set()
        self.w = set()
        self.r = set()
        t = text.split(";")[0].strip()
        if t.endswith(":"):
            self.op, self.kind = "label", "label"
            return
        if t.startswith("."):
            self.op, self.kind = "dir", "label"
            return
        parts = t.split(None, 1)
        op = parts[0]
        self.op = op
        rest = parts[1] if len(parts) > 1 else ""
        ops = split_ops(rest)
        mods = ""
        if ops:
            last = ops[-1].split(None, 1)
            ops[-1] = last[0]
            mods = last[1] if len(last) > 1 else ""
        self.mods = mods
        R = [regs_of(o) for o in ops]
        w, r = set(), set()
        if op.startswith("v_mfma"):
            self.kind = "mfma"
            w |= R[0]
            r |= R[1] | R[2] | R[3]
            self.ab = R[1] | R[2]
            self.srcc = R[3]
        elif op.startswith("v_"):
            base = op.replace("_e32", "").replace("_e64", "").replace("_dpp", "")
            self.kind = "trans" if base in TRANS else "valu"
            r.add("exec")
            if "row_" in mods or "quad_perm" in mods or "wave_" in mods:
                self.dpp = True
            if base.startswith("v_cmpx"):
                raise ValueError("v_cmpx unsupported")
            if base.startswith("v_cmp"):
                w |= R[0]
                for x in R[1:]:
                    r |= x
            elif base in ("v_add_co_u32", "v_sub_co_u32", "v_subrev_co_u32", "v_addc_co_u32", "v_subb_co_u32",
                          "v_mad_u64_u32"):
                w |= R[0] | R[1]
                for x in R[2:]:
                    r |= x
            elif base in ("v_readlane_b32", "v_readfirstlane_b32"):
                w |= R[0]
                r |= R[1]
                self.vsrc_lane = R[1]
                if len(R) > 2:
                    r |= R[2]
                    self.lanesel = R[2]
            elif base == "v_writelane_b32":
                w |= R[0]
                r |= R[0] | R[1] | R[2]
                self.lanesel = R[2]
            elif base == "v_nop":
                pass
            else:
                w |= R[0]
                for x in R[1:]:
                    r |= x
                if base in ("v_fmac_f32", "v_pk_fmac_f16", "v_dot2c_f32_bf16") or self.dpp:
                    r |= R[0]
                if base.startswith("v_permlane"):
                    w |= R[1]
                    r |= R[0]
                    self.dpp = True
        elif op.startswith("ds_"):
            self.kind = "lds"
            r.add("exec")
            if op.startswith("ds_read") or "_rtn" in op or "permute" in op or "swizzle" in op:
                w |= R[0]
                for x in R[1:]:
                    r |= x
                if "d16" in op:
                    r |= R[0]
            else:
                for x in R:
                    r |= x
        elif op.startswith("buffer_") or op.startswith("global_"):
            self.kind = "vmem"
            r.add("exec")
            is_lds = " lds" in (" " + mods)
            if "store" in op or "atomic" in op:
                for x in R:
                    r |= x
                if op.endswith("x4") or op.endswith("x3"):
                    self.wide_store = R[0] if op.startswith("buffer_") else R[1]
                if "atomic" in op and "sc0" in mods:
                    w |= R[0]
            elif is_lds:
                for x in R:
                    r |= x
                r.add("m0")
            else:
                w |= R[0]
                for x in R[1:]:
                    r |= x
                if "d16" in op:
                    r |= R[0]
        elif op.startswith("s_load") or op.startswith("s_buffer_load") or op in ("s_memtime", "s_memrealtime"):
            self.kind = "smem"
            w |= R[0]
            for x in R[1:]:
                r |= x
        elif op == "s_waitcnt":
            self.kind = "wait"
        elif op == "s_nop":
            self.kind = "nop"
        elif op in ("s_barrier", "s_endpgm", "s_setprio", "s_sleep"):
            self.kind = "barrier" if op in ("s_barrier", "s_endpgm") else "salu"
        elif op.startswith("s_cbranch") or op == "s_branch":
            self.kind = "branch"
            if "scc" in op:
                r.add("scc")
            if "vcc" in op:
                r.add("vcc")
            if "exec" in op:
                r.add("exec")
        elif op.startswith("s_"):
            self.kind = "salu"
            if op.startswith("s_cmp") or op.startswith("s_bitcmp"):
                for x in R:
                    r |= x
                w.add("scc")
            else:
                w |= R[0]
                for x in R[1:]:
                    r |= x
                if "saveexec" in op:
                    w.add("exec")
                    r.add("exec")
                    w.add("scc")
                if op.startswith(("s_cselect", "s_addc", "s_subb", "s_cmov")):
                    r.add("scc")
                if op.startswith("s_cmov") or op in ("s_addk_i32", "s_mulk_i32"):
                    r |= R[0]
                if not op.startswith(("s_mov", "s_cselect", "s_mul", "s_movk", "s_cmov", "s_getreg", "s_setreg",
                                      "s_pack", "s_sext", "s_brev", "s_ff", "s_flbit")):
                    w.add("scc")
        else:
            raise ValueError("unknown instruction: " + text)
        self.w, self.r = w, r
        if guards:
            self.w = set(self.w) | set(guards)

    def states(self):
        if self.kind == "label":
            return 0
        if self.kind == "nop":
            return int(self.text.split()[1], 0) + 1
        return 1


def isv(x):
    return x[0] == "v" and x != "vcc"


def iss(x):
    return (x[0] == "s" and x != "scc") or x == "vcc"


def required_gap(p, c):
    need = 0
    vl = ("valu", "trans")
    if p.kind in vl:
        pw_v = {x for x in p.w if isv(x)}
        pw_s = {x for x in p.w if iss(x)}
        if c.kind == "mfma" and pw_v & c.r:
            need = max(need, 2)
        if c.kind in vl:
            if c.dpp and pw_v & c.r:
                need = max(need, 2)
            if c.vsrc_lane & pw_v:
                need = max(need, 1)
            if p.kind == "trans" and pw_v & (c.r | c.w):
                need = max(need, 1)
            if pw_s & c.lanesel:
                need = max(need, 4)
            elif pw_s & c.r:
                need = max(need, 2)
        if c.kind == "mfma" and p.kind == "trans" and pw_v & c.r:
            need = max(need, 2)
        if c.kind in ("vmem",) and pw_s & c.r:
            need = max(need, 5)
        if c.kind in ("vmem", "lds") and p.kind == "trans" and pw_v & c.r:
            need = max(need, 1)
        if c.kind in ("salu", "smem", "branch") and pw_s & c.r:
            need = max(need, 1)
    elif p.kind == "mfma":
        D = p.w
        if c.kind == "mfma":
            if D & c.ab:
                need = max(need, 8)
            if D & c.srcc and D != c.srcc:
                need = max(need, 6)
            if D & c.srcc and D == c.srcc and c.op != p.op:
                need = max(need, 6)
            if D & c.w and not (D & c.srcc):
                need = max(need, 8)
        elif c.kind in ("valu", "trans", "vmem", "lds"):
            if D & (c.r | c.w):
                need = max(need, 8)
            if c.kind in vl and p.srcc & c.w:
                need = max(need, 3)
    elif p.kind == "vmem":
        if p.wide_store and p.wide_store & c.w:
            need = max(need, 2)
    elif p.kind == "salu":
        if "m0" in p.w and "m0" in c.r and c.kind in ("vmem", "lds"):
            need = max(need, 1)
    return need


def worst_gap(p):
    if p.kind == "mfma":
        return 8
    if p.kind in ("valu", "trans"):
        if any(iss(x) for x in p.w):
            return 5
        return 2
    if p.kind == "vmem" and p.wide_store:
        return 2
    if p.kind == "salu" and "m0" in p.w:
        return 1
    return 0


class Asm:
    def __init__(self):
        self.ins = []

    def __call__(self, text, guards=None):
        for line in text.strip().split("\n"):
            line = line.strip()
            if not line or line.startswith(";"):
                continue
            self.ins.append(Ins(line, guards))

    def label(self, name):
        self.ins.append(Ins(name + ":"))

    def extend(self, other):
        self.ins.extend(other.ins if isinstance(other, Asm) else other)


COST = {"valu": 4, "trans": 8, "mfma": 8, "lds": 4, "vmem": 6, "salu": 4, "wait": 1, "nop": 4, "smem": 4}


def schedule(ins, lds_lat=110, mfma_period=16, valu_cost=None):
    n = len(ins)
    cost = dict(COST)
    if valu_cost:
        cost["valu"] = valu_cost
    succ = [[] for _ in range(n)]
    npred = [0] * n
    last_w = {}
    readers = {}
    last_vm = None
    last_lds = None

    def edge(a, b, lat):
        succ[a].append((b, lat))
        npred[b] += 1

    for i, x in enumerate(ins):
        assert x.kind not in ("label", "branch", "barrier", "smem"), x.text
        deps = {}

        def add(a, lat):
            deps[a] = max(deps.get(a, 0), lat)

        for r in x.r:
            if r in last_w:
                a = last_w[r]
                p = ins[a]
                lat = cost[p.kind]
                if p.kind == "lds":
                    lat = lds_lat
                elif p.kind == "mfma":
                    lat = 16 if (x.kind == "mfma" and r in x.srcc and p.w == x.srcc) else 40
                else:
                    lat = max(lat, 4 * (required_gap(p, x) + 1))
                add(a, lat)
        for w in x.w:
            if w in last_w:
                a = last_w[w]
                p = ins[a]
                lat = cost[p.kind]
                if p.kind == "lds":
                    lat = lds_lat
                elif p.kind == "mfma" and not (x.kind == "mfma" and p.w == x.srcc):
                    lat = 40
                add(a, lat)
            for a in readers.get(w, ()):
                if a != i:
                    add(a, max(cost[ins[a].kind], 4 * (required_gap(ins[a], x) + 1)))
        if x.kind == "vmem" or (x.kind == "wait" and "vmcnt" in x.text):
            if last_vm is not None:
                add(last_vm, 1)
            last_vm = i
        if x.kind == "lds":
            if last_lds is not None:
                add(last_lds, 1)
            last_lds = i
        for a, lat in deps.items():
            edge(a, i, lat)
        for r in x.r:
            readers.setdefault(r, []).append(i)
        for w in x.w:
            last_w[w] = i
            readers[w] = []
    prio = [0] * n
    for i in range(n - 1, -1, -1):
        best = cost[ins[i].kind]
        for b, lat in succ[i]:
            best = max(best, lat + prio[b])
        prio[i] = best
    ready_t = [0] * n
    avail = [i for i in range(n) if npred[i] == 0]
    t = 0
    mfma_free = 0
    out = []
    while avail:
        cand = []
        nonwait = [i for i in avail if ins[i].kind != "wait"]
        for i in (nonwait or avail):
            rt = ready_t[i]
            if ins[i].kind == "mfma":
                rt = max(rt, mfma_free)
            cand.append((rt, i))
        now = [i for rt, i in cand if rt <= t]
        if not now:
            t = min(rt for rt, i in cand)
            now = [i for rt, i in cand if rt <= t]
        pick = max(now, key=lambda i: (ins[i].kind == "mfma", prio[i], -i))
        avail.remove(pick)
        out.append(ins[pick])
        if ins[pick].kind == "mfma":
            mfma_free = t + mfma_period
        for b, lat in succ[pick]:
            ready_t[b] = max(ready_t[b], t + lat)
            npred[b] -= 1
            if npred[b] == 0:
                avail.append(b)
        t += cost[ins[pick].kind]
    assert len(out) == n
    return out, t


def finalize(ins):
    out = []
    fifo = []
    smem_out = set()
    smem_pending = False
    for x in ins:
        if x.kind in ("label", "branch", "barrier"):
            if x.kind == "barrier" and x.op == "s_barrier" and (fifo or smem_pending):
                out.append(Ins("s_waitcnt lgkmcnt(0)"))
                fifo, smem_out, smem_pending = [], set(), False
            elif any(fifo) or smem_pending:
                out.append(Ins("s_waitcnt lgkmcnt(0)"))
                fifo, smem_out, smem_pending = [], set(), False
            else:
                if fifo:
                    out.append(Ins("s_waitcnt lgkmcnt(0)"))
                    fifo = []
            out.append(x)
            continue
        if x.kind == "wait" and "lgkmcnt" in x.text:
            m = re.search(r"lgkmcnt\((\d+)\)", x.text)
            k = int(m.group(1))
            if k == 0:
                fifo, smem_out, smem_pending = [], set(), False
            else:
                assert not smem_pending
                fifo = fifo[len(fifo) - k:] if len(fifo) > k else fifo
            out.append(x)
            continue
        touched = x.r | x.w
        if smem_pending and (touched & smem_out):
            out.append(Ins("s_waitcnt lgkmcnt(0)"))
            fifo, smem_out, smem_pending = [], set(), False
        need = None
        for k, d in enumerate(fifo):
            if d & touched:
                need = k
        if need is not None:
            left = len(fifo) - need - 1
            if smem_pending:
                left = 0
                smem_out, smem_pending = set(), False
            left = min(left, 15)
            out.append(Ins(f"s_waitcnt lgkmcnt({left})"))
            fifo = fifo[len(fifo) - left:] if left else []
        if x.kind == "lds":
            if "NOWAIT" in x.text:
                assert not fifo and not smem_pending, x.text
            else:
                fifo.append(set(x.w))
        if x.kind == "smem":
            smem_pending = True
            smem_out |= x.w
        out.append(x)
    res = []
    for x in out:
        need = 0
        dist = 0
        boundary = x.kind in ("label", "branch")
        for p in reversed(res):
            if dist >= 9:
                break
            if p.kind == "label":
                break
            g = worst_gap(p) if boundary else required_gap(p, x)
            if x.kind == "branch":
                g = max(g - 1, required_gap(p, x))
            if g > dist:
                need = max(need, g - dist)
            dist += p.states()
        if need:
            res.append(Ins(f"s_nop {need - 1}"))
        res.append(x)
    return res


def render(ins):
    lines = []
    for x in ins:
        if x.kind == "label":
            lines.append(x.text)
        else:
            lines.append("    " + x.text)
    return "\n".join(lines) + "\n"
```

```python
from asmlib import Asm

N = 25000
E = 400000
G = 250
EPG = 1600
NBIN = 256
BIN_MAGIC = 43980480

WS_W1 = 0
WS_W2 = 32768
WS_WR = 131072
WS_WEND = 134144
WS_DESC = 0x40000
WS_REC = 0x100000
WS_SIZE = 0x1000000

K1_POS = 0
K1_CNT = 151552
K1_P = K1_CNT + 1024
K1_LDS = K1_P + 1024


def srd(a, d, base, size):
    a(f"s_mov_b32 s{d}, s{base}")
    a(f"s_mov_b32 s{d+1}, s{base+1}")
    a(f"s_mov_b32 s{d+2}, {size}")
    a(f"s_mov_b32 s{d+3}, 0x00020000")


def wave_scan(a, v):
    for sh in (1, 2, 4, 8):
        a(f"v_add_u32_dpp v{v}, v{v}, v{v} row_shr:{sh} row_mask:0xf bank_mask:0xf bound_ctrl:0")
    a(f"v_add_u32_dpp v{v}, v{v}, v{v} row_bcast:15 row_mask:0xa bank_mask:0xf")
    a(f"v_add_u32_dpp v{v}, v{v}, v{v} row_bcast:31 row_mask:0xc bank_mask:0xf")


def gen_k1():
    a = Asm()
    a.label("edge_bin_kernel")
    a("s_cmp_ge_u32 s2, 256")
    a("s_cbranch_scc1 K1_END")
    a("s_load_dwordx4 s[4:7], s[0:1], 8")
    a("s_load_dwordx4 s[8:11], s[0:1], 24")
    a("s_load_dwordx4 s[12:15], s[0:1], 40")
    a("s_load_dwordx2 s[16:17], s[0:1], 56")
    a("s_load_dwordx2 s[18:19], s[0:1], 80")
    a("v_lshrrev_b32 v1, 6, v0")
    a("v_and_b32 v6, 63, v0")
    a("v_readfirstlane_b32 s3, v1")
    a("s_mov_b32 s52, 0xffff0000")
    a("s_waitcnt lgkmcnt(0)")
    srd(a, 20, 4, N * 6)
    srd(a, 24, 6, E * 4)
    srd(a, 28, 8, E * 4)
    srd(a, 32, 18, WS_SIZE)
    srd(a, 36, 12, 128 * 128 * 2)
    srd(a, 40, 14, 128 * 384 * 2)
    srd(a, 44, 16, 4 * 384 * 2)
    a("s_cmp_ge_u32 s2, 250")
    a("s_cbranch_scc1 K1_WEIGHTS")
    a("s_mul_i32 s53, s2, 6400")
    a("v_lshlrev_b32 v7, 3, v0")
    a("v_cmp_gt_u32 vcc, 800, v0")
    a("v_mov_b32 v8, 0x40000000")
    a("s_mov_b64 s[50:51], vcc")
    a("v_cndmask_b32 v7, v8, v7, vcc")
    a("buffer_load_dwordx2 v[2:3], v7, s[24:27], s53 offen")
    a("buffer_load_dwordx2 v[4:5], v7, s[28:31], s53 offen")
    a("v_lshlrev_b32 v9, 4, v6")
    a("s_lshl_b32 s54, s3, 12")
    for k in range(3):
        if k == 2:
            a("s_cmp_ge_u32 s3, 5")
            a("s_cbranch_scc1 K1_STAGED")
        a("s_mov_b32 m0, s54")
        for j in range(4):
            a(f"buffer_load_dwordx4 v9, s[20:23], s54 offen offset:{1024*j} lds")
        a("s_add_u32 s54, s54, 0x10000")
    a.label("K1_STAGED")
    a("s_load_dwordx2 s[48:49], s[10:11], 0")
    a("v_lshlrev_b32 v10, 2, v0")
    a(f"v_add_u32 v10, {K1_CNT}, v10")
    a("v_mov_b32 v11, 0")
    a("v_cmp_gt_u32 vcc, 256, v0")
    a("s_and_saveexec_b64 s[56:57], vcc")
    a("ds_write_b32 v10, v11")
    a("s_mov_b64 exec, s[56:57]")
    a(f"s_mov_b32 s55, {BIN_MAGIC}")
    a(f"s_mov_b32 s58, {K1_CNT}")
    a("s_movk_i32 s59, 0x200")
    a("v_mov_b32 v40, 1")
    a("s_mov_b64 s[60:61], 0")
    a("s_mov_b64 s[62:63], 0")
    a("s_waitcnt vmcnt(0) lgkmcnt(0)")
    a("s_barrier")
    a("s_mov_b64 exec, s[50:51]")
    a("s_cbranch_execz K1_PHASE_B")
    for i, r in enumerate((2, 3, 4, 5)):
        a(f"v_mul_u32_u24 v{20+i}, 6, v{r}")
        a(f"v_and_b32 v{20+i}, -4, v{20+i}")
        a(f"ds_read2_b32 v[{12+2*i}:{13+2*i}], v{20+i} offset0:0 offset1:1")
    for i, r in enumerate((2, 3, 4, 5)):
        a(f"v_and_b32 v{24+i}, 1, v{r}")
        a(f"v_lshlrev_b32 v{24+i}, 4, v{24+i}")
    for e in range(2):
        a(f"v_mul_hi_u32 v{36+e}, v{4+e}, s55")
        a(f"v_lshl_add_u32 v{36+e}, v{36+e}, 2, s58")
    for i in range(4):
        a(f"v_lshrrev_b64 v[{12+2*i}:{13+2*i}], v{24+i}, v[{12+2*i}:{13+2*i}]")
    for e in range(2):
        s, d = 12 + 2 * e, 16 + 2 * e
        t = 20 + 8 * e
        a(f"v_lshlrev_b32 v{t}, 16, v{s}")
        a(f"v_lshlrev_b32 v{t+1}, 16, v{d}")
        a(f"v_and_b32 v{t+2}, s52, v{s}")
        a(f"v_and_b32 v{t+3}, s52, v{d}")
        a(f"v_lshlrev_b32 v{t+4}, 16, v{s+1}")
        a(f"v_lshlrev_b32 v{t+5}, 16, v{d+1}")
        a(f"v_sub_f32 v{t}, v{t}, v{t+1}")
        a(f"v_sub_f32 v{t+2}, v{t+2}, v{t+3}")
        a(f"v_sub_f32 v{t+4}, v{t+4}, v{t+5}")
        a(f"v_cvt_pk_bf16_f32 v{46+4*e}, v{t}, v{t+2}")
        a(f"v_mov_b32 v{44+4*e}, v{2+e}")
        a(f"v_mov_b32 v{45+4*e}, v{4+e}")
    a("v_cvt_pk_bf16_f32 v12, v24, v32")
    a("v_lshlrev_b32 v47, 16, v12")
    a("v_and_b32 v51, s52, v12")
    for e in range(2):
        t = 20 + 8 * e
        a(f"v_lshlrev_b32 v{t}, 16, v{46+4*e}")
        a(f"v_and_b32 v{t+1}, s52, v{46+4*e}")
        a(f"v_mul_f32 v{t}, v{t}, v{t}")
        a(f"v_mul_f32 v{t+1}, v{t+1}, v{t+1}")
        a(f"v_mul_f32 v{t+2}, v{47+4*e}, v{47+4*e}")
        a(f"v_cvt_pk_bf16_f32 v{t+3}, v{t}, v{t+1}")
    a("v_cvt_pk_bf16_f32 v12, v22, v30")
    a("v_lshlrev_b32 v22, 16, v12")
    a("v_and_b32 v30, s52, v12")
    for e in range(2):
        t = 20 + 8 * e
        a(f"v_lshlrev_b32 v{t}, 16, v{t+3}")
        a(f"v_and_b32 v{t+1}, s52, v{t+3}")
        a(f"v_add_f32 v{t}, v{t}, v{t+1}")
        a(f"v_add_f32 v{t}, v{t}, v{t+2}")
        a(f"v_cmp_nlt_f32 vcc, 0x41c68000, v{t}")
        a(f"v_cmp_class_f32_e64 s[{60+2*e}:{61+2*e}], v{t}, s59")
        a(f"s_or_b64 s[{60+2*e}:{61+2*e}], s[{60+2*e}:{61+2*e}], vcc")
    for e in range(2):
        a(f"s_mov_b64 exec, s[{60+2*e}:{61+2*e}]")
        a(f"ds_add_rtn_u32 v{38+e}, v{36+e}, v40")
    a.label("K1_PHASE_B")
    a("s_mov_b64 exec, -1")
    a("s_barrier")
    a(f"v_add_u32 v10, {K1_CNT}, v9")
    a("ds_read_b128 v[12:15], v10")
    a("v_add_u32 v17, v12, v13")
    a("v_add_u32 v18, v17, v14")
    a("v_add_u32 v19, v18, v15")
    a("v_mov_b32 v20, v19")
    wave_scan(a, 20)
    a("v_sub_u32 v24, v20, v19")
    a("v_add_u32 v25, v24, v12")
    a("v_add_u32 v26, v24, v17")
    a("v_add_u32 v27, v24, v18")
    a("ds_write_b128 v10, v[24:27] offset:1024")
    a("v_readlane_b32 s64, v20, 63")
    a("s_cmp_lg_u32 s3, 15")
    a("s_cbranch_scc1 K1_NODESC")
    for i in range(4):
        a(f"v_lshl_or_b32 v{28+i}, v{12+i}, 16, v{24+i}")
    a("s_lshl_b32 s65, s2, 10")
    a(f"s_add_u32 s65, s65, {WS_DESC}")
    a("buffer_store_dwordx4 v[28:31], v9, s[32:35], s65 offen")
    a.label("K1_NODESC")
    for e in range(2):
        a(f"s_mov_b64 exec, s[{60+2*e}:{61+2*e}]")
        a(f"ds_read_b32 v{12+e}, v{36+e} offset:1024")
    for e in range(2):
        a(f"s_mov_b64 exec, s[{60+2*e}:{61+2*e}]")
        a(f"v_add_lshl_u32 v{12+e}, v{12+e}, v{38+e}, 4")
        a(f"ds_write_b128 v{12+e}, v[{44+4*e}:{47+4*e}]")
    a("s_mov_b64 exec, -1")
    a("s_lshl_b32 s66, s48, 16")
    a("s_and_b32 s67, s48, s52")
    a("s_lshl_b32 s68, s49, 16")
    a("s_and_b32 s69, s49, s52")
    a("s_mul_i32 s65, s2, 51200")
    a(f"s_add_u32 s65, s65, {WS_REC}")
    a("s_movk_i32 s70, 3125")
    a("s_mov_b32 s71, 0x40a00000")
    a("s_barrier")
    a("v_mov_b32 v8, v0")
    a("s_lshl_b32 s72, s3, 6")
    a.label("K1_DENSE")
    a("s_cmp_ge_u32 s72, s64")
    a("s_cbranch_scc1 K1_END")
    a("v_cmp_gt_u32 vcc, s64, v8")
    a("s_and_b64 exec, exec, vcc")
    a("v_lshlrev_b32 v10, 4, v8")
    a("ds_read_b128 v[12:15], v10")
    a("v_lshlrev_b32 v16, 16, v14")
    a("v_and_b32 v17, s52, v14")
    a("v_mul_f32 v18, v16, v16")
    a("v_mul_f32 v19, v17, v17")
    a("v_mul_f32 v20, v15, v15")
    a("v_cvt_pk_bf16_f32 v18, v18, v19")
    a("v_cvt_pk_bf16_f32 v20, v20, v20")
    a("v_and_b32 v19, s52, v18")
    a("v_lshlrev_b32 v18, 16, v18")
    a("v_and_b32 v20, s52, v20")
    a("v_add_f32 v18, v18, v19")
    a("v_add_f32 v18, v18, v20")
    a("v_cvt_pk_bf16_f32 v18, v18, v18")
    a("v_and_b32 v18, s52, v18")
    a("v_add_f32 v18, 0x322bcc77, v18")
    a("v_cvt_pk_bf16_f32 v18, v18, v18")
    a("v_and_b32 v18, s52, v18")
    a("v_sqrt_f32 v18, v18")
    a("v_mul_hi_u32 v21, v13, s55")
    a("v_mul_u32_u24 v21, s70, v21")
    a("v_add_u32 v21, 31, v21")
    a("v_lshrrev_b32 v21, 5, v21")
    a("v_lshlrev_b32 v44, 10, v12")
    a("v_sub_u32 v45, v13, v21")
    a("v_cvt_pk_bf16_f32 v18, v18, v18")
    a("v_and_b32 v18, s52, v18")
    a("v_rcp_f32 v19, v18")
    for k in range(4):
        a(f"v_mul_f32 v{22+k}, s{66+k}, v18")
    a("v_mul_f32 v26, 0x40490fdb, v18")
    a("v_cvt_pk_bf16_f32 v22, v22, v23")
    a("v_cvt_pk_bf16_f32 v24, v24, v25")
    a("v_cvt_pk_bf16_f32 v26, v26, v26")
    a("v_and_b32 v23, s52, v22")
    a("v_lshlrev_b32 v22, 16, v22")
    a("v_and_b32 v25, s52, v24")
    a("v_lshlrev_b32 v24, 16, v24")
    a("v_and_b32 v26, s52, v26")
    a("v_mul_f32 v26, 0x3e4ccccd, v26")
    a("v_cvt_pk_bf16_f32 v26, v26, v26")
    a("v_and_b32 v26, s52, v26")
    for k in range(5):
        a(f"v_mul_f32 v{22+k}, 0.15915494, v{22+k}")
    for k in range(5):
        a(f"v_rndne_f32 v{28+k}, v{22+k}")
    for k in range(5):
        a(f"v_sub_f32 v{22+k}, v{22+k}, v{28+k}")
    for k in range(4):
        a(f"v_sin_f32 v{22+k}, v{22+k}")
    a("v_cos_f32 v26, v26")
    a("v_mul_f32 v16, v16, v19")
    a("v_mul_f32 v17, v17, v19")
    a("v_mul_f32 v15, v15, v19")
    a("v_cvt_pk_bf16_f32 v46, v16, v17")
    a("v_cvt_pk_bf16_f32 v47, v15, 0")
    a("v_cvt_pk_bf16_f32 v22, v22, v23")
    a("v_cvt_pk_bf16_f32 v24, v24, v25")
    a("v_cvt_pk_bf16_f32 v26, v26, v26")
    a("v_and_b32 v23, s52, v22")
    a("v_lshlrev_b32 v22, 16, v22")
    a("v_and_b32 v25, s52, v24")
    a("v_lshlrev_b32 v24, 16, v24")
    a("v_and_b32 v26, s52, v26")
    for k in range(4):
        a(f"v_mul_f32 v{22+k}, v{22+k}, v19")
    a("v_add_f32 v26, 1.0, v26")
    a("v_cvt_pk_bf16_f32 v22, v22, v23")
    a("v_cvt_pk_bf16_f32 v24, v24, v25")
    a("v_cvt_pk_bf16_f32 v26, v26, v26")
    a("v_and_b32 v23, s52, v22")
    a("v_lshlrev_b32 v22, 16, v22")
    a("v_and_b32 v25, s52, v24")
    a("v_lshlrev_b32 v24, 16, v24")
    a("v_and_b32 v26, s52, v26")
    a("v_mul_f32 v26, 0.5, v26")
    a("v_mul_f32 v27, 0, v18")
    a("v_cmp_gt_f32 vcc, s71, v18")
    a("v_cndmask_b32 v26, v27, v26, vcc")
    for k in range(4):
        a(f"v_mul_f32 v{22+k}, v{22+k}, v26")
    a("v_cvt_pk_bf16_f32 v48, v22, v23")
    a("v_cvt_pk_bf16_f32 v49, v24, v25")
    a("v_lshlrev_b32 v28, 16, v48")
    a("v_and_b32 v29, s52, v48")
    a("v_lshlrev_b32 v30, 16, v49")
    a("v_and_b32 v31, s52, v49")
    for k in range(4):
        a(f"v_sub_f32 v{22+k}, v{22+k}, v{28+k}")
    a("v_cvt_pk_bf16_f32 v50, v22, v23")
    a("v_cvt_pk_bf16_f32 v51, v24, v25")
    a("v_lshlrev_b32 v10, 5, v8")
    a("buffer_store_dwordx4 v[44:47], v10, s[32:35], s65 offen")
    a("buffer_store_dwordx4 v[48:51], v10, s[32:35], s65 offen offset:16")
    a("v_add_u32 v8, 0x400, v8")
    a("s_add_u32 s72, s72, 0x400")
    a("s_branch K1_DENSE")
    a.label("K1_WEIGHTS")
    a("s_sub_u32 s53, s2, 250")
    a("v_and_b32 v7, 15, v0")
    a("v_bfe_u32 v8, v0, 4, 2")
    a("s_lshl_b32 s54, s53, 4")
    a("s_add_u32 s54, s54, s3")
    a("s_and_b32 s55, s54, 3")
    a("s_lshr_b32 s56, s54, 2")
    a("s_lshr_b32 s57, s56, 3")
    a("s_and_b32 s58, s56, 7")
    a("s_mul_i32 s59, s55, 24576")
    a("s_lshl_b32 s60, s57, 8")
    a("s_add_u32 s59, s59, s60")
    a("s_lshl_b32 s60, s58, 1")
    a("s_add_u32 s59, s59, s60")
    a("s_add_u32 s61, s59, 12288")
    a("v_mul_u32_u24 v10, 3072, v8")
    a("v_lshl_add_u32 v10, v7, 4, v10")
    for j in range(4):
        a(f"buffer_load_ushort v{12+j}, v10, s[40:43], s59 offen offset:{768*j}")
    for j in range(4):
        a(f"buffer_load_ushort v{16+j}, v10, s[40:43], s61 offen offset:{768*j}")
    a("s_lshl_b32 s62, s53, 14")
    a(f"s_add_u32 s62, s62, {WS_W2}")
    a("v_lshlrev_b32 v11, 4, v0")
    a("s_waitcnt vmcnt(0)")
    for j in range(4):
        a(f"v_lshl_or_b32 v{20+j}, v{13+2*j}, 16, v{12+2*j}")
    a("buffer_store_dwordx4 v[20:23], v11, s[32:35], s62 offen")
    a("s_cmp_ge_u32 s53, 2")
    a("s_cbranch_scc1 K1_WRBF")
    a("s_lshl_b32 s59, s55, 13")
    a("s_lshl_b32 s60, s56, 5")
    a("s_add_u32 s59, s59, s60")
    a("v_lshlrev_b32 v10, 11, v8")
    a("v_lshl_add_u32 v10, v7, 1, v10")
    for j in range(8):
        a(f"buffer_load_ushort v{12+j}, v10, s[36:39], s59 offen offset:{256*j}")
    a("s_lshl_b32 s62, s53, 14")
    a("s_waitcnt vmcnt(0)")
    for j in range(4):
        a(f"v_lshl_or_b32 v{24+j}, v{13+2*j}, 16, v{12+2*j}")
    a("buffer_store_dwordx4 v[24:27], v11, s[32:35], s62 offen")
    a("s_branch K1_END")
    a.label("K1_WRBF")
    a("s_cmp_lg_u32 s53, 2")
    a("s_cbranch_scc1 K1_END")
    a("s_cmp_ge_u32 s3, 6")
    a("s_cbranch_scc1 K1_END")
    a("v_lshrrev_b32 v10, 4, v0")
    a("v_lshrrev_b32 v12, 3, v10")
    a("v_and_b32 v13, 7, v10")
    a("v_lshlrev_b32 v12, 8, v12")
    a("v_lshl_add_u32 v12, v13, 1, v12")
    a("v_lshl_add_u32 v12, v7, 4, v12")
    for j in range(4):
        a(f"buffer_load_ushort v{14+j}, v12, s[44:47], 0 offen offset:{768*j}")
    a("v_lshlrev_b32 v11, 3, v0")
    a(f"s_mov_b32 s62, {WS_WR}")
    a("s_waitcnt vmcnt(0)")
    a("v_lshl_or_b32 v24, v15, 16, v14")
    a("v_lshl_or_b32 v25, v17, 16, v16")
    a("buffer_store_dwordx2 v[24:25], v11, s[32:35], s62 offen")
    a.label("K1_END")
    a("s_endpgm")
    return a
```

```python
from asmlib import Asm, Ins, schedule
from gen_k1 import N, WS_W1, WS_W2, WS_WR, WS_WEND, WS_DESC, WS_REC, WS_SIZE, srd, wave_scan

L_W1 = 0
L_W2 = 32768
L_WR = 131072
L_CNT = 134144
L_P = L_CNT + 512
L_FLAG = L_P + 576
L_REC = L_FLAG + 64
CAP = 768
K2_LDS = 163840
RMAX = 12

sWAVE = 3
SRD_SV, SRD_OUT, SRD_WS, SRD_OWN = 12, 16, 20, 24
sM, sBASE, sNB, sJ0, sR, sTOT, sROUND, sMORE = 28, 29, 30, 31, 32, 33, 34, 35
cN0, cNN, cEB, cNE, cE1, cOFF = 36, 37, 38, 39, 40, 41
nN0, nNN, nEB, nNE, nE1, nOFF = 42, 43, 44, 45, 46, 47
sT0, sT1, sT2, sPOS = 48, 49, 50, 51
sLO, sONE2, sSELL, sSELH = 52, 53, 54, 55
sQLT2 = 56
sCE32, sNE32 = 58, 59
sMK = 60

vLANE, vWB0, vWB1, vWR, vE, vQ4, vQ16, vN16, vRECE, vRECQ, vRB, vTA, vTB, vOWN0, v2Q, vNEXT, vP, vOOB = range(1, 19)
vOA0, vOA1, vON0, vON1 = 19, 20, 21, 22
vVA = 23
vSA = 27
vRBOP = 28
S0 = 32
V0 = 48
OWN0 = 96
H0 = 128
MS0 = 144
MVR0 = 160
MVV0 = 176
WRING = 208
NRING = 5
PH0 = 228
WF0 = 236
WRF0 = 244
MKPR = [248, 249, 250, 251, 252, 253, 254, 255, 30, 31]


def q(base):
    return f"v[{base}:{base+3}]"


def Vq(x, r):
    return V0 + 16 * x + 4 * r


def Oq(c, h):
    return OWN0 + 8 * c + 4 * h


def advance(a):
    a(f"s_lshr_b32 s{sT0}, s{sPOS}, 1")
    a(f"v_readlane_b32 s{sT1}, v{vNEXT}, s{sT0}")
    a(f"s_and_b32 s{sT2}, s{sPOS}, 1")
    a(f"s_lshl_b32 s{sT2}, s{sT2}, 3")
    a(f"s_lshr_b32 s{sT1}, s{sT1}, s{sT2}")
    a(f"s_and_b32 s{sPOS}, s{sT1}, 0xff")


def lookup_p(a, dst):
    a(f"s_lshr_b32 s{sT0}, s{sPOS}, 1")
    a(f"v_readlane_b32 s{sT1}, v{vP}, s{sT0}")
    a(f"s_and_b32 s{sT2}, s{sPOS}, 1")
    a(f"s_lshl_b32 s{sT2}, s{sT2}, 4")
    a(f"s_lshr_b32 s{sT1}, s{sT1}, s{sT2}")
    a(f"s_and_b32 s{dst}, s{sT1}, 0xffff")


def build_next_job(a):
    a(f"s_mov_b32 s{nN0}, s{sPOS}")
    lookup_p(a, nEB)
    advance(a)
    lookup_p(a, nE1)
    a(f"s_sub_u32 s{nNN}, s{sPOS}, s{nN0}")
    a(f"s_add_u32 s{nOFF}, s{nN0}, s{sBASE}")
    a(f"s_lshl_b32 s{nOFF}, s{nOFF}, 10")
    a(f"s_cmp_eq_u32 s{sROUND}, 0")
    a(f"s_cselect_b32 s{SRD_OWN}, s4, s6")
    a(f"s_cselect_b32 s{SRD_OWN+1}, s5, s7")


def next_ne(a):
    a(f"s_sub_u32 s{nNE}, s{nE1}, s{nEB}")
    a(f"s_min_u32 s{nNE}, s{nNE}, 16")
    a(f"s_lshl_b32 s{sNE32}, s{nEB}, 5")


class MaskAlloc:
    def __init__(self):
        self.k = 0

    def __call__(self):
        r = sMK + 2 * (self.k % 18)
        self.k += 1
        return f"s[{r}:{r+1}]"


def emit_next_addr(a, mk, t):
    a(f"v_add_u32 v{t[0]}, s{sNE32}, v{vRECE}")
    a(f"v_add_u32 v{t[1]}, s{sNE32}, v{vRECQ}")
    a(f"ds_read_b32 v{vSA}, v{t[0]}")
    for r in range(4):
        a(f"ds_read_b32 v{vVA+r}, v{t[1]} offset:{32*r}")
    m = mk()
    a(f"v_cmp_gt_u32_e64 {m}, s{nNE}, v{vE}")
    a(f"v_add_u32 v{vSA}, v{vSA}, v{vQ16}")
    a(f"v_cndmask_b32_e64 v{vSA}, v{vOOB}, v{vSA}, {m}")
    for r in range(4):
        m = mk()
        a(f"v_add_u32 v{t[2+r]}, {r}, v{vQ4}")
        a(f"v_cmp_gt_u32_e64 {m}, s{nNE}, v{t[2+r]}")
        a(f"v_add_u32 v{vVA+r}, v{vVA+r}, v{vN16}")
        a(f"v_cndmask_b32_e64 v{vVA+r}, v{vOOB}, v{vVA+r}, {m}")
    m = mk()
    a(f"v_cmp_gt_u32_e64 {m}, s{nNN}, v{v2Q}")
    a(f"v_cndmask_b32_e64 v{vON0}, v{vOOB}, v{vOWN0}, {m}")
    m = mk()
    a(f"v_add_u32 v{t[0]}, 1, v{v2Q}")
    a(f"v_add_u32 v{t[1]}, 0x400, v{vOWN0}")
    a(f"v_cmp_gt_u32_e64 {m}, s{nNN}, v{t[0]}")
    a(f"v_cndmask_b32_e64 v{vON1}, v{vOOB}, v{t[1]}, {m}")


def emit_s_loads(a):
    for t in range(4):
        a(f"buffer_load_dwordx4 {q(S0+4*t)}, v{vSA}, s[{SRD_SV}:{SRD_SV+3}], 0 offen offset:{64*t}")


def emit_comp_mem(a, c):
    for h, va in ((0, vOA0), (1, vOA1)):
        a(f"buffer_store_dwordx4 {q(Oq(c,h))}, v{va}, s[{SRD_OUT}:{SRD_OUT+3}], s{cOFF} offen offset:{256*c}")
    if c > 0:
        for r in range(4):
            a(f"buffer_load_dwordx4 {q(Vq(c-1,r))}, v{vVA+r}, s[{SRD_SV}:{SRD_SV+3}], 0 offen offset:{256*c}")
    for h, va in ((0, vON0), (1, vON1)):
        a(f"buffer_load_dwordx4 {q(Oq(c,h))}, v{va}, s[{SRD_OWN}:{SRD_OWN+3}], s{nOFF} offen offset:{256*c}")


def comp_wait(a, c):
    regs = [f"v{Oq(c,h)+i}" for h in range(2) for i in range(4)]
    if c > 0:
        regs += [f"v{Vq(c-1,r)+i}" for r in range(4) for i in range(4)]
    a(f"s_waitcnt vmcnt({28 if c == 0 else 24})", guards=regs)


def wfrag(a, k, ring):
    off = k * 1024
    base = vWB0 if off < 65536 else vWB1
    a(f"ds_read_b128 {q(ring)}, v{base} offset:{off % 65536}")


def item_block():
    a = Asm()
    mk = MaskAlloc()
    MK = MKPR[0:4]
    PR = MKPR[4:10]
    T = list(range(MS0, MS0 + 32))
    a(f"v_add_u32 v{T[16]}, s{sCE32}, v{vRB}")
    a(f"v_add_u32 v{T[17]}, s{sCE32}, v{vRECQ}")
    a(f"ds_read_b64 v[{vRBOP}:{vRBOP+1}], v{T[16]}")
    for r in range(4):
        a(f"ds_read_b128 {q(T[4*r])}, v{T[17]} offset:{32*r}")
    ring = [WRING + 4 * i for i in range(NRING)]
    kf = [0]
    nfr = 128

    def prefetch():
        if kf[0] < nfr:
            wfrag(a, kf[0], ring[kf[0] % NRING])
            kf[0] += 1

    for _ in range(NRING):
        prefetch()
    m = mk()
    a(f"v_cmp_gt_u32_e64 {m}, s{cNE}, v{vE}")
    a(f"s_and_b64 {m}, {m}, s[{sQLT2}:{sQLT2+1}]")
    a(f"v_cndmask_b32_e64 v{vRBOP}, 0, v{vRBOP}, {m}")
    a(f"v_cndmask_b32_e64 v{vRBOP+1}, 0, v{vRBOP+1}, {m}")
    for r in range(4):
        m = mk()
        a(f"v_add_u32 v{T[18+r]}, {r}, v{vQ4}")
        a(f"v_cmp_gt_u32_e64 {m}, s{cNE}, v{T[18+r]}")
        a(f"v_subrev_u32 v{T[4*r+1]}, s{cN0}, v{T[4*r+1]}")
        a(f"v_cndmask_b32_e64 v{T[4*r+1]}, -2, v{T[4*r+1]}, {m}")
    for side, tgt in ((0, vTA), (1, vTB)):
        for pr in range(2):
            ts = []
            for r in (2 * pr, 2 * pr + 1):
                m = mk()
                t = T[22 + 4 * side + r]
                a(f"v_cmp_eq_u32_e64 {m}, v{T[4*r+1]}, v{tgt}")
                a(f"v_cndmask_b32_e64 v{t}, 0, -1, {m}")
                ts.append(t)
            a(f"v_bfi_b32 v{MK[2*side+pr]}, s{sLO}, v{ts[0]}, v{ts[1]}")
    for pr in range(2):
        r0, r1 = 2 * pr, 2 * pr + 1
        a(f"v_perm_b32 v{PR[0+pr]}, v{T[4*r1+2]}, v{T[4*r0+2]}, s{sSELL}")
        a(f"v_perm_b32 v{PR[2+pr]}, v{T[4*r1+2]}, v{T[4*r0+2]}, s{sSELH}")
        a(f"v_perm_b32 v{PR[4+pr]}, v{T[4*r1+3]}, v{T[4*r0+3]}, s{sSELL}")
    a("s_waitcnt vmcnt(28)", guards=[f"v{S0+i}" for i in range(16)])
    k = 0
    for u in range(8):
        D = MVV0 + 4 * u
        for t in range(4):
            c = "0" if t == 0 else q(D)
            a(f"v_mfma_f32_16x16x32_bf16 {q(D)}, {q(ring[k % NRING])}, {q(S0+4*t)}, {c}")
            k += 1
            prefetch()
        for r in range(4):
            t = T[4 * u + r]
            a(f"v_mul_f32 v{t}, 0xbfb8aa3b, v{D+r}")
            a(f"v_exp_f32 v{t}, v{t}")
            a(f"v_add_f32 v{t}, 1.0, v{t}")
            a(f"v_rcp_f32 v{t}, v{t}")
            a(f"v_mul_f32 v{D+r}, v{D+r}, v{t}")
        a(f"v_cvt_pk_bf16_f32 v{H0+2*u}, v{D}, v{D+1}")
        a(f"v_cvt_pk_bf16_f32 v{H0+2*u+1}, v{D+2}, v{D+3}")
    emit_next_addr(a, mk, [PH0, PH0 + 1, PH0 + 2, PH0 + 3, WF0, WF0 + 1])
    emit_s_loads(a)
    for c in range(24):
        Gi, Ti = c // 8, c % 8
        PH = PH0 + 4 * (c % 2)
        WF = WF0 + 4 * (c % 2)
        WRF = WRF0 + 2 * (c % 2)
        a(f"ds_read_b64 v[{WRF}:{WRF+1}], v{vWR} offset:{128*c}")
        for t in range(4):
            cc = "0" if t == 0 else q(PH)
            a(f"v_mfma_f32_16x16x32_bf16 {q(PH)}, {q(H0+4*t)}, {q(ring[k % NRING])}, {cc}")
            k += 1
            prefetch()
        a(f"v_mfma_f32_16x16x16_bf16 {q(WF)}, v[{vRBOP}:{vRBOP+1}], v[{WRF}:{WRF+1}], 0")
        if Gi == 1:
            for r in range(4):
                a(f"v_mul_f32 v{MVV0+4*Ti+r}, v{PH+r}, v{WF+r}")
        else:
            for r in range(4):
                a(f"v_mul_f32 v{WF+r}, v{PH+r}, v{WF+r}")
            dst = (MS0 if Gi == 0 else MVR0) + 2 * Ti
            a(f"v_cvt_pk_bf16_f32 v{dst}, v{WF}, v{WF+1}")
            a(f"v_cvt_pk_bf16_f32 v{dst+1}, v{WF+2}, v{WF+3}")
    AS = H0
    for i in range(4):
        a(f"v_and_b32 v{AS+i}, s{sONE2}, v{MK[i]}")
    for x in range(3):
        for i in range(4):
            a(f"v_and_b32 v{AS+4+4*x+i}, v{MK[i]}, v{PR[2*x+(i%2)]}")
    pool = list(range(WRING, WRING + 40))
    CD = [pool[0], pool[4], pool[8]]
    BB = [pool[12], pool[16]]
    TT = [pool[20:28], pool[28:36]]
    it = 0
    for c in range(4):
        comp_wait(a, c)
        for p in range(4):
            C = CD[it % 3]
            o0, o1 = Oq(c, 0) + p, Oq(c, 1) + p
            a(f"v_lshlrev_b32 v{C}, 16, v{o0}")
            a(f"v_lshlrev_b32 v{C+1}, 16, v{o1}")
            a(f"v_and_b32 v{C+2}, s{sM}, v{o0}")
            a(f"v_and_b32 v{C+3}, s{sM}, v{o1}")
            if c == 0:
                a(f"v_mfma_f32_16x16x32_bf16 {q(C)}, {q(AS)}, {q(MS0+4*p)}, {q(C)}")
            else:
                x = c - 1
                B = BB[it % 2]
                t = TT[it % 2]
                for r in range(4):
                    src = Vq(x, r) + p
                    a(f"v_lshlrev_b32 v{t[r]}, 16, v{src}")
                    a(f"v_and_b32 v{t[4+r]}, s{sM}, v{src}")
                    a(f"v_mul_f32 v{t[r]}, v{t[r]}, v{MVV0+4*(2*p)+r}")
                    a(f"v_mul_f32 v{t[4+r]}, v{t[4+r]}, v{MVV0+4*(2*p+1)+r}")
                for i in range(4):
                    a(f"v_cvt_pk_bf16_f32 v{B+i}, v{t[2*i]}, v{t[2*i+1]}")
                a(f"v_mfma_f32_16x16x32_bf16 {q(C)}, {q(AS+4+4*x)}, {q(MVR0+4*p)}, {q(C)}")
                a(f"v_mfma_f32_16x16x32_bf16 {q(C)}, {q(AS)}, {q(B)}, {q(C)}")
            a(f"v_cvt_pk_bf16_f32 v{o0}, v{C}, v{C+2}")
            a(f"v_cvt_pk_bf16_f32 v{o1}, v{C+1}, v{C+3}")
            it += 1
        emit_comp_mem(a, c)
    return a


def gen_k2(prefetch_own=True, do_sched=True):
    a = Asm()
    a.label("message_kernel")
    a("s_cmp_ge_u32 s2, 256")
    a("s_cbranch_scc1 K2_END")
    a("s_load_dwordx2 s[4:5], s[0:1], 0")
    a("s_load_dwordx2 s[6:7], s[0:1], 64")
    a("s_load_dwordx2 s[8:9], s[0:1], 80")
    a("v_lshrrev_b32 v32, 6, v0")
    a(f"v_and_b32 v{vLANE}, 63, v0")
    a(f"v_readfirstlane_b32 s{sWAVE}, v32")
    a(f"v_lshlrev_b32 v{vWB0}, 4, v{vLANE}")
    a(f"v_mov_b32 v{vOOB}, 0x40000000")
    a("v_lshlrev_b32 v33, 10, v0")
    a("v_cmp_gt_u32 vcc, 250, v0")
    a(f"v_cndmask_b32 v33, v{vOOB}, v33, vcc")
    a(f"s_lshl_b32 s{sT0}, s2, 2")
    a(f"s_add_u32 s{sT0}, s{sT0}, {WS_DESC}")
    a(f"s_mul_i32 s{sBASE}, s2, 3125")
    a(f"s_add_u32 s{sNB}, s{sBASE}, {3125+31}")
    a(f"s_add_u32 s{sBASE}, s{sBASE}, 31")
    a(f"s_lshr_b32 s{sBASE}, s{sBASE}, 5")
    a(f"s_lshr_b32 s{sNB}, s{sNB}, 5")
    a(f"s_sub_u32 s{sNB}, s{sNB}, s{sBASE}")
    a("s_waitcnt lgkmcnt(0)")
    srd(a, SRD_WS, 8, WS_SIZE)
    srd(a, SRD_SV, 4, N * 1024)
    srd(a, SRD_OUT, 6, N * 1024)
    srd(a, SRD_OWN, 4, N * 1024)
    a(f"s_cmp_ge_u32 s{sWAVE}, 4")
    a("s_cbranch_scc1 K2_DMA")
    a(f"buffer_load_dword v34, v33, s[{SRD_WS}:{SRD_WS+3}], s{sT0} offen")
    a("s_branch K2_COMMON")
    a.label("K2_DMA")
    a(f"s_sub_u32 s{sT1}, s{sWAVE}, 4")
    a(f"s_lshl_b32 s{sT0}, s{sT1}, 12")
    for k in range(8):
        a(f"s_mov_b32 m0, s{sT0}")
        for j in range(4):
            a(f"buffer_load_dwordx4 v{vWB0}, s[{SRD_WS}:{SRD_WS+3}], s{sT0} offen offset:{1024*j} lds")
        a(f"s_add_u32 s{sT0}, s{sT0}, 0x4000")
    a(f"s_cmp_lg_u32 s{sWAVE}, 4")
    a("s_cbranch_scc1 K2_DMA2")
    a(f"s_mov_b32 m0, s{sT0}")
    for j in range(3):
        a(f"buffer_load_dwordx4 v{vWB0}, s[{SRD_WS}:{SRD_WS+3}], s{sT0} offen offset:{1024*j} lds")
    a.label("K2_DMA2")
    npref = 0
    if prefetch_own:
        a(f"s_mul_i32 s{sT0}, s{sT1}, 25")
        a(f"s_add_u32 s{sT0}, s{sT0}, s{sBASE}")
        a(f"s_lshl_b32 s{sT0}, s{sT0}, 10")
        for i in range(25):
            a(f"buffer_load_dwordx4 {q(204)}, v{vWB0}, s[{SRD_SV}:{SRD_SV+3}], s{sT0} offen offset:{1024*(i%4)}")
            if i % 4 == 3:
                a(f"s_add_u32 s{sT0}, s{sT0}, 0x1000")
        npref = 25
    a.label("K2_COMMON")
    a(f"v_add_u32 v{vWB1}, 0x10000, v{vWB0}")
    a(f"v_and_b32 v{vE}, 15, v{vLANE}")
    a(f"v_lshrrev_b32 v35, 4, v{vLANE}")
    a(f"v_lshlrev_b32 v{vWR}, 3, v{vE}")
    a(f"v_add_u32 v{vWR}, {L_WR}, v{vWR}")
    a(f"v_lshlrev_b32 v{vQ4}, 2, v35")
    a(f"v_lshlrev_b32 v{vQ16}, 4, v35")
    a(f"v_lshlrev_b32 v{vN16}, 4, v{vE}")
    a(f"v_lshlrev_b32 v{vRECE}, 5, v{vE}")
    a(f"v_add_u32 v{vRECE}, {L_REC}, v{vRECE}")
    a(f"v_lshlrev_b32 v{vRECQ}, 7, v35")
    a(f"v_add_u32 v{vRECQ}, {L_REC}, v{vRECQ}")
    a("v_and_b32 v36, 1, v35")
    a(f"v_lshl_add_u32 v{vRB}, v36, 3, v{vRECE}")
    a(f"v_add_u32 v{vRB}, 16, v{vRB}")
    a(f"v_lshlrev_b32 v{v2Q}, 1, v35")
    a(f"v_lshl_add_u32 v{vOWN0}, v35, 11, v{vN16}")
    a(f"v_lshrrev_b32 v36, 2, v{vE}")
    a(f"v_and_b32 v37, 1, v{vE}")
    a("v_lshl_add_u32 v36, v36, 1, v37")
    a(f"v_and_b32 v37, 2, v{vE}")
    a("v_cmp_eq_u32 vcc, 0, v37")
    a(f"v_cndmask_b32 v{vTA}, -1, v36, vcc")
    a(f"v_cndmask_b32_e64 v{vTB}, v36, -1, vcc")
    a(f"v_cmp_gt_u32_e64 s[{sQLT2}:{sQLT2+1}], 32, v{vLANE}")
    a(f"s_mov_b32 s{sM}, 0xffff0000")
    a(f"s_mov_b32 s{sLO}, 0xffff")
    a(f"s_mov_b32 s{sONE2}, 0x3f803f80")
    a(f"s_mov_b32 s{sSELL}, 0x05040100")
    a(f"s_mov_b32 s{sSELH}, 0x07060302")
    a(f"s_mov_b32 s{sJ0}, 0")
    a(f"s_mov_b32 s{sR}, {RMAX}")
    a(f"s_mov_b32 s{sROUND}, 0")
    a.label("K2_ROUND")
    a("v_lshlrev_b32 v36, 2, v0")
    a(f"v_add_u32 v36, {L_CNT}, v36")
    a("v_mov_b32 v37, 0")
    a(f"v_mov_b32 v38, {L_FLAG}")
    a("v_cmp_gt_u32 vcc, 0x80, v0")
    a(f"s_and_saveexec_b64 s[{sMK}:{sMK+1}], vcc")
    a("ds_write_b32 v36, v37")
    a("ds_write_b32 v38, v37")
    a("s_mov_b64 exec, -1")
    a("s_barrier")
    a(f"s_cmp_ge_u32 s{sWAVE}, 4")
    a("s_cbranch_scc1 K2_AFTER_REC")
    REC = 64
    RK = 40
    AD = 52
    a("s_waitcnt vmcnt(0)")
    a("v_and_b32 v35, 0xffff, v34")
    a("v_lshrrev_b32 v36, 16, v34")
    a(f"v_subrev_u32 v36, s{sJ0}, v36")
    a("v_max_i32 v36, 0, v36")
    a(f"v_cmp_lt_u32 vcc, s{sR}, v36")
    a(f"v_min_u32 v36, s{sR}, v36")
    a("v_mov_b32 v37, 1")
    a(f"s_and_saveexec_b64 s[{sMK}:{sMK+1}], vcc")
    a("ds_write_b32 v38, v37")
    a("s_mov_b64 exec, -1")
    a("v_mul_u32_u24 v39, 1600, v0")
    a("v_add_u32 v39, v39, v35")
    a(f"v_add_u32 v39, s{sJ0}, v39")
    a("v_lshlrev_b32 v39, 5, v39")
    a(f"s_mov_b32 s{sT0}, {WS_REC}")
    for j in range(RMAX):
        a(f"v_cmp_lt_u32 vcc, {j}, v36")
        a("s_and_b64 exec, exec, vcc")
        a("s_cbranch_execz K2_REC_ISSUED")
        a(f"buffer_load_dwordx4 {q(REC+8*j)}, v39, s[{SRD_WS}:{SRD_WS+3}], s{sT0} offen offset:{32*j}")
        a(f"buffer_load_dwordx4 {q(REC+8*j+4)}, v39, s[{SRD_WS}:{SRD_WS+3}], s{sT0} offen offset:{32*j+16}")
    a.label("K2_REC_ISSUED")
    a("s_mov_b64 exec, -1")
    a(f"s_mov_b32 s{sT0}, {L_CNT}")
    a("s_waitcnt vmcnt(0)")
    for j in range(RMAX):
        a(f"v_cmp_lt_u32 vcc, {j}, v36")
        a("s_and_b64 exec, exec, vcc")
        a("s_cbranch_execz K2_AFTER_REC")
        a(f"v_lshl_add_u32 v{AD+j}, v{REC+8*j+1}, 2, s{sT0}")
        a(f"ds_add_rtn_u32 v{RK+j}, v{AD+j}, v37 ; NOWAIT")
    a.label("K2_AFTER_REC")
    a("s_mov_b64 exec, -1")
    a("s_waitcnt lgkmcnt(0)")
    a("s_barrier")
    SC = 176
    a(f"v_lshlrev_b32 v{SC}, 3, v{vLANE}")
    a(f"v_add_u32 v{SC}, {L_CNT}, v{SC}")
    a(f"v_mov_b32 v{SC+1}, {L_FLAG}")
    a(f"ds_read_b64 v[{SC+2}:{SC+3}], v{SC}")
    a(f"ds_read_b32 v{SC+1}, v{SC+1}")
    a(f"v_add_u32 v{SC+4}, v{SC+2}, v{SC+3}")
    a(f"v_mov_b32 v{SC+5}, v{SC+4}")
    wave_scan(a, SC + 5)
    a(f"v_sub_u32 v{SC+6}, v{SC+5}, v{SC+4}")
    a(f"v_add_u32 v{SC+7}, v{SC+6}, v{SC+2}")
    a(f"v_readlane_b32 s{sTOT}, v{SC+5}, 63")
    a(f"v_readfirstlane_b32 s{sMORE}, v{SC+1}")
    a(f"ds_write_b64 v{SC}, v[{SC+6}:{SC+7}] offset:{L_P-L_CNT}")
    a(f"v_lshl_or_b32 v{vP}, v{SC+7}, 16, v{SC+6}")
    a(f"s_cmp_le_u32 s{sTOT}, {CAP}")
    a("s_cbranch_scc1 K2_FITS")
    a(f"s_mov_b32 s{sR}, 3")
    a("s_barrier")
    a("s_branch K2_ROUND")
    a.label("K2_FITS")
    for i in range(1, 5):
        a(f"ds_read_b64 v[{SC+6+2*i}:{SC+7+2*i}], v{SC} offset:{L_P-L_CNT+8*i}")
    a(f"s_cmp_ge_u32 s{sWAVE}, 4")
    a("s_cbranch_scc1 K2_SCATTERED")
    for j in range(RMAX):
        a(f"v_cmp_lt_u32 vcc, {j}, v36")
        a("s_and_b64 exec, exec, vcc")
        a("s_cbranch_execz K2_PREAD")
        a(f"ds_read_b32 v{AD+j}, v{AD+j} offset:{L_P-L_CNT} ; NOWAIT")
    a.label("K2_PREAD")
    a("s_mov_b64 exec, -1")
    a("s_waitcnt lgkmcnt(0)")
    for j in range(RMAX):
        a(f"v_cmp_lt_u32 vcc, {j}, v36")
        a("s_and_b64 exec, exec, vcc")
        a("s_cbranch_execz K2_SCATTERED")
        a(f"v_add_lshl_u32 v{AD+j}, v{AD+j}, v{RK+j}, 5")
        a(f"v_add_u32 v{AD+j}, {L_REC}, v{AD+j}")
        a(f"ds_write_b128 v{AD+j}, {q(REC+8*j)} ; NOWAIT")
        a(f"ds_write_b128 v{AD+j}, {q(REC+8*j+4)} offset:16 ; NOWAIT")
    a.label("K2_SCATTERED")
    a("s_mov_b64 exec, -1")
    PV = SC + 6
    for h in range(2):
        lim, cnt = SC + 20 + 2 * h, SC + 21 + 2 * h
        a(f"v_add_u32 v{lim}, 16, v{PV+h}")
        a(f"v_mov_b32 v{cnt}, 0")
        for k in range(1, 9):
            a(f"v_cmp_le_u32_e64 s[{sMK+2*k}:{sMK+2*k+1}], v{PV+h+k}, v{lim}")
        for k in range(1, 9):
            a(f"v_addc_co_u32_e64 v{cnt}, vcc, 0, v{cnt}, s[{sMK+2*k}:{sMK+2*k+1}]")
        a(f"v_max_u32 v{cnt}, 1, v{cnt}")
        a(f"v_lshl_add_u32 v{cnt}, v{vLANE}, 1, v{cnt}")
        if h:
            a(f"v_add_u32 v{cnt}, 1, v{cnt}")
        a(f"v_min_u32 v{cnt}, s{sNB}, v{cnt}")
    a(f"v_lshl_or_b32 v{vNEXT}, v{SC+23}, 8, v{SC+21}")
    a(f"s_mov_b32 s{sPOS}, 0")
    a(f"s_mov_b32 s{cN0}, s{sWAVE}")
    a.label("K2_WALK0")
    a(f"s_cmp_eq_u32 s{cN0}, 0")
    a("s_cbranch_scc1 K2_WALK0_DONE")
    advance(a)
    a(f"s_sub_u32 s{cN0}, s{cN0}, 1")
    a("s_branch K2_WALK0")
    a.label("K2_WALK0_DONE")
    build_next_job(a)
    next_ne(a)
    a(f"v_mov_b32 v{vOA0}, v{vOOB}")
    a(f"v_mov_b32 v{vOA1}, v{vOOB}")
    a(f"s_mov_b32 s{cOFF}, 0")
    a(f"s_waitcnt vmcnt({npref}) lgkmcnt(0)")
    a("s_barrier")
    mk = MaskAlloc()
    emit_next_addr(a, mk, [PH0, PH0 + 1, PH0 + 2, PH0 + 3, WF0, WF0 + 1])
    emit_s_loads(a)
    for c in range(4):
        emit_comp_mem(a, c)
    a.label("K2_LOOP")
    for cs, ns in ((cN0, nN0), (cNN, nNN), (cEB, nEB), (cNE, nNE), (cE1, nE1), (cOFF, nOFF), (sCE32, sNE32)):
        a(f"s_mov_b32 s{cs}, s{ns}")
    a(f"v_mov_b32 v{vOA0}, v{vON0}")
    a(f"v_mov_b32 v{vOA1}, v{vON1}")
    a(f"s_cmp_eq_u32 s{cNN}, 0")
    a("s_cbranch_scc1 K2_DONE")
    a(f"s_add_u32 s{nEB}, s{cEB}, 16")
    a(f"s_cmp_lt_u32 s{nEB}, s{cE1}")
    a("s_cbranch_scc0 K2_NEWJOB")
    a(f"s_mov_b32 s{SRD_OWN}, s6")
    a(f"s_mov_b32 s{SRD_OWN+1}, s7")
    a("s_branch K2_GOTNEXT")
    a.label("K2_NEWJOB")
    for _ in range(7):
        advance(a)
    build_next_job(a)
    a.label("K2_GOTNEXT")
    next_ne(a)
    a(f"s_cmp_eq_u32 s{cNE}, 0")
    a("s_cbranch_scc1 K2_COPY")
    blk = item_block().ins
    if do_sched:
        blk, t = schedule(blk)
        print("item block: %d instructions, modelled %d cycles" % (len(blk), t))
    a.extend(blk)
    a("s_branch K2_LOOP")
    a.label("K2_COPY")
    mk = MaskAlloc()
    a("s_waitcnt vmcnt(28)")
    emit_next_addr(a, mk, [PH0, PH0 + 1, PH0 + 2, PH0 + 3, WF0, WF0 + 1])
    emit_s_loads(a)
    for c in range(4):
        comp_wait(a, c)
        emit_comp_mem(a, c)
    a("s_branch K2_LOOP")
    a.label("K2_DONE")
    a(f"s_cmp_eq_u32 s{sMORE}, 0")
    a("s_cbranch_scc1 K2_END")
    a(f"s_add_u32 s{sJ0}, s{sJ0}, s{sR}")
    a(f"s_mov_b32 s{sROUND}, 1")
    a("s_waitcnt vmcnt(0)")
    a("v_lshlrev_b32 v33, 10, v0")
    a("v_cmp_gt_u32 vcc, 250, v0")
    a(f"v_cndmask_b32 v33, v{vOOB}, v33, vcc")
    a(f"s_lshl_b32 s{sT0}, s2, 2")
    a(f"s_add_u32 s{sT0}, s{sT0}, {WS_DESC}")
    a(f"buffer_load_dword v34, v33, s[{SRD_WS}:{SRD_WS+3}], s{sT0} offen")
    a("s_waitcnt vmcnt(0)")
    a("s_barrier")
    a("s_branch K2_ROUND")
    a.label("K2_END")
    a("s_endpgm")
    return a
```

```python
import sys
from asmlib import finalize, render
from gen_k1 import gen_k1, K1_LDS
from gen_k2 import gen_k2, K2_LDS

HEADER = open("standalone__molecular_angular_painn__graph.s.ref").read().split("; Override launch")[0]

def kd(name, vgpr, sgpr):
    return f""".amdhsa_kernel {name}
  .amdhsa_next_free_vgpr {vgpr}
  .amdhsa_next_free_sgpr {sgpr}
  .amdhsa_accum_offset {(vgpr+3)//4*4}
  .amdhsa_group_segment_fixed_size 0
  .amdhsa_kernarg_size 88
  .amdhsa_user_sgpr_count 2
  .amdhsa_user_sgpr_kernarg_segment_ptr 1
  .amdhsa_system_sgpr_workgroup_id_x 1
  .amdhsa_float_denorm_mode_32 3
.end_amdhsa_kernel
"""

def build(path, **kw):
    k1 = render(finalize(gen_k1().ins))
    k2 = render(finalize(gen_k2(**kw).ins))
    out = HEADER
    out += "; Two launches: edge_bin_kernel (per-edge geometry, cutoff test, binning by destination, weight re-layout)\n"
    out += "; then message_kernel (per-edge MLP on MFMA, messages, segment sum on MFMA, residual add).\n"
    out += f"; @launch kernel=edge_bin_kernel grid=(256,1,1) block=(1024,1,1) lds={K1_LDS}\n"
    out += f"; @launch kernel=message_kernel grid=(256,1,1) block=(512,1,1) lds={K2_LDS}\n"
    out += '.amdgcn_target "amdgcn-amd-amdhsa--gfx950"\n.text\n'
    for name, body in (("edge_bin_kernel", k1), ("message_kernel", k2)):
        out += f".globl {name}\n.p2align 8\n.type {name},@function\n" + body
    out += '.section .rodata,"a"\n.p2align 6\n' + kd("edge_bin_kernel", 64, 80) + ".p2align 6\n" + kd("message_kernel", 256, 100)
    open(path, "w").write(out)

if __name__ == "__main__":
    build(sys.argv[1] if len(sys.argv) > 1 else "standalone__molecular_angular_painn__graph.s")
```

```python
import sys
from asmlib import finalize, render
from gen_k1 import gen_k1, K1_LDS
from gen_k2 import gen_k2, K2_LDS

HEADER = open("standalone__molecular_angular_painn__graph.s.ref").read().split("; Override launch")[0]

def kd(name, vgpr, sgpr):
    return f""".amdhsa_kernel {name}
  .amdhsa_next_free_vgpr {vgpr}
  .amdhsa_next_free_sgpr {sgpr}
  .amdhsa_accum_offset {(vgpr+3)//4*4}
  .amdhsa_group_segment_fixed_size 0
  .amdhsa_kernarg_size 88
  .amdhsa_user_sgpr_count 2
  .amdhsa_user_sgpr_kernarg_segment_ptr 1
  .amdhsa_system_sgpr_workgroup_id_x 1
  .amdhsa_float_denorm_mode_32 3
.end_amdhsa_kernel
"""

def build(path, **kw):
    st = kw.get("stamps", False)
    k1 = render(finalize(gen_k1(stamps=st).ins))
    k2 = render(finalize(gen_k2(**kw).ins))
    out = HEADER
    out += "; Two launches: edge_bin_kernel (per-edge geometry, cutoff test, binning by destination, weight re-layout)\n"
    out += "; then message_kernel (per-edge MLP on MFMA, messages, segment sum on MFMA, residual add).\n"
    out += f"; @launch kernel=edge_bin_kernel grid=(256,1,1) block=(1024,1,1) lds={K1_LDS + (1024 if st else 0)}\n"
    out += f"; @launch kernel=message_kernel grid=(256,1,1) block=(512,1,1) lds={K2_LDS}\n"
    out += '.amdgcn_target "amdgcn-amd-amdhsa--gfx950"\n.text\n'
    for name, body in (("edge_bin_kernel", k1), ("message_kernel", k2)):
        out += f".globl {name}\n.p2align 8\n.type {name},@function\n" + body
    out += '.section .rodata,"a"\n.p2align 6\n' + kd("edge_bin_kernel", 64, 80) + ".p2align 6\n" + kd("message_kernel", 256, 100)
    open(path, "w").write(out)

if __name__ == "__main__":
    kw = {}
    for x in sys.argv[2:]:
        k, v = x.split("=")
        kw[k] = eval(v)
    build(sys.argv[1] if len(sys.argv) > 1 else "standalone__molecular_angular_painn__graph.s", **kw)
```

```python
from asmlib import Asm, schedule

N = 25000
E = 400000
G = 125
EPG = 3200
BIN_MAGIC = 43980480

WS_W2 = 0
WS_WR = 98304
WS_WEND = 101376
WS_DESC = 0x40000
WS_REC = 0x100000
WS_H = 0xE00000
WS_STAMP1 = 0x1500000
WS_STAMP2 = 0x1600000
WS_SIZE = 0x2000000

K1_CNT = 150528
K1_P = K1_CNT + 1024
K1_LDS = K1_P + 1024
K1_STAMP = K1_LDS


def srd(a, d, base, size):
    a(f"s_mov_b32 s{d}, s{base}")
    a(f"s_mov_b32 s{d+1}, s{base+1}")
    a(f"s_mov_b32 s{d+2}, {size}")
    a(f"s_mov_b32 s{d+3}, 0x00020000")


def wave_scan(a, v):
    for sh in (1, 2, 4, 8):
        a(f"v_add_u32_dpp v{v}, v{v}, v{v} row_shr:{sh} row_mask:0xf bank_mask:0xf bound_ctrl:0")
    a(f"v_add_u32_dpp v{v}, v{v}, v{v} row_bcast:15 row_mask:0xa bank_mask:0xf")
    a(f"v_add_u32_dpp v{v}, v{v}, v{v} row_bcast:31 row_mask:0xc bank_mask:0xf")


def q(b):
    return f"v[{b}:{b+3}]"


def gen_k1(stamps=False, pf=2, early_s=False, rot=True):
    a = Asm()

    def touch():
        if not pf:
            return
        a("s_mul_i32 s92, s2, 102400")
        if pf == 1:
            a("v_lshlrev_b32 v122, 7, v0")
            a("v_cmp_gt_u32 vcc, 800, v0")
            a("v_mov_b32 v123, 0x40000000")
            a("v_cndmask_b32 v122, v123, v122, vcc")
            a("buffer_load_dword v120, v122, s[84:87], s92 offen")
        else:
            a("v_lshlrev_b32 v122, 6, v0")
            a("buffer_load_dword v120, v122, s[84:87], s92 offen")
            a("v_add_u32 v122, 0x10000, v122")
            a("v_cmp_gt_u32 vcc, 576, v0")
            a("v_mov_b32 v123, 0x40000000")
            a("v_cndmask_b32 v122, v123, v122, vcc")
            a("buffer_load_dword v121, v122, s[84:87], s92 offen")

    def stamp():
        if not stamps:
            return
        a("s_mov_b64 s[76:77], exec")
        a("s_mov_b64 exec, -1")
        a("s_memtime s[74:75]")
        a("s_waitcnt lgkmcnt(0)")
        a("v_mov_b32 v124, s74")
        a("v_mov_b32 v125, s78")
        a("ds_write_b32 v125, v124")
        a("s_add_u32 s78, s78, 4")
        a("s_mov_b64 exec, s[76:77]")

    a.label("edge_bin_kernel")
    a("s_cmp_ge_u32 s2, 256")
    a("s_cbranch_scc1 K1_END")
    if stamps:
        a("v_lshrrev_b32 v124, 6, v0")
        a("v_readfirstlane_b32 s78, v124")
        a("s_lshl_b32 s78, s78, 6")
        a(f"s_add_u32 s78, s78, {K1_STAMP}")
        a("s_mov_b32 s79, s78")
        a("v_and_b32 v124, 15, v0")
        a("v_lshlrev_b32 v124, 2, v124")
        a("v_add_u32 v124, s78, v124")
        a("v_mov_b32 v125, 0")
        a("ds_write_b32 v124, v125")
        stamp()
    a("s_load_dwordx4 s[4:7], s[0:1], 8")
    a("s_load_dwordx4 s[8:11], s[0:1], 24")
    a("s_load_dwordx4 s[12:15], s[0:1], 40")
    a("s_load_dwordx2 s[16:17], s[0:1], 56")
    a("s_load_dwordx2 s[18:19], s[0:1], 80")
    a("s_load_dwordx2 s[80:81], s[0:1], 0")
    a("v_lshrrev_b32 v1, 6, v0")
    a("v_and_b32 v6, 63, v0")
    a("v_readfirstlane_b32 s3, v1")
    a("s_mov_b32 s52, 0xffff0000")
    a("s_lshr_b32 s53, s2, 4")
    a("s_lshl_b32 s53, s53, 3")
    a("s_and_b32 s54, s2, 7")
    a("s_or_b32 s73, s53, s54")
    a("v_lshlrev_b32 v9, 4, v6")
    a("s_waitcnt lgkmcnt(0)")
    srd(a, 20, 4, N * 6)
    srd(a, 24, 6, E * 4)
    srd(a, 28, 8, E * 4)
    srd(a, 32, 18, WS_SIZE)
    srd(a, 36, 12, 128 * 128 * 2)
    srd(a, 40, 14, 128 * 384 * 2)
    srd(a, 44, 16, 4 * 384 * 2)
    srd(a, 84, 80, N * 1024)
    a(f"s_add_u32 s88, s18, {WS_H}")
    a("s_addc_u32 s89, s19, 0")
    a(f"s_mov_b32 s90, {N*256}")
    a("s_mov_b32 s91, 0x00020000")
    a("s_bitcmp1_b32 s2, 3")
    a("s_cbranch_scc1 K1_HROLE")
    a(f"s_cmp_ge_u32 s73, {G}")
    a("s_cbranch_scc1 K1_WEIGHTS")
    stamp()
    a(f"s_mul_i32 s53, s73, {EPG*4}")
    a("v_lshlrev_b32 v7, 4, v0")
    a("v_cmp_gt_u32 vcc, 800, v0")
    a("v_mov_b32 v8, 0x40000000")
    a("s_mov_b64 s[50:51], vcc")
    a("v_cndmask_b32 v7, v8, v7, vcc")
    a("buffer_load_dwordx4 v[56:59], v7, s[24:27], s53 offen")
    a("buffer_load_dwordx4 v[60:63], v7, s[28:31], s53 offen")
    a("s_lshr_b32 s54, s73, 3")
    a("s_mul_i32 s54, s54, 5")
    a("s_lshr_b32 s54, s54, 3")
    if not rot:
        a("s_mov_b32 s54, 0")
    a("s_lshl_b32 s54, s54, 4")
    a("s_add_u32 s54, s54, s3")
    a("s_lshl_b32 m0, s54, 10")
    for k in range(10):
        a(f"s_cmp_ge_u32 m0, {147*1024}")
        a(f"s_cbranch_scc1 K1_SKIP{k}")
        a("buffer_load_dwordx4 v9, s[20:23], m0 offen lds")
        a.label(f"K1_SKIP{k}")
        if k < 9:
            a("s_add_u32 m0, m0, 0x4000")
            a(f"s_sub_u32 s54, m0, {160*1024}")
            a(f"s_cmp_ge_u32 m0, {160*1024}")
            a("s_cselect_b32 m0, s54, m0")
    a("s_load_dwordx2 s[48:49], s[10:11], 0")
    a("v_lshlrev_b32 v10, 2, v0")
    a(f"v_add_u32 v10, {K1_CNT}, v10")
    a("v_mov_b32 v11, 0")
    a("v_cmp_gt_u32 vcc, 256, v0")
    a("s_and_saveexec_b64 s[56:57], vcc")
    a("ds_write_b32 v10, v11")
    a("s_mov_b64 exec, s[56:57]")
    a(f"s_mov_b32 s55, {BIN_MAGIC}")
    a(f"s_mov_b32 s58, {K1_CNT}")
    a("s_movk_i32 s59, 0x200")
    a("v_mov_b32 v5, 1")
    for e in range(4):
        a(f"s_mov_b64 s[{60+2*e}:{61+2*e}], 0")
    SRC, DST = 56, 60
    AD = 64
    SH = 72
    CA = 80
    RK = 84
    PP = 88
    EN = 104
    a("s_waitcnt vmcnt(9)")
    for i in range(8):
        r = SRC + i
        a(f"v_mul_u32_u24 v{AD+i}, 6, v{r}")
        a(f"v_and_b32 v{AD+i}, -4, v{AD+i}")
        a(f"v_and_b32 v{SH+i}, 1, v{r}")
        a(f"v_lshlrev_b32 v{SH+i}, 4, v{SH+i}")
    for e in range(4):
        a(f"v_mul_hi_u32 v{CA+e}, v{DST+e}, s55")
        a(f"v_lshl_add_u32 v{CA+e}, v{CA+e}, 2, s58")
        a(f"v_mov_b32 v{EN+4*e}, v{SRC+e}")
        a(f"v_mov_b32 v{EN+4*e+1}, v{DST+e}")
    stamp()
    a("s_waitcnt vmcnt(0) lgkmcnt(0)")
    stamp()
    a("s_barrier")
    stamp()
    a("s_mov_b64 exec, s[50:51]")
    a("s_cbranch_execz K1_PHASE_B")
    for e in range(4):
        for i in (e, 4 + e):
            a(f"ds_read2_b32 v[{PP+2*i}:{PP+2*i+1}], v{AD+i} offset0:0 offset1:1")
    for e in range(4):
        s, d = PP + 2 * e, PP + 8 + 2 * e
        t = 12 + 8 * e
        a(f"v_lshrrev_b64 v[{s}:{s+1}], v{SH+e}, v[{s}:{s+1}]")
        a(f"v_lshrrev_b64 v[{d}:{d+1}], v{SH+4+e}, v[{d}:{d+1}]")
        a(f"v_lshlrev_b32 v{t}, 16, v{s}")
        a(f"v_lshlrev_b32 v{t+1}, 16, v{d}")
        a(f"v_and_b32 v{t+2}, s52, v{s}")
        a(f"v_and_b32 v{t+3}, s52, v{d}")
        a(f"v_lshlrev_b32 v{t+4}, 16, v{s+1}")
        a(f"v_lshlrev_b32 v{t+5}, 16, v{d+1}")
        a(f"v_sub_f32 v{t}, v{t}, v{t+1}")
        a(f"v_sub_f32 v{t+2}, v{t+2}, v{t+3}")
        a(f"v_sub_f32 v{EN+4*e+3}, v{t+4}, v{t+5}")
        a(f"v_cvt_pk_bf16_f32 v{EN+4*e+2}, v{t}, v{t+2}")
        a(f"v_mul_f32 v{t+1}, v{t}, v{t}")
        a(f"v_fmac_f32 v{t+1}, v{t+2}, v{t+2}")
        a(f"v_fmac_f32 v{t+1}, v{EN+4*e+3}, v{EN+4*e+3}")
        a(f"v_cmp_nlt_f32 vcc, 0x41ca0000, v{t+1}")
        a(f"v_cmp_class_f32_e64 s[{60+2*e}:{61+2*e}], v{t+1}, s59")
        a(f"s_or_b64 s[{60+2*e}:{61+2*e}], s[{60+2*e}:{61+2*e}], vcc")
        a(f"s_mov_b64 exec, s[{60+2*e}:{61+2*e}]")
        a(f"ds_add_rtn_u32 v{RK+e}, v{CA+e}, v5")
        a("s_mov_b64 exec, s[50:51]")
    a.label("K1_PHASE_B")
    a("s_mov_b64 exec, -1")
    stamp()
    a("s_barrier")
    stamp()
    a(f"v_add_u32 v10, {K1_CNT}, v9")
    a("ds_read_b128 v[12:15], v10")
    a("v_add_u32 v17, v12, v13")
    a("v_add_u32 v18, v17, v14")
    a("v_add_u32 v19, v18, v15")
    a("v_mov_b32 v20, v19")
    wave_scan(a, 20)
    a("v_sub_u32 v24, v20, v19")
    a("v_add_u32 v25, v24, v12")
    a("v_add_u32 v26, v24, v17")
    a("v_add_u32 v27, v24, v18")
    a("ds_write_b128 v10, v[24:27] offset:1024")
    a("v_readlane_b32 s68, v20, 63")
    a("s_cmp_lg_u32 s3, 15")
    a("s_cbranch_scc1 K1_NODESC")
    for i in range(4):
        a(f"v_lshl_or_b32 v{28+i}, v{12+i}, 16, v{24+i}")
    a("s_lshl_b32 s69, s73, 10")
    a(f"s_add_u32 s69, s69, {WS_DESC}")
    a("buffer_store_dwordx4 v[28:31], v9, s[32:35], s69 offen")
    a.label("K1_NODESC")
    for e in range(4):
        a(f"s_mov_b64 exec, s[{60+2*e}:{61+2*e}]")
        a(f"ds_read_b32 v{12+e}, v{CA+e} offset:1024")
    for e in range(4):
        a(f"s_mov_b64 exec, s[{60+2*e}:{61+2*e}]")
        a(f"v_add_lshl_u32 v{12+e}, v{12+e}, v{RK+e}, 4")
        a(f"ds_write_b128 v{12+e}, {q(EN+4*e)}")
    a("s_mov_b64 exec, -1")
    a("s_lshl_b32 s60, s48, 16")
    a("s_and_b32 s61, s48, s52")
    a("s_lshl_b32 s62, s49, 16")
    a("s_and_b32 s63, s49, s52")
    a(f"s_mul_i32 s69, s73, {EPG*32}")
    a(f"s_add_u32 s69, s69, {WS_REC}")
    a("s_movk_i32 s70, 3125")
    a("s_mov_b32 s71, 0x40a00000")
    stamp()
    a("s_barrier")
    stamp()
    a("v_mov_b32 v8, v0")
    a("s_lshl_b32 s72, s3, 6")
    a.label("K1_DENSE")
    a("s_cmp_ge_u32 s72, s68")
    a("s_cbranch_scc1 K1_FIN")
    a("v_cmp_gt_u32 vcc, s68, v8")
    a("s_and_b64 exec, exec, vcc")
    b = Asm()
    b("v_lshlrev_b32 v10, 4, v8")
    b("ds_read_b128 v[12:15], v10")
    b("v_cvt_pk_bf16_f32 v15, v15, v15")
    b("v_and_b32 v15, s52, v15")
    b("v_lshlrev_b32 v16, 16, v14")
    b("v_and_b32 v17, s52, v14")
    b("v_mul_f32 v18, v16, v16")
    b("v_mul_f32 v19, v17, v17")
    b("v_mul_f32 v20, v15, v15")
    b("v_cvt_pk_bf16_f32 v18, v18, v19")
    b("v_cvt_pk_bf16_f32 v20, v20, v20")
    b("v_and_b32 v19, s52, v18")
    b("v_lshlrev_b32 v18, 16, v18")
    b("v_and_b32 v20, s52, v20")
    b("v_add_f32 v18, v18, v19")
    b("v_add_f32 v18, v18, v20")
    b("v_cvt_pk_bf16_f32 v18, v18, v18")
    b("v_and_b32 v18, s52, v18")
    b("v_add_f32 v18, 0x322bcc77, v18")
    b("v_cvt_pk_bf16_f32 v18, v18, v18")
    b("v_and_b32 v18, s52, v18")
    b("v_sqrt_f32 v18, v18")
    b("v_mul_hi_u32 v21, v13, s55")
    b("v_mul_u32_u24 v21, s70, v21")
    b("v_add_u32 v21, 31, v21")
    b("v_lshrrev_b32 v21, 5, v21")
    b("v_lshlrev_b32 v44, 10, v12")
    b("v_sub_u32 v45, v13, v21")
    b("v_cvt_pk_bf16_f32 v18, v18, v18")
    b("v_and_b32 v18, s52, v18")
    b("v_rcp_f32 v19, v18")
    for k in range(4):
        b(f"v_mul_f32 v{22+k}, s{60+k}, v18")
    b("v_mul_f32 v26, 0x40490fdb, v18")
    b("v_cvt_pk_bf16_f32 v22, v22, v23")
    b("v_cvt_pk_bf16_f32 v24, v24, v25")
    b("v_cvt_pk_bf16_f32 v26, v26, v26")
    b("v_and_b32 v23, s52, v22")
    b("v_lshlrev_b32 v22, 16, v22")
    b("v_and_b32 v25, s52, v24")
    b("v_lshlrev_b32 v24, 16, v24")
    b("v_and_b32 v26, s52, v26")
    b("v_mul_f32 v26, 0x3e4ccccd, v26")
    b("v_cvt_pk_bf16_f32 v26, v26, v26")
    b("v_and_b32 v26, s52, v26")
    for k in range(5):
        b(f"v_mul_f32 v{22+k}, 0.15915494, v{22+k}")
    for k in range(5):
        b(f"v_rndne_f32 v{28+k}, v{22+k}")
    for k in range(5):
        b(f"v_sub_f32 v{22+k}, v{22+k}, v{28+k}")
    for k in range(4):
        b(f"v_sin_f32 v{22+k}, v{22+k}")
    b("v_cos_f32 v26, v26")
    b("v_mul_f32 v16, v16, v19")
    b("v_mul_f32 v17, v17, v19")
    b("v_mul_f32 v15, v15, v19")
    b("v_cvt_pk_bf16_f32 v46, v16, v17")
    b("v_cvt_pk_bf16_f32 v47, v15, 0")
    b("v_cvt_pk_bf16_f32 v22, v22, v23")
    b("v_cvt_pk_bf16_f32 v24, v24, v25")
    b("v_cvt_pk_bf16_f32 v26, v26, v26")
    b("v_and_b32 v23, s52, v22")
    b("v_lshlrev_b32 v22, 16, v22")
    b("v_and_b32 v25, s52, v24")
    b("v_lshlrev_b32 v24, 16, v24")
    b("v_and_b32 v26, s52, v26")
    for k in range(4):
        b(f"v_mul_f32 v{22+k}, v{22+k}, v19")
    b("v_add_f32 v26, 1.0, v26")
    b("v_cvt_pk_bf16_f32 v22, v22, v23")
    b("v_cvt_pk_bf16_f32 v24, v24, v25")
    b("v_cvt_pk_bf16_f32 v26, v26, v26")
    b("v_and_b32 v23, s52, v22")
    b("v_lshlrev_b32 v22, 16, v22")
    b("v_and_b32 v25, s52, v24")
    b("v_lshlrev_b32 v24, 16, v24")
    b("v_and_b32 v26, s52, v26")
    b("v_mul_f32 v26, 0.5, v26")
    b("v_mul_f32 v27, 0, v18")
    b("v_cmp_gt_f32 vcc, s71, v18")
    b("v_cndmask_b32 v26, v27, v26, vcc")
    for k in range(4):
        b(f"v_mul_f32 v{22+k}, v{22+k}, v26")
    b("v_cvt_pk_bf16_f32 v48, v22, v23")
    b("v_cvt_pk_bf16_f32 v49, v24, v25")
    b("v_lshlrev_b32 v28, 16, v48")
    b("v_and_b32 v29, s52, v48")
    b("v_lshlrev_b32 v30, 16, v49")
    b("v_and_b32 v31, s52, v49")
    for k in range(4):
        b(f"v_sub_f32 v{22+k}, v{22+k}, v{28+k}")
    b("v_cvt_pk_bf16_f32 v50, v22, v23")
    b("v_cvt_pk_bf16_f32 v51, v24, v25")
    b("v_lshlrev_b32 v11, 5, v8")
    b("buffer_store_dwordx4 v[44:47], v11, s[32:35], s69 offen")
    b("buffer_store_dwordx4 v[48:51], v11, s[32:35], s69 offen offset:16")
    a.extend(schedule(b.ins)[0])
    a("v_add_u32 v8, 0x400, v8")
    a("s_add_u32 s72, s72, 0x400")
    a("s_branch K1_DENSE")
    a.label("K1_WEIGHTS")
    a(f"s_cmp_lg_u32 s73, {G}")
    a("s_cbranch_scc1 K1_END")
    a("s_mov_b32 s64, 0x05040100")
    a("s_mov_b32 s65, 0x07060302")
    a("v_and_b32 v7, 15, v0")
    a("v_bfe_u32 v8, v0, 4, 2")
    a("s_cmp_ge_u32 s3, 12")
    a("s_cbranch_scc1 K1_WRBF")
    a("v_mul_u32_u24 v10, 6144, v8")
    a("v_lshl_add_u32 v10, v7, 4, v10")
    a("v_add_u32 v11, 3072, v10")
    a("s_and_b32 s55, s3, 3")
    a("s_lshr_b32 s57, s3, 2")
    a("s_mul_i32 s59, s55, 24576")
    a("s_lshl_b32 s60, s57, 8")
    a("s_add_u32 s59, s59, s60")
    for j in range(8):
        a(f"buffer_load_dwordx4 {q(12+4*j)}, v{10 + j//4}, s[40:43], s59 offen offset:{768*(j%4)}")
    a("s_lshl_b32 s62, s57, 15")
    a("s_lshl_b32 s60, s55, 10")
    a("s_add_u32 s62, s62, s60")
    a("s_waitcnt vmcnt(0)")
    for T in range(8):
        o = 48 + 4 * T
        for jj in range(4):
            a(f"v_perm_b32 v{o+jj}, v{12+4*(2*jj+1)+T//2}, v{12+4*(2*jj)+T//2}, s{64+T%2}")
        a(f"buffer_store_dwordx4 {q(o)}, v9, s[32:35], s62 offen")
        a("s_add_u32 s62, s62, 0x1000")
    a("s_branch K1_END")
    a.label("K1_WRBF")
    a("s_cmp_lg_u32 s3, 12")
    a("s_cbranch_scc1 K1_END")
    for j in range(4):
        a(f"buffer_load_dwordx4 {q(12+4*j)}, v9, s[44:47], 0 offen offset:{768*j}")
    a("v_lshlrev_b32 v10, 10, v8")
    a("v_lshl_add_u32 v10, v7, 3, v10")
    a(f"s_mov_b32 s62, {WS_WR}")
    a("s_mov_b32 exec_hi, 0xffff")
    a("s_waitcnt vmcnt(0)")
    for T in range(8):
        o = 48 + 2 * T
        a(f"v_perm_b32 v{o}, v{16+T//2}, v{12+T//2}, s{64+T%2}")
        a(f"v_perm_b32 v{o+1}, v{24+T//2}, v{20+T//2}, s{64+T%2}")
        a(f"buffer_store_dwordx2 v[{o}:{o+1}], v10, s[32:35], s62 offen offset:{128*T}")
    a("s_branch K1_END")
    a.label("K1_HROLE")
    stamp()
    a("v_and_b32 v7, 15, v0")
    a("v_bfe_u32 v8, v0, 4, 2")
    a("s_cmp_ge_u32 s3, 7")
    a("s_cselect_b32 s56, 0, 8")
    a("s_cselect_b32 s57, 7, 0")
    a("s_sub_u32 s56, s2, s56")
    a("s_sub_u32 s57, s3, s57")
    a("s_mul_i32 s56, s56, 3125")
    a("s_add_u32 s56, s56, 31")
    a("s_lshr_b32 s56, s56, 5")
    a("s_lshl_b32 s57, s57, 4")
    a("s_add_u32 s57, s57, s56")
    a("s_lshl_b32 s58, s57, 10")
    a("v_lshlrev_b32 v11, 10, v7")
    a("v_lshl_add_u32 v11, v8, 4, v11")
    SA = 40
    a("s_cmp_ge_u32 s3, 4")
    a("s_cbranch_scc1 K1_NOW1")
    a("s_mov_b32 s64, 0x05040100")
    a("s_mov_b32 s65, 0x07060302")
    a("v_lshlrev_b32 v10, 11, v8")
    a("v_lshl_add_u32 v10, v7, 4, v10")
    a("s_lshl_b32 s59, s3, 13")
    WR_ = 56
    for j in range(8):
        a(f"buffer_load_dwordx4 {q(WR_+4*j)}, v10, s[36:39], s59 offen offset:{256*j}")
    if early_s:
        for t in range(4):
            a(f"buffer_load_dwordx4 {q(SA+4*t)}, v11, s[84:87], s58 offen offset:{64*t}")
    a("s_lshl_b32 s59, s3, 10")
    a("v_add_u32 v28, s59, v9")
    a(f"s_waitcnt vmcnt({4 if early_s else 0})")
    for T in range(8):
        o = 88 + 4 * T
        for jj in range(4):
            a(f"v_perm_b32 v{o+jj}, v{WR_+4*(2*jj+1)+T//2}, v{WR_+4*(2*jj)+T//2}, s{64+T%2}")
        a(f"ds_write_b128 v28, {q(o)} offset:{4096*T}")
    a("s_branch K1_W1DONE")
    a.label("K1_NOW1")
    if early_s:
        a("s_cmp_ge_u32 s3, 14")
        a("s_cbranch_scc1 K1_W1DONE")
        for t in range(4):
            a(f"buffer_load_dwordx4 {q(SA+4*t)}, v11, s[84:87], s58 offen offset:{64*t}")
    a.label("K1_W1DONE")
    stamp()
    a("s_barrier")
    stamp()
    a("s_cmp_ge_u32 s3, 14")
    a("s_cbranch_scc1 K1_FIN")
    if not early_s:
        for t in range(4):
            a(f"buffer_load_dwordx4 {q(SA+4*t)}, v11, s[84:87], s58 offen offset:{64*t}")
    if pf:
        a("v_lshrrev_b32 v122, 2, v6")
        a("v_and_b32 v123, 3, v6")
        a("v_lshlrev_b32 v122, 10, v122")
        a("v_lshl_add_u32 v122, v123, 7, v122")
        a("buffer_load_dword v120, v122, s[84:87], s58 offen offset:256")
        a("v_lshrrev_b32 v122, 1, v6")
        a("v_and_b32 v123, 1, v6")
        a("v_lshlrev_b32 v122, 10, v122")
        a("v_lshl_add_u32 v122, v123, 7, v122")
        a("s_mov_b32 exec_hi, 0")
        a("buffer_load_dword v121, v122, s[84:87], s58 offen offset:768")
        a("s_mov_b64 exec, -1")
    b = Asm()
    RING = [56 + 4 * i for i in range(4)]
    D0 = 72
    TM = 12
    OUT = 104
    kf = [0]

    def pfw():
        if kf[0] < 32:
            b(f"ds_read_b128 {q(RING[kf[0] % 4])}, v9 offset:{1024*kf[0]}")
            kf[0] += 1
    for _ in range(4):
        pfw()
    b(f"s_waitcnt vmcnt({pf})", guards=[f"v{SA+i}" for i in range(16)])
    k = 0
    for T in range(8):
        D = D0 + 4 * T
        for t in range(4):
            c = "0" if t == 0 else q(D)
            b(f"v_mfma_f32_16x16x32_bf16 {q(D)}, {q(SA+4*t)}, {q(RING[k % 4])}, {c}")
            k += 1
            pfw()
        for r in range(4):
            t = TM + (4 * T + r) % 16
            b(f"v_mul_f32 v{t}, 0xbfb8aa3b, v{D+r}")
            b(f"v_exp_f32 v{t}, v{t}")
            b(f"v_add_f32 v{t}, 1.0, v{t}")
            b(f"v_rcp_f32 v{t}, v{t}")
            b(f"v_mul_f32 v{D+r}, v{D+r}, v{t}")
        if T % 2 == 1:
            for r in range(4):
                b(f"v_cvt_pk_bf16_f32 v{OUT+4*r+T//2}, v{D-4+r}, v{D+r}")
    b("v_lshlrev_b32 v30, 10, v8")
    b("v_lshl_add_u32 v30, v7, 4, v30")
    b("s_lshl_b32 s58, s57, 8")
    for r in range(4):
        b(f"buffer_store_dwordx4 {q(OUT+4*r)}, v30, s[88:91], s58 offen offset:{256*r}")
    sch, tt = schedule(b.ins)
    print("K1 H tile: %d instructions, modelled %d cycles" % (len(sch), tt))
    a.extend(sch)
    a.label("K1_FIN")
    if stamps:
        stamp()
        a("s_waitcnt vmcnt(0)")
        stamp()
        a("s_mov_b64 exec, 0xffff")
        a("v_lshlrev_b32 v124, 2, v6")
        a("v_add_u32 v125, s79, v124")
        a("ds_read_b32 v126, v125")
        a("s_lshl_b32 s74, s2, 4")
        a("s_add_u32 s74, s74, s3")
        a("s_lshl_b32 s74, s74, 6")
        a(f"s_add_u32 s74, s74, {WS_STAMP1}")
        a("buffer_store_dword v126, v124, s[32:35], s74 offen")
    a.label("K1_END")
    a("s_endpgm")
    return a
```

```python
from asmlib import Asm, Ins, schedule
from gen2_k1 import N, G, EPG, WS_W2, WS_WR, WS_WEND, WS_DESC, WS_REC, WS_H, WS_SIZE, WS_STAMP2, srd, wave_scan

L_W2 = 0
L_WR = 98304
L_CNT = 102400
L_P = L_CNT + 512
L_FLAG = L_P + 576
L_REC = L_FLAG + 64
CAP = 1536
RSLOW = 6
L_STAMP = L_REC + (CAP + 16) * 32
K2_LDS = L_STAMP + 1024
RMAX = 8

sWAVE = 3
SRD_SV, SRD_OUT, SRD_WS, SRD_OWN, SRD_H = 12, 16, 20, 24, 96
sM, sBASE, sNB, sJ0, sR, sTOT, sROUND, sMORE = 28, 29, 30, 31, 32, 33, 34, 35
cN0, cNN, cEB, cNE, cE1, cOFF = 36, 37, 38, 39, 40, 41
nN0, nNN, nEB, nNE, nE1, nOFF = 42, 43, 44, 45, 46, 47
sT0, sT1, sT2, sPOS = 48, 49, 50, 51
sLO, sONE2, sSELL, sSELH = 52, 53, 54, 55
sQLT2 = 56
sCE32, sNE32 = 58, 59
sMK = 60
NMK = 16
nSRC = 92
sST = 94

vLANE, vWB0, vWB1, vWR, vE, vQ4, vQ16, vN16, vRECE, vRECQ, vRB, vTA, vTB, vOWN0, v2Q, vNEXT, vP, vOOB = range(1, 19)
vOA0, vOA1 = 19, 20
vVA = 22
vHA = 26
vRBOP = 28
vID = 30
H0 = 32
V0 = 48
OWN0 = 96
SOP = 128
MS0 = 144
MVR0 = 160
MVV0 = 176
WRING = 208
NRING = 6
PH0 = 232
WF0 = 240
WRF0 = 248


def q(base):
    return f"v[{base}:{base+3}]"


def d(base):
    return f"v[{base}:{base+1}]"


def Vq(x, r):
    return V0 + 16 * x + 4 * r


def Oq(c, h):
    return OWN0 + 8 * c + 4 * h


def advance(a):
    a(f"s_lshr_b32 s{sT0}, s{sPOS}, 1")
    a(f"v_readlane_b32 s{sT1}, v{vNEXT}, s{sT0}")
    a(f"s_and_b32 s{sT2}, s{sPOS}, 1")
    a(f"s_lshl_b32 s{sT2}, s{sT2}, 3")
    a(f"s_lshr_b32 s{sT1}, s{sT1}, s{sT2}")
    a(f"s_and_b32 s{sPOS}, s{sT1}, 0xff")


def lookup_p(a, dst):
    a(f"s_lshr_b32 s{sT0}, s{sPOS}, 1")
    a(f"v_readlane_b32 s{sT1}, v{vP}, s{sT0}")
    a(f"s_and_b32 s{sT2}, s{sPOS}, 1")
    a(f"s_lshl_b32 s{sT2}, s{sT2}, 4")
    a(f"s_lshr_b32 s{sT1}, s{sT1}, s{sT2}")
    a(f"s_and_b32 s{dst}, s{sT1}, 0xffff")


def build_next_job(a):
    a(f"s_mov_b32 s{nN0}, s{sPOS}")
    lookup_p(a, nEB)
    advance(a)
    lookup_p(a, nE1)
    a(f"s_sub_u32 s{nNN}, s{sPOS}, s{nN0}")
    a(f"s_add_u32 s{nOFF}, s{nN0}, s{sBASE}")
    a(f"s_lshl_b32 s{nOFF}, s{nOFF}, 10")
    a(f"s_cmp_eq_u32 s{sROUND}, 0")
    a(f"s_cselect_b32 s{nSRC}, s4, s6")
    a(f"s_cselect_b32 s{nSRC+1}, s5, s7")


def next_ne(a):
    a(f"s_sub_u32 s{nNE}, s{nE1}, s{nEB}")
    a(f"s_min_u32 s{nNE}, s{nNE}, 16")
    a(f"s_lshl_b32 s{sNE32}, s{nEB}, 5")


class MaskAlloc:
    def __init__(self):
        self.k = 0

    def __call__(self):
        r = sMK + 2 * (self.k % NMK)
        self.k += 1
        return f"s[{r}:{r+1}]"


def emit_h_addr(a, mk, t):
    a(f"v_add_u32 v{t}, s{sNE32}, v{vRECE}")
    a(f"ds_read_b32 v{vHA}, v{t}")
    m = mk()
    a(f"v_cmp_gt_u32_e64 {m}, s{nNE}, v{vE}")
    a(f"v_lshrrev_b32 v{vHA}, 2, v{vHA}")
    a(f"v_add_u32 v{vHA}, v{vHA}, v{vQ16}")
    a(f"v_cndmask_b32_e64 v{vHA}, v{vOOB}, v{vHA}, {m}")


def emit_h_loads(a):
    for t in range(4):
        a(f"buffer_load_dwordx4 {q(H0+4*t)}, v{vHA}, s[{SRD_H}:{SRD_H+3}], 0 offen offset:{64*t}")


def emit_own_addr(a, mk, t):
    m = mk()
    a(f"v_cmp_gt_u32_e64 {m}, s{cNN}, v{v2Q}")
    a(f"v_cndmask_b32_e64 v{vOA0}, v{vOOB}, v{vOWN0}, {m}")
    m = mk()
    a(f"v_add_u32 v{t[0]}, 1, v{v2Q}")
    a(f"v_add_u32 v{t[1]}, 0x400, v{vOWN0}")
    a(f"v_cmp_gt_u32_e64 {m}, s{cNN}, v{t[0]}")
    a(f"v_cndmask_b32_e64 v{vOA1}, v{vOOB}, v{t[1]}, {m}")


def emit_comp_loads(a, c, with_v=True):
    if c > 0 and with_v:
        for r in range(4):
            a(f"buffer_load_dwordx4 {q(Vq(c-1,r))}, v{vVA+r}, s[{SRD_SV}:{SRD_SV+3}], 0 offen offset:{256*c}")
    for h, va in ((0, vOA0), (1, vOA1)):
        a(f"buffer_load_dwordx4 {q(Oq(c,h))}, v{va}, s[{SRD_OWN}:{SRD_OWN+3}], s{cOFF} offen offset:{256*c}")


def emit_comp_stores(a, c):
    for h, va in ((0, vOA0), (1, vOA1)):
        a(f"buffer_store_dwordx4 {q(Oq(c,h))}, v{va}, s[{SRD_OUT}:{SRD_OUT+3}], s{cOFF} offen offset:{256*c}{NT}")


NT = ""


def comp_wait(a, c):
    regs = [f"v{Oq(c,h)+i}" for h in range(2) for i in range(4)]
    if c > 0:
        regs += [f"v{Vq(c-1,r)+i}" for r in range(4) for i in range(4)]
    a(f"s_waitcnt vmcnt({(22, 18, 14, 10)[c]})", guards=regs)


def wfrag(a, k, ring):
    off = k * 1024
    base = vWB0 if off < 65536 else vWB1
    a(f"ds_read_b128 {q(ring)}, v{base} offset:{off % 65536}")


def item_block(memonly=False):
    a = Asm()
    mk = MaskAlloc()
    T = list(range(MVV0, MVV0 + 32))
    MK = [MS0 + i for i in range(4)]
    PR = [MS0 + 4 + i for i in range(6)]
    a(f"v_add_u32 v{T[16]}, s{sCE32}, v{vRB}")
    a(f"v_add_u32 v{T[17]}, s{sCE32}, v{vRECQ}")
    for r in range(4):
        a(f"ds_read_b128 {q(T[4*r])}, v{T[17]} offset:{32*r}")
    a(f"ds_read_b64 {d(vRBOP)}, v{T[16]}")
    ring = [WRING + 4 * i for i in range(NRING)]
    kf = [0]

    def prefetch():
        if kf[0] < 96:
            wfrag(a, kf[0], ring[kf[0] % NRING])
            kf[0] += 1

    if not memonly:
        for _ in range(NRING):
            prefetch()
    emit_own_addr(a, mk, [T[30], T[31]])
    for r in range(4):
        m = mk()
        a(f"v_add_u32 v{T[18+r]}, {r}, v{vQ4}")
        a(f"v_cmp_gt_u32_e64 {m}, s{cNE}, v{T[18+r]}")
        a(f"v_add_u32 v{vVA+r}, v{T[4*r]}, v{vN16}")
        a(f"v_cndmask_b32_e64 v{vVA+r}, v{vOOB}, v{vVA+r}, {m}")
        a(f"v_subrev_u32 v{T[4*r+1]}, s{cN0}, v{T[4*r+1]}")
        a(f"v_cndmask_b32_e64 v{T[4*r+1]}, -2, v{T[4*r+1]}, {m}")
    a("s_waitcnt vmcnt(8)", guards=[f"v{H0+i}" for i in range(16)])
    for c in range(4):
        emit_comp_loads(a, c)
    if memonly:
        emit_h_addr(a, mk, T[16])
        emit_h_loads(a)
        for c in range(4):
            comp_wait(a, c)
            emit_comp_stores(a, c)
        return a
    m = mk()
    a(f"v_cmp_gt_u32_e64 {m}, s{cNE}, v{vE}")
    a(f"s_and_b64 {m}, {m}, s[{sQLT2}:{sQLT2+1}]")
    a(f"v_cndmask_b32_e64 v{vRBOP}, 0, v{vRBOP}, {m}")
    a(f"v_cndmask_b32_e64 v{vRBOP+1}, 0, v{vRBOP+1}, {m}")
    for side, tgt in ((0, vTA), (1, vTB)):
        for pr in range(2):
            ts = []
            for r in (2 * pr, 2 * pr + 1):
                m = mk()
                t = T[22 + 4 * side + r]
                a(f"v_cmp_eq_u32_e64 {m}, v{T[4*r+1]}, v{tgt}")
                a(f"v_cndmask_b32_e64 v{t}, 0, -1, {m}")
                ts.append(t)
            a(f"v_bfi_b32 v{MK[2*side+pr]}, s{sLO}, v{ts[0]}, v{ts[1]}")
    for pr in range(2):
        r0, r1 = 2 * pr, 2 * pr + 1
        a(f"v_perm_b32 v{PR[0+pr]}, v{T[4*r1+2]}, v{T[4*r0+2]}, s{sSELL}")
        a(f"v_perm_b32 v{PR[2+pr]}, v{T[4*r1+2]}, v{T[4*r0+2]}, s{sSELH}")
        a(f"v_perm_b32 v{PR[4+pr]}, v{T[4*r1+3]}, v{T[4*r0+3]}, s{sSELL}")
    AS = SOP
    for i in range(4):
        a(f"v_and_b32 v{AS+i}, s{sONE2}, v{MK[i]}")
    for x in range(3):
        for i in range(4):
            a(f"v_and_b32 v{AS+4+4*x+i}, v{MK[i]}, v{PR[2*x+(i%2)]}")
    emit_h_addr(a, mk, 27)
    k = 0
    order = ORDER
    for ci, c in enumerate(order):
        Gi, Ti = c // 8, c % 8
        PH = PH0 + 4 * (ci % 2)
        WF = WF0 + 4 * (ci % 2)
        WRF = WRF0 + 2 * (ci % 2)
        a(f"ds_read_b64 {d(WRF)}, v{vWR} offset:{128*c}")
        for t in range(4):
            cc = "0" if t == 0 else q(PH)
            a(f"v_mfma_f32_16x16x32_bf16 {q(PH)}, {q(H0+4*t)}, {q(ring[k % NRING])}, {cc}")
            k += 1
            prefetch()
        a(f"v_mfma_f32_16x16x16_bf16 {q(WF)}, {d(vRBOP)}, {d(WRF)}, 0")
        if Gi == 1:
            for r in range(4):
                a(f"v_mul_f32 v{MVV0+4*Ti+r}, v{PH+r}, v{WF+r}")
        else:
            for r in range(4):
                a(f"v_mul_f32 v{WF+r}, v{PH+r}, v{WF+r}")
            dst = (MS0 if Gi == 0 else MVR0) + 2 * Ti
            a(f"v_cvt_pk_bf16_f32 v{dst}, v{WF}, v{WF+1}")
            a(f"v_cvt_pk_bf16_f32 v{dst+1}, v{WF+2}, v{WF+3}")
    emit_h_loads(a)
    U = [WRING, WRING + 16]
    BB = [240, 244]
    CD = [248, 252]
    it = 0
    ub = 0
    for c in range(4):
        comp_wait(a, c)
        for pp in range(2):
            if c > 0:
                x = c - 1
                u = U[ub % 2]
                ub += 1
                for r in range(4):
                    a(f"v_mfma_f32_16x16x16_bf16 {q(u+4*r)}, {d(vID)}, {d(Vq(x,r)+2*pp)}, 0")
                for r in range(4):
                    for j in range(4):
                        a(f"v_mul_f32 v{u+4*r+j}, v{u+4*r+j}, v{MVV0+4*(4*pp+j)+r}")
            for p in (2 * pp, 2 * pp + 1):
                C = CD[it % 2]
                o0, o1 = Oq(c, 0) + p, Oq(c, 1) + p
                a(f"v_lshlrev_b32 v{C}, 16, v{o0}")
                a(f"v_lshlrev_b32 v{C+1}, 16, v{o1}")
                a(f"v_and_b32 v{C+2}, s{sM}, v{o0}")
                a(f"v_and_b32 v{C+3}, s{sM}, v{o1}")
                if c == 0:
                    a(f"v_mfma_f32_16x16x32_bf16 {q(C)}, {q(AS)}, {q(MS0+4*p)}, {q(C)}")
                else:
                    B = BB[it % 2]
                    j0 = 2 * (p % 2)
                    a(f"v_cvt_pk_bf16_f32 v{B}, v{u+j0}, v{u+4+j0}")
                    a(f"v_cvt_pk_bf16_f32 v{B+1}, v{u+8+j0}, v{u+12+j0}")
                    a(f"v_cvt_pk_bf16_f32 v{B+2}, v{u+j0+1}, v{u+4+j0+1}")
                    a(f"v_cvt_pk_bf16_f32 v{B+3}, v{u+8+j0+1}, v{u+12+j0+1}")
                    a(f"v_mfma_f32_16x16x32_bf16 {q(C)}, {q(AS+4+4*x)}, {q(MVR0+4*p)}, {q(C)}")
                    a(f"v_mfma_f32_16x16x32_bf16 {q(C)}, {q(AS)}, {q(B)}, {q(C)}")
                a(f"v_cvt_pk_bf16_f32 v{o0}, v{C}, v{C+2}")
                a(f"v_cvt_pk_bf16_f32 v{o1}, v{C+1}, v{C+3}")
                it += 1
        emit_comp_stores(a, c)
    return a


ORDER = list(range(16, 24)) + list(range(0, 8)) + list(range(8, 16))
_wfrag_plain = wfrag


def wfrag(a, k, ring):
    c = ORDER[k // 4]
    _wfrag_plain(a, 4 * c + k % 4, ring)


def gen_k2(do_sched=True, stamps=False, memonly=False, window=8, early=14, ownpf=0, nt=False):
    a = Asm()
    global NT
    NT = " nt" if nt else ""

    def stamp():
        if not stamps:
            return
        a("s_memtime s[10:11]")
        a("s_waitcnt lgkmcnt(0)")
        a("v_mov_b32 v252, s10")
        a(f"v_mov_b32 v253, s{sST}")
        a("ds_write_b32 v253, v252")
        a(f"s_add_u32 s{sST}, s{sST}, 4")

    a.label("message_kernel")
    a("s_cmp_ge_u32 s2, 256")
    a("s_cbranch_scc1 K2_END")
    if stamps:
        a("v_lshrrev_b32 v252, 6, v0")
        a(f"v_readfirstlane_b32 s{sST}, v252")
        a(f"s_lshl_b32 s{sST}, s{sST}, 7")
        a(f"s_add_u32 s{sST}, s{sST}, {L_STAMP}")
        a(f"s_mov_b32 s{sST+1}, s{sST}")
        a("v_and_b32 v252, 31, v0")
        a("v_lshlrev_b32 v252, 2, v252")
        a(f"v_add_u32 v252, s{sST}, v252")
        a("v_mov_b32 v253, 0")
        a("ds_write_b32 v252, v253")
        stamp()
    a("s_load_dwordx2 s[4:5], s[0:1], 0")
    a("s_load_dwordx2 s[6:7], s[0:1], 64")
    a("s_load_dwordx2 s[8:9], s[0:1], 80")
    a("v_lshrrev_b32 v32, 6, v0")
    a(f"v_and_b32 v{vLANE}, 63, v0")
    a(f"v_readfirstlane_b32 s{sWAVE}, v32")
    a(f"v_lshlrev_b32 v{vWB0}, 4, v{vLANE}")
    a(f"v_mov_b32 v{vOOB}, 0x40000000")
    a(f"s_mul_i32 s{sBASE}, s2, 3125")
    a(f"s_add_u32 s{sNB}, s{sBASE}, {3125+31}")
    a(f"s_add_u32 s{sBASE}, s{sBASE}, 31")
    a(f"s_lshr_b32 s{sBASE}, s{sBASE}, 5")
    a(f"s_lshr_b32 s{sNB}, s{sNB}, 5")
    a(f"s_sub_u32 s{sNB}, s{sNB}, s{sBASE}")
    a(f"s_mov_b32 s{sJ0}, 0")
    a(f"s_mov_b32 s{sR}, {RMAX}")
    a(f"s_mov_b32 s{sROUND}, 0")

    def desc_load():
        a("v_lshrrev_b32 v33, 1, v0")
        a("v_lshlrev_b32 v33, 10, v33")
        a(f"v_cmp_gt_u32 vcc, {2*G}, v0")
        a(f"v_cndmask_b32 v33, v{vOOB}, v33, vcc")
        a(f"s_lshl_b32 s{sT0}, s2, 2")
        a(f"s_add_u32 s{sT0}, s{sT0}, {WS_DESC}")
        a(f"buffer_load_dword v34, v33, s[{SRD_WS}:{SRD_WS+3}], s{sT0} offen")

    def zero_counters():
        a("v_lshlrev_b32 v36, 2, v0")
        a(f"v_add_u32 v36, {L_CNT}, v36")
        a("v_mov_b32 v37, 0")
        a(f"v_mov_b32 v38, {L_FLAG}")
        a("v_cmp_gt_u32 vcc, 0x80, v0")
        a(f"s_and_saveexec_b64 s[{sMK}:{sMK+1}], vcc")
        a("ds_write_b32 v36, v37")
        a("ds_write_b32 v38, v37")
        a("s_mov_b64 exec, -1")

    zero_counters()
    a("s_waitcnt lgkmcnt(0)")
    srd(a, SRD_WS, 8, WS_SIZE)
    srd(a, SRD_SV, 4, N * 1024)
    srd(a, SRD_OUT, 6, N * 1024)
    srd(a, SRD_OWN, 4, N * 1024)
    a(f"s_add_u32 s{SRD_H}, s8, {WS_H}")
    a(f"s_addc_u32 s{SRD_H+1}, s9, 0")
    a(f"s_mov_b32 s{SRD_H+2}, {N*256}")
    a(f"s_mov_b32 s{SRD_H+3}, 0x00020000")
    a(f"s_cmp_ge_u32 s{sWAVE}, 4")
    a("s_cbranch_scc1 K2_NODESC")
    desc_load()
    a.label("K2_NODESC")
    a("s_barrier")
    stamp()
    a(f"v_add_u32 v{vWB1}, 0x10000, v{vWB0}")
    a(f"v_and_b32 v{vE}, 15, v{vLANE}")
    a(f"v_lshrrev_b32 v35, 4, v{vLANE}")
    a(f"v_lshlrev_b32 v{vWR}, 3, v{vE}")
    a(f"v_add_u32 v{vWR}, {L_WR}, v{vWR}")
    a(f"v_lshlrev_b32 v{vQ4}, 2, v35")
    a(f"v_lshlrev_b32 v{vQ16}, 4, v35")
    a(f"v_lshlrev_b32 v{vN16}, 4, v{vE}")
    a(f"v_lshlrev_b32 v{vRECE}, 5, v{vE}")
    a(f"v_add_u32 v{vRECE}, {L_REC}, v{vRECE}")
    a(f"v_lshlrev_b32 v{vRECQ}, 7, v35")
    a(f"v_add_u32 v{vRECQ}, {L_REC}, v{vRECQ}")
    a("v_and_b32 v36, 1, v35")
    a(f"v_lshl_add_u32 v{vRB}, v36, 3, v{vRECE}")
    a(f"v_add_u32 v{vRB}, 16, v{vRB}")
    a(f"v_lshlrev_b32 v{v2Q}, 1, v35")
    a(f"v_lshl_add_u32 v{vOWN0}, v35, 11, v{vN16}")
    a(f"v_lshrrev_b32 v36, 2, v{vE}")
    a(f"v_and_b32 v37, 1, v{vE}")
    a("v_lshl_add_u32 v39, v36, 1, v37")
    a(f"v_and_b32 v40, 2, v{vE}")
    a("v_cmp_eq_u32 vcc, 0, v40")
    a(f"v_cndmask_b32 v{vTA}, -1, v39, vcc")
    a(f"v_cndmask_b32_e64 v{vTB}, v39, -1, vcc")
    a("v_lshlrev_b32 v37, 4, v37")
    a("v_mov_b32 v41, 0x3f80")
    a("v_lshlrev_b32 v41, v37, v41")
    a(f"v_cmp_eq_u32_e64 s[{sMK}:{sMK+1}], v36, v35")
    a(f"v_cndmask_b32_e64 v41, 0, v41, s[{sMK}:{sMK+1}]")
    a(f"v_cndmask_b32 v{vID}, 0, v41, vcc")
    a(f"v_cndmask_b32_e64 v{vID+1}, v41, 0, vcc")
    a(f"v_cmp_gt_u32_e64 s[{sQLT2}:{sQLT2+1}], 32, v{vLANE}")
    a(f"s_mov_b32 s{sM}, 0xffff0000")
    a(f"s_mov_b32 s{sLO}, 0xffff")
    a(f"s_mov_b32 s{sONE2}, 0x3f803f80")
    a(f"s_mov_b32 s{sSELL}, 0x05040100")
    a(f"s_mov_b32 s{sSELH}, 0x07060302")
    a(f"s_cmp_lt_u32 s{sWAVE}, 4")
    a("s_cbranch_scc1 K2_ROUND")
    a(f"s_sub_u32 s{sT1}, s{sWAVE}, 4")
    a(f"s_lshr_b32 s{sT0}, s2, 3")
    a(f"s_mul_i32 s{sT0}, s{sT0}, 3")
    a(f"s_mov_b32 s{sT2}, 0x0a3d70a4")
    a(f"s_mul_hi_u32 s{sT2}, s{sT0}, s{sT2}")
    a(f"s_mul_i32 s{sT2}, s{sT2}, 25")
    a(f"s_sub_u32 s{sT0}, s{sT0}, s{sT2}")
    a(f"s_lshl_b32 s{sT0}, s{sT0}, 2")
    a(f"s_add_u32 s{sT0}, s{sT0}, s{sT1}")
    a(f"s_lshl_b32 m0, s{sT0}, 10")
    a(f"s_lshl_b32 s{sT1}, s{sT1}, 10")
    def wdma(i0, i1):
        for i in range(i0, i1):
            a(f"buffer_load_dwordx4 v{vWB0}, s[{SRD_WS}:{SRD_WS+3}], m0 offen lds")
            a("s_add_u32 m0, m0, 0x1000")
            a(f"s_cmp_ge_u32 m0, {100*1024}")
            a(f"s_cselect_b32 m0, s{sT1}, m0")
            if window and window <= i < early:
                a(f"s_waitcnt vmcnt({window})")
    wdma(0, early)
    a("s_barrier")
    wdma(early, 25)
    if ownpf:
        a(f"s_lshl_b32 s{sT0}, s{sBASE}, 10")
        a(f"s_lshl_b32 s{sT1}, s{sT1}, 5")
        a(f"s_add_u32 s{sT0}, s{sT0}, s{sT1}")
        a(f"v_lshlrev_b32 v200, 7, v{vLANE}")
        for i in range(ownpf):
            a(f"buffer_load_dword v204, v200, s[{SRD_SV}:{SRD_SV+3}], s{sT0} offen")
            a(f"s_add_u32 s{sT0}, s{sT0}, 0x2000")
    a("s_branch K2_AFTER_BAR1")
    a.label("K2_ROUND")
    a(f"s_cmp_ge_u32 s{sWAVE}, 4")
    a("s_cbranch_scc1 K2_AFTER_REC")
    REC = 64
    RK = 40
    AD = 48
    a("s_waitcnt vmcnt(0)")
    stamp()
    a("v_and_b32 v35, 0xffff, v34")
    a("v_lshrrev_b32 v36, 16, v34")
    a("v_and_b32 v37, 1, v0")
    a("v_sub_u32 v36, v36, v37")
    a("v_add_u32 v36, 1, v36")
    a("v_lshrrev_b32 v36, 1, v36")
    a(f"v_subrev_u32 v36, s{sJ0}, v36")
    a("v_max_i32 v36, 0, v36")
    a(f"v_cmp_lt_u32 vcc, s{sR}, v36")
    a(f"v_min_u32 v36, s{sR}, v36")
    a("v_lshrrev_b32 v39, 1, v0")
    a(f"v_mul_u32_u24 v39, {EPG}, v39")
    a("v_add3_u32 v39, v39, v35, v37")
    a(f"s_lshl_b32 s{sT0}, s{sJ0}, 1")
    a(f"v_add_u32 v39, s{sT0}, v39")
    a("v_lshlrev_b32 v39, 5, v39")
    a("v_mov_b32 v37, 1")
    a(f"v_mov_b32 v38, {L_FLAG}")
    a(f"s_and_saveexec_b64 s[{sMK}:{sMK+1}], vcc")
    a("ds_write_b32 v38, v37")
    a("s_mov_b64 exec, -1")
    a(f"s_mov_b32 s{sT0}, {WS_REC}")
    for j in range(RMAX):
        a(f"v_cmp_lt_u32 vcc, {j}, v36")
        a("s_and_b64 exec, exec, vcc")
        a("s_cbranch_execz K2_REC_ISSUED")
        a(f"buffer_load_dwordx4 {q(REC+8*j)}, v39, s[{SRD_WS}:{SRD_WS+3}], s{sT0} offen offset:{64*j}")
        a(f"buffer_load_dwordx4 {q(REC+8*j+4)}, v39, s[{SRD_WS}:{SRD_WS+3}], s{sT0} offen offset:{64*j+16}")
    a.label("K2_REC_ISSUED")
    a("s_mov_b64 exec, -1")
    a(f"s_mov_b32 s{sT0}, {L_CNT}")
    a("s_waitcnt vmcnt(0)")
    stamp()
    for j in range(RMAX):
        a(f"v_cmp_lt_u32 vcc, {j}, v36")
        a("s_and_b64 exec, exec, vcc")
        a("s_cbranch_execz K2_AFTER_REC")
        a(f"v_lshl_add_u32 v{AD+j}, v{REC+8*j+1}, 2, s{sT0}")
        a(f"ds_add_rtn_u32 v{RK+j}, v{AD+j}, v37 ; NOWAIT")
    a.label("K2_AFTER_REC")
    a("s_mov_b64 exec, -1")
    a("s_waitcnt lgkmcnt(0)")
    a("s_barrier")
    a.label("K2_AFTER_BAR1")
    stamp()
    SC = 176
    a(f"v_lshlrev_b32 v{SC}, 3, v{vLANE}")
    a(f"v_add_u32 v{SC}, {L_CNT}, v{SC}")
    a(f"v_mov_b32 v{SC+1}, {L_FLAG}")
    a(f"ds_read_b64 v[{SC+2}:{SC+3}], v{SC}")
    a(f"ds_read_b32 v{SC+1}, v{SC+1}")
    a(f"v_add_u32 v{SC+4}, v{SC+2}, v{SC+3}")
    a(f"v_mov_b32 v{SC+5}, v{SC+4}")
    wave_scan(a, SC + 5)
    a(f"v_sub_u32 v{SC+6}, v{SC+5}, v{SC+4}")
    a(f"v_add_u32 v{SC+7}, v{SC+6}, v{SC+2}")
    a(f"v_readlane_b32 s{sTOT}, v{SC+5}, 63")
    a(f"v_readfirstlane_b32 s{sMORE}, v{SC+1}")
    a(f"ds_write_b64 v{SC}, v[{SC+6}:{SC+7}] offset:{L_P-L_CNT}")
    a(f"v_lshl_or_b32 v{vP}, v{SC+7}, 16, v{SC+6}")
    a(f"s_cmp_le_u32 s{sTOT}, {CAP}")
    a("s_cbranch_scc1 K2_FITS")
    a(f"s_mov_b32 s{sR}, {RSLOW}")
    a("s_barrier")
    zero_counters()
    a("s_barrier")
    a("s_branch K2_ROUND")
    a.label("K2_FITS")
    for i in range(1, 5):
        a(f"ds_read_b64 v[{SC+6+2*i}:{SC+7+2*i}], v{SC} offset:{L_P-L_CNT+8*i} ; NOWAIT")
    a(f"s_cmp_ge_u32 s{sWAVE}, 4")
    a("s_cbranch_scc1 K2_SCATTERED")
    for j in range(RMAX):
        a(f"v_cmp_lt_u32 vcc, {j}, v36")
        a("s_and_b64 exec, exec, vcc")
        a("s_cbranch_execz K2_PREAD")
        a(f"ds_read_b32 v{AD+j}, v{AD+j} offset:{L_P-L_CNT} ; NOWAIT")
    a.label("K2_PREAD")
    a("s_mov_b64 exec, -1")
    a("s_waitcnt lgkmcnt(0)")
    for j in range(RMAX):
        a(f"v_cmp_lt_u32 vcc, {j}, v36")
        a("s_and_b64 exec, exec, vcc")
        a("s_cbranch_execz K2_SCATTERED")
        a(f"v_add_lshl_u32 v{AD+j}, v{AD+j}, v{RK+j}, 5")
        a(f"v_add_u32 v{AD+j}, {L_REC}, v{AD+j}")
        a(f"ds_write_b128 v{AD+j}, {q(REC+8*j)} ; NOWAIT")
        a(f"ds_write_b128 v{AD+j}, {q(REC+8*j+4)} offset:16 ; NOWAIT")
    a.label("K2_SCATTERED")
    a("s_mov_b64 exec, -1")
    a("s_waitcnt lgkmcnt(0)")
    PV = SC + 6
    for h in range(2):
        lim, cnt = SC + 20 + 2 * h, SC + 21 + 2 * h
        a(f"v_add_u32 v{lim}, 16, v{PV+h}")
        a(f"v_mov_b32 v{cnt}, 0")
        for k in range(1, 9):
            a(f"v_cmp_le_u32_e64 s[{sMK+2*k}:{sMK+2*k+1}], v{PV+h+k}, v{lim}")
        for k in range(1, 9):
            a(f"v_addc_co_u32_e64 v{cnt}, vcc, 0, v{cnt}, s[{sMK+2*k}:{sMK+2*k+1}]")
        a(f"v_max_u32 v{cnt}, 1, v{cnt}")
        a(f"v_lshl_add_u32 v{cnt}, v{vLANE}, 1, v{cnt}")
        if h:
            a(f"v_add_u32 v{cnt}, 1, v{cnt}")
        a(f"v_min_u32 v{cnt}, s{sNB}, v{cnt}")
    a(f"v_lshl_or_b32 v{vNEXT}, v{SC+23}, 8, v{SC+21}")
    a(f"s_mov_b32 s{sPOS}, 0")
    a(f"s_mov_b32 s{cN0}, s{sWAVE}")
    a.label("K2_WALK0")
    a(f"s_cmp_eq_u32 s{cN0}, 0")
    a("s_cbranch_scc1 K2_WALK0_DONE")
    advance(a)
    a(f"s_sub_u32 s{cN0}, s{cN0}, 1")
    a("s_branch K2_WALK0")
    a.label("K2_WALK0_DONE")
    build_next_job(a)
    next_ne(a)
    a(f"v_mov_b32 v{vOA0}, v{vOOB}")
    a(f"v_mov_b32 v{vOA1}, v{vOOB}")
    a(f"s_mov_b32 s{cOFF}, 0")
    stamp()
    a(f"s_waitcnt vmcnt({ownpf}) lgkmcnt(0)")
    a("s_barrier")
    stamp()
    mk = MaskAlloc()
    emit_h_addr(a, mk, 27)
    emit_h_loads(a)
    for c in range(4):
        emit_comp_stores(a, c)
    a.label("K2_LOOP")
    stamp()
    for cs, ns in ((cN0, nN0), (cNN, nNN), (cEB, nEB), (cNE, nNE), (cE1, nE1), (cOFF, nOFF), (sCE32, sNE32),
                   (SRD_OWN, nSRC), (SRD_OWN + 1, nSRC + 1)):
        a(f"s_mov_b32 s{cs}, s{ns}")
    a(f"s_cmp_eq_u32 s{cNN}, 0")
    a("s_cbranch_scc1 K2_DONE")
    a(f"s_add_u32 s{nEB}, s{cEB}, 16")
    a(f"s_cmp_lt_u32 s{nEB}, s{cE1}")
    a("s_cbranch_scc0 K2_NEWJOB")
    a(f"s_mov_b32 s{nSRC}, s6")
    a(f"s_mov_b32 s{nSRC+1}, s7")
    a("s_branch K2_GOTNEXT")
    a.label("K2_NEWJOB")
    for _ in range(7):
        advance(a)
    build_next_job(a)
    a.label("K2_GOTNEXT")
    next_ne(a)
    a(f"s_cmp_eq_u32 s{cNE}, 0")
    a("s_cbranch_scc1 K2_COPY")
    if stamps:
        stamp()
        a("s_waitcnt vmcnt(8)")
        stamp()
    if not memonly:
        blk = item_block().ins
        if do_sched:
            blk, t = schedule(blk)
            print("item block: %d instructions, modelled %d cycles" % (len(blk), t))
        a.extend(blk)
        a("s_branch K2_LOOP")
    a.label("K2_COPY")
    a.extend(item_block(memonly=True).ins)
    a("s_branch K2_LOOP")
    a.label("K2_DONE")
    if stamps:
        a("s_waitcnt vmcnt(0)")
        stamp()
        a(f"v_lshlrev_b32 v252, 2, v{vLANE}")
        a(f"v_add_u32 v253, s{sST+1}, v252")
        a("ds_read_b32 v254, v253")
        a("s_lshl_b32 s10, s2, 3")
        a(f"s_add_u32 s10, s10, s{sWAVE}")
        a("s_lshl_b32 s10, s10, 7")
        a(f"s_add_u32 s10, s10, {WS_STAMP2}")
        a(f"s_mov_b64 exec, 0xffffffff")
        a(f"buffer_store_dword v254, v252, s[{SRD_WS}:{SRD_WS+3}], s10 offen")
        a("s_mov_b64 exec, -1")
    a(f"s_cmp_eq_u32 s{sMORE}, 0")
    a("s_cbranch_scc1 K2_END")
    a(f"s_add_u32 s{sJ0}, s{sJ0}, s{sR}")
    a(f"s_mov_b32 s{sROUND}, 1")
    a("s_waitcnt vmcnt(0)")
    desc_load()
    a("s_waitcnt vmcnt(0)")
    a("s_barrier")
    zero_counters()
    a("s_barrier")
    a("s_branch K2_ROUND")
    a.label("K2_END")
    a("s_endpgm")
    return a
```

```python
from asmlib import Asm

N = 25000
E = 400000
G = 250
EPG = 1600
NBIN = 256
BIN_MAGIC = 43980480

WS_W1 = 0
WS_W2 = 32768
WS_WR = 131072
WS_WEND = 134144
WS_DESC = 0x40000
WS_REC = 0x100000
WS_SIZE = 0x1000000

K1_POS = 0
K1_CNT = 151552
K1_P = K1_CNT + 1024
K1_LDS = K1_P + 1024


def srd(a, d, base, size):
    a(f"s_mov_b32 s{d}, s{base}")
    a(f"s_mov_b32 s{d+1}, s{base+1}")
    a(f"s_mov_b32 s{d+2}, {size}")
    a(f"s_mov_b32 s{d+3}, 0x00020000")


def wave_scan(a, v):
    for sh in (1, 2, 4, 8):
        a(f"v_add_u32_dpp v{v}, v{v}, v{v} row_shr:{sh} row_mask:0xf bank_mask:0xf bound_ctrl:0")
    a(f"v_add_u32_dpp v{v}, v{v}, v{v} row_bcast:15 row_mask:0xa bank_mask:0xf")
    a(f"v_add_u32_dpp v{v}, v{v}, v{v} row_bcast:31 row_mask:0xc bank_mask:0xf")


K1_STAMP = K1_LDS
WS_STAMP1 = 0xF00000


def gen_k1(stamps=False):
    a = Asm()

    def stamp():
        if not stamps:
            return
        a("s_mov_b64 s[76:77], exec")
        a("s_mov_b64 exec, -1")
        a("s_memtime s[74:75]")
        a("s_waitcnt lgkmcnt(0)")
        a("v_mov_b32 v60, s74")
        a("v_mov_b32 v61, s78")
        a("ds_write_b32 v61, v60")
        a("s_add_u32 s78, s78, 4")
        a("s_mov_b64 exec, s[76:77]")

    a.label("edge_bin_kernel")
    a("s_cmp_ge_u32 s2, 256")
    a("s_cbranch_scc1 K1_END")
    if stamps:
        a("v_lshrrev_b32 v60, 6, v0")
        a("v_readfirstlane_b32 s78, v60")
        a("s_lshl_b32 s78, s78, 6")
        a(f"s_add_u32 s78, s78, {K1_STAMP}")
        a("s_mov_b32 s79, s78")
        a("v_and_b32 v60, 15, v0")
        a("v_lshlrev_b32 v60, 2, v60")
        a("v_add_u32 v60, s78, v60")
        a("v_mov_b32 v61, 0")
        a("ds_write_b32 v60, v61")
        stamp()
    a("s_load_dwordx4 s[4:7], s[0:1], 8")
    a("s_load_dwordx4 s[8:11], s[0:1], 24")
    a("s_load_dwordx4 s[12:15], s[0:1], 40")
    a("s_load_dwordx2 s[16:17], s[0:1], 56")
    a("s_load_dwordx2 s[18:19], s[0:1], 80")
    a("v_lshrrev_b32 v1, 6, v0")
    a("v_and_b32 v6, 63, v0")
    a("v_readfirstlane_b32 s3, v1")
    a("s_mov_b32 s52, 0xffff0000")
    a("s_waitcnt lgkmcnt(0)")
    srd(a, 20, 4, N * 6)
    srd(a, 24, 6, E * 4)
    srd(a, 28, 8, E * 4)
    srd(a, 32, 18, WS_SIZE)
    srd(a, 36, 12, 128 * 128 * 2)
    srd(a, 40, 14, 128 * 384 * 2)
    srd(a, 44, 16, 4 * 384 * 2)
    a("s_cmp_ge_u32 s2, 250")
    a("s_cbranch_scc1 K1_WEIGHTS")
    stamp()
    a("s_mul_i32 s53, s2, 6400")
    a("v_lshlrev_b32 v7, 3, v0")
    a("v_cmp_gt_u32 vcc, 800, v0")
    a("v_mov_b32 v8, 0x40000000")
    a("s_mov_b64 s[50:51], vcc")
    a("v_cndmask_b32 v7, v8, v7, vcc")
    a("buffer_load_dwordx2 v[2:3], v7, s[24:27], s53 offen")
    a("buffer_load_dwordx2 v[4:5], v7, s[28:31], s53 offen")
    a("v_lshlrev_b32 v9, 4, v6")
    a("s_lshl_b32 s54, s3, 12")
    for k in range(3):
        if k == 2:
            a("s_cmp_ge_u32 s3, 5")
            a("s_cbranch_scc1 K1_STAGED")
        a("s_mov_b32 m0, s54")
        for j in range(4):
            a(f"buffer_load_dwordx4 v9, s[20:23], s54 offen offset:{1024*j} lds")
        a("s_add_u32 s54, s54, 0x10000")
    a.label("K1_STAGED")
    a("s_load_dwordx2 s[48:49], s[10:11], 0")
    a("v_lshlrev_b32 v10, 2, v0")
    a(f"v_add_u32 v10, {K1_CNT}, v10")
    a("v_mov_b32 v11, 0")
    a("v_cmp_gt_u32 vcc, 256, v0")
    a("s_and_saveexec_b64 s[56:57], vcc")
    a("ds_write_b32 v10, v11")
    a("s_mov_b64 exec, s[56:57]")
    a(f"s_mov_b32 s55, {BIN_MAGIC}")
    a(f"s_mov_b32 s58, {K1_CNT}")
    a("s_movk_i32 s59, 0x200")
    a("v_mov_b32 v40, 1")
    a("s_mov_b64 s[60:61], 0")
    a("s_mov_b64 s[62:63], 0")
    stamp()
    a("s_waitcnt vmcnt(0) lgkmcnt(0)")
    stamp()
    a("s_barrier")
    stamp()
    a("s_mov_b64 exec, s[50:51]")
    a("s_cbranch_execz K1_PHASE_B")
    for i, r in enumerate((2, 3, 4, 5)):
        a(f"v_mul_u32_u24 v{20+i}, 6, v{r}")
        a(f"v_and_b32 v{20+i}, -4, v{20+i}")
        a(f"ds_read2_b32 v[{12+2*i}:{13+2*i}], v{20+i} offset0:0 offset1:1")
    for i, r in enumerate((2, 3, 4, 5)):
        a(f"v_and_b32 v{24+i}, 1, v{r}")
        a(f"v_lshlrev_b32 v{24+i}, 4, v{24+i}")
    for e in range(2):
        a(f"v_mul_hi_u32 v{36+e}, v{4+e}, s55")
        a(f"v_lshl_add_u32 v{36+e}, v{36+e}, 2, s58")
    for i in range(4):
        a(f"v_lshrrev_b64 v[{12+2*i}:{13+2*i}], v{24+i}, v[{12+2*i}:{13+2*i}]")
    for e in range(2):
        s, d = 12 + 2 * e, 16 + 2 * e
        t = 20 + 8 * e
        a(f"v_lshlrev_b32 v{t}, 16, v{s}")
        a(f"v_lshlrev_b32 v{t+1}, 16, v{d}")
        a(f"v_and_b32 v{t+2}, s52, v{s}")
        a(f"v_and_b32 v{t+3}, s52, v{d}")
        a(f"v_lshlrev_b32 v{t+4}, 16, v{s+1}")
        a(f"v_lshlrev_b32 v{t+5}, 16, v{d+1}")
        a(f"v_sub_f32 v{t}, v{t}, v{t+1}")
        a(f"v_sub_f32 v{t+2}, v{t+2}, v{t+3}")
        a(f"v_sub_f32 v{t+4}, v{t+4}, v{t+5}")
        a(f"v_cvt_pk_bf16_f32 v{46+4*e}, v{t}, v{t+2}")
        a(f"v_mov_b32 v{44+4*e}, v{2+e}")
        a(f"v_mov_b32 v{45+4*e}, v{4+e}")
    a("v_cvt_pk_bf16_f32 v12, v24, v32")
    a("v_lshlrev_b32 v47, 16, v12")
    a("v_and_b32 v51, s52, v12")
    for e in range(2):
        t = 20 + 8 * e
        a(f"v_lshlrev_b32 v{t}, 16, v{46+4*e}")
        a(f"v_and_b32 v{t+1}, s52, v{46+4*e}")
        a(f"v_mul_f32 v{t}, v{t}, v{t}")
        a(f"v_mul_f32 v{t+1}, v{t+1}, v{t+1}")
        a(f"v_mul_f32 v{t+2}, v{47+4*e}, v{47+4*e}")
        a(f"v_cvt_pk_bf16_f32 v{t+3}, v{t}, v{t+1}")
    a("v_cvt_pk_bf16_f32 v12, v22, v30")
    a("v_lshlrev_b32 v22, 16, v12")
    a("v_and_b32 v30, s52, v12")
    for e in range(2):
        t = 20 + 8 * e
        a(f"v_lshlrev_b32 v{t}, 16, v{t+3}")
        a(f"v_and_b32 v{t+1}, s52, v{t+3}")
        a(f"v_add_f32 v{t}, v{t}, v{t+1}")
        a(f"v_add_f32 v{t}, v{t}, v{t+2}")
        a(f"v_cmp_nlt_f32 vcc, 0x41c68000, v{t}")
        a(f"v_cmp_class_f32_e64 s[{60+2*e}:{61+2*e}], v{t}, s59")
        a(f"s_or_b64 s[{60+2*e}:{61+2*e}], s[{60+2*e}:{61+2*e}], vcc")
    for e in range(2):
        a(f"s_mov_b64 exec, s[{60+2*e}:{61+2*e}]")
        a(f"ds_add_rtn_u32 v{38+e}, v{36+e}, v40")
    a.label("K1_PHASE_B")
    a("s_mov_b64 exec, -1")
    stamp()
    a("s_barrier")
    stamp()
    a(f"v_add_u32 v10, {K1_CNT}, v9")
    a("ds_read_b128 v[12:15], v10")
    a("v_add_u32 v17, v12, v13")
    a("v_add_u32 v18, v17, v14")
    a("v_add_u32 v19, v18, v15")
    a("v_mov_b32 v20, v19")
    wave_scan(a, 20)
    a("v_sub_u32 v24, v20, v19")
    a("v_add_u32 v25, v24, v12")
    a("v_add_u32 v26, v24, v17")
    a("v_add_u32 v27, v24, v18")
    a("ds_write_b128 v10, v[24:27] offset:1024")
    a("v_readlane_b32 s64, v20, 63")
    a("s_cmp_lg_u32 s3, 15")
    a("s_cbranch_scc1 K1_NODESC")
    for i in range(4):
        a(f"v_lshl_or_b32 v{28+i}, v{12+i}, 16, v{24+i}")
    a("s_lshl_b32 s65, s2, 10")
    a(f"s_add_u32 s65, s65, {WS_DESC}")
    a("buffer_store_dwordx4 v[28:31], v9, s[32:35], s65 offen")
    a.label("K1_NODESC")
    for e in range(2):
        a(f"s_mov_b64 exec, s[{60+2*e}:{61+2*e}]")
        a(f"ds_read_b32 v{12+e}, v{36+e} offset:1024")
    for e in range(2):
        a(f"s_mov_b64 exec, s[{60+2*e}:{61+2*e}]")
        a(f"v_add_lshl_u32 v{12+e}, v{12+e}, v{38+e}, 4")
        a(f"ds_write_b128 v{12+e}, v[{44+4*e}:{47+4*e}]")
    a("s_mov_b64 exec, -1")
    a("s_lshl_b32 s66, s48, 16")
    a("s_and_b32 s67, s48, s52")
    a("s_lshl_b32 s68, s49, 16")
    a("s_and_b32 s69, s49, s52")
    a("s_mul_i32 s65, s2, 51200")
    a(f"s_add_u32 s65, s65, {WS_REC}")
    a("s_movk_i32 s70, 3125")
    a("s_mov_b32 s71, 0x40a00000")
    stamp()
    a("s_barrier")
    stamp()
    a("v_mov_b32 v8, v0")
    a("s_lshl_b32 s72, s3, 6")
    a.label("K1_DENSE")
    a("s_cmp_ge_u32 s72, s64")
    a("s_cbranch_scc1 K1_EDGE_END")
    a("v_cmp_gt_u32 vcc, s64, v8")
    a("s_and_b64 exec, exec, vcc")
    a("v_lshlrev_b32 v10, 4, v8")
    a("ds_read_b128 v[12:15], v10")
    a("v_lshlrev_b32 v16, 16, v14")
    a("v_and_b32 v17, s52, v14")
    a("v_mul_f32 v18, v16, v16")
    a("v_mul_f32 v19, v17, v17")
    a("v_mul_f32 v20, v15, v15")
    a("v_cvt_pk_bf16_f32 v18, v18, v19")
    a("v_cvt_pk_bf16_f32 v20, v20, v20")
    a("v_and_b32 v19, s52, v18")
    a("v_lshlrev_b32 v18, 16, v18")
    a("v_and_b32 v20, s52, v20")
    a("v_add_f32 v18, v18, v19")
    a("v_add_f32 v18, v18, v20")
    a("v_cvt_pk_bf16_f32 v18, v18, v18")
    a("v_and_b32 v18, s52, v18")
    a("v_add_f32 v18, 0x322bcc77, v18")
    a("v_cvt_pk_bf16_f32 v18, v18, v18")
    a("v_and_b32 v18, s52, v18")
    a("v_sqrt_f32 v18, v18")
    a("v_mul_hi_u32 v21, v13, s55")
    a("v_mul_u32_u24 v21, s70, v21")
    a("v_add_u32 v21, 31, v21")
    a("v_lshrrev_b32 v21, 5, v21")
    a("v_lshlrev_b32 v44, 10, v12")
    a("v_sub_u32 v45, v13, v21")
    a("v_cvt_pk_bf16_f32 v18, v18, v18")
    a("v_and_b32 v18, s52, v18")
    a("v_rcp_f32 v19, v18")
    for k in range(4):
        a(f"v_mul_f32 v{22+k}, s{66+k}, v18")
    a("v_mul_f32 v26, 0x40490fdb, v18")
    a("v_cvt_pk_bf16_f32 v22, v22, v23")
    a("v_cvt_pk_bf16_f32 v24, v24, v25")
    a("v_cvt_pk_bf16_f32 v26, v26, v26")
    a("v_and_b32 v23, s52, v22")
    a("v_lshlrev_b32 v22, 16, v22")
    a("v_and_b32 v25, s52, v24")
    a("v_lshlrev_b32 v24, 16, v24")
    a("v_and_b32 v26, s52, v26")
    a("v_mul_f32 v26, 0x3e4ccccd, v26")
    a("v_cvt_pk_bf16_f32 v26, v26, v26")
    a("v_and_b32 v26, s52, v26")
    for k in range(5):
        a(f"v_mul_f32 v{22+k}, 0.15915494, v{22+k}")
    for k in range(5):
        a(f"v_rndne_f32 v{28+k}, v{22+k}")
    for k in range(5):
        a(f"v_sub_f32 v{22+k}, v{22+k}, v{28+k}")
    for k in range(4):
        a(f"v_sin_f32 v{22+k}, v{22+k}")
    a("v_cos_f32 v26, v26")
    a("v_mul_f32 v16, v16, v19")
    a("v_mul_f32 v17, v17, v19")
    a("v_mul_f32 v15, v15, v19")
    a("v_cvt_pk_bf16_f32 v46, v16, v17")
    a("v_cvt_pk_bf16_f32 v47, v15, 0")
    a("v_cvt_pk_bf16_f32 v22, v22, v23")
    a("v_cvt_pk_bf16_f32 v24, v24, v25")
    a("v_cvt_pk_bf16_f32 v26, v26, v26")
    a("v_and_b32 v23, s52, v22")
    a("v_lshlrev_b32 v22, 16, v22")
    a("v_and_b32 v25, s52, v24")
    a("v_lshlrev_b32 v24, 16, v24")
    a("v_and_b32 v26, s52, v26")
    for k in range(4):
        a(f"v_mul_f32 v{22+k}, v{22+k}, v19")
    a("v_add_f32 v26, 1.0, v26")
    a("v_cvt_pk_bf16_f32 v22, v22, v23")
    a("v_cvt_pk_bf16_f32 v24, v24, v25")
    a("v_cvt_pk_bf16_f32 v26, v26, v26")
    a("v_and_b32 v23, s52, v22")
    a("v_lshlrev_b32 v22, 16, v22")
    a("v_and_b32 v25, s52, v24")
    a("v_lshlrev_b32 v24, 16, v24")
    a("v_and_b32 v26, s52, v26")
    a("v_mul_f32 v26, 0.5, v26")
    a("v_mul_f32 v27, 0, v18")
    a("v_cmp_gt_f32 vcc, s71, v18")
    a("v_cndmask_b32 v26, v27, v26, vcc")
    for k in range(4):
        a(f"v_mul_f32 v{22+k}, v{22+k}, v26")
    a("v_cvt_pk_bf16_f32 v48, v22, v23")
    a("v_cvt_pk_bf16_f32 v49, v24, v25")
    a("v_lshlrev_b32 v28, 16, v48")
    a("v_and_b32 v29, s52, v48")
    a("v_lshlrev_b32 v30, 16, v49")
    a("v_and_b32 v31, s52, v49")
    for k in range(4):
        a(f"v_sub_f32 v{22+k}, v{22+k}, v{28+k}")
    a("v_cvt_pk_bf16_f32 v50, v22, v23")
    a("v_cvt_pk_bf16_f32 v51, v24, v25")
    a("v_lshlrev_b32 v10, 5, v8")
    a("buffer_store_dwordx4 v[44:47], v10, s[32:35], s65 offen")
    a("buffer_store_dwordx4 v[48:51], v10, s[32:35], s65 offen offset:16")
    a("v_add_u32 v8, 0x400, v8")
    a("s_add_u32 s72, s72, 0x400")
    a("s_branch K1_DENSE")
    a.label("K1_EDGE_END")
    if stamps:
        stamp()
        a("s_waitcnt vmcnt(0)")
        stamp()
        a("s_mov_b64 exec, 0xffff")
        a("v_lshlrev_b32 v60, 2, v6")
        a("v_add_u32 v61, s79, v60")
        a("ds_read_b32 v62, v61")
        a("s_lshl_b32 s74, s2, 4")
        a("s_add_u32 s74, s74, s3")
        a("s_lshl_b32 s74, s74, 6")
        a(f"s_add_u32 s74, s74, {WS_STAMP1}")
        a("buffer_store_dword v62, v60, s[32:35], s74 offen")
    a("s_branch K1_END")
    a.label("K1_WEIGHTS")
    a("s_sub_u32 s53, s2, 250")
    a("v_and_b32 v7, 15, v0")
    a("v_bfe_u32 v8, v0, 4, 2")
    a("s_lshl_b32 s54, s53, 4")
    a("s_add_u32 s54, s54, s3")
    a("s_and_b32 s55, s54, 3")
    a("s_lshr_b32 s56, s54, 2")
    a("s_lshr_b32 s57, s56, 3")
    a("s_and_b32 s58, s56, 7")
    a("s_mul_i32 s59, s55, 24576")
    a("s_lshl_b32 s60, s57, 8")
    a("s_add_u32 s59, s59, s60")
    a("s_lshl_b32 s60, s58, 1")
    a("s_add_u32 s59, s59, s60")
    a("s_add_u32 s61, s59, 12288")
    a("v_mul_u32_u24 v10, 3072, v8")
    a("v_lshl_add_u32 v10, v7, 4, v10")
    for j in range(4):
        a(f"buffer_load_ushort v{12+j}, v10, s[40:43], s59 offen offset:{768*j}")
    for j in range(4):
        a(f"buffer_load_ushort v{16+j}, v10, s[40:43], s61 offen offset:{768*j}")
    a("s_lshl_b32 s62, s53, 14")
    a(f"s_add_u32 s62, s62, {WS_W2}")
    a("v_lshlrev_b32 v11, 4, v0")
    a("s_waitcnt vmcnt(0)")
    for j in range(4):
        a(f"v_lshl_or_b32 v{20+j}, v{13+2*j}, 16, v{12+2*j}")
    a("buffer_store_dwordx4 v[20:23], v11, s[32:35], s62 offen")
    a("s_cmp_ge_u32 s53, 2")
    a("s_cbranch_scc1 K1_WRBF")
    a("s_lshl_b32 s59, s55, 13")
    a("s_lshl_b32 s60, s56, 5")
    a("s_add_u32 s59, s59, s60")
    a("v_lshlrev_b32 v10, 11, v8")
    a("v_lshl_add_u32 v10, v7, 1, v10")
    for j in range(8):
        a(f"buffer_load_ushort v{12+j}, v10, s[36:39], s59 offen offset:{256*j}")
    a("s_lshl_b32 s62, s53, 14")
    a("s_waitcnt vmcnt(0)")
    for j in range(4):
        a(f"v_lshl_or_b32 v{24+j}, v{13+2*j}, 16, v{12+2*j}")
    a("buffer_store_dwordx4 v[24:27], v11, s[32:35], s62 offen")
    a("s_branch K1_END")
    a.label("K1_WRBF")
    a("s_cmp_lg_u32 s53, 2")
    a("s_cbranch_scc1 K1_END")
    a("s_cmp_ge_u32 s3, 6")
    a("s_cbranch_scc1 K1_END")
    a("v_lshrrev_b32 v10, 4, v0")
    a("v_lshrrev_b32 v12, 3, v10")
    a("v_and_b32 v13, 7, v10")
    a("v_lshlrev_b32 v12, 8, v12")
    a("v_lshl_add_u32 v12, v13, 1, v12")
    a("v_lshl_add_u32 v12, v7, 4, v12")
    for j in range(4):
        a(f"buffer_load_ushort v{14+j}, v12, s[44:47], 0 offen offset:{768*j}")
    a("v_lshlrev_b32 v11, 3, v0")
    a(f"s_mov_b32 s62, {WS_WR}")
    a("s_waitcnt vmcnt(0)")
    a("v_lshl_or_b32 v24, v15, 16, v14")
    a("v_lshl_or_b32 v25, v17, 16, v16")
    a("buffer_store_dwordx2 v[24:25], v11, s[32:35], s62 offen")
    a.label("K1_END")
    a("s_endpgm")
    return a
```

```python
from asmlib import Asm, Ins, schedule
from gen_k1 import N, WS_W1, WS_W2, WS_WR, WS_WEND, WS_DESC, WS_REC, WS_SIZE, srd, wave_scan

L_W1 = 0
L_W2 = 32768
L_WR = 131072
L_CNT = 134144
L_P = L_CNT + 512
L_FLAG = L_P + 576
L_REC = L_FLAG + 64
CAP = 768
K2_LDS = 163840
RMAX = 12

sWAVE = 3
SRD_SV, SRD_OUT, SRD_WS, SRD_OWN = 12, 16, 20, 24
sM, sBASE, sNB, sJ0, sR, sTOT, sROUND, sMORE = 28, 29, 30, 31, 32, 33, 34, 35
cN0, cNN, cEB, cNE, cE1, cOFF = 36, 37, 38, 39, 40, 41
nN0, nNN, nEB, nNE, nE1, nOFF = 42, 43, 44, 45, 46, 47
sT0, sT1, sT2, sPOS = 48, 49, 50, 51
sLO, sONE2, sSELL, sSELH = 52, 53, 54, 55
sQLT2 = 56
sCE32, sNE32 = 58, 59
sMK = 60

vLANE, vWB0, vWB1, vWR, vE, vQ4, vQ16, vN16, vRECE, vRECQ, vRB, vTA, vTB, vOWN0, v2Q, vNEXT, vP, vOOB = range(1, 19)
vOA0, vOA1, vON0, vON1 = 19, 20, 21, 22
vVA = 23
vSA = 27
vRBOP = 28
S0 = 32
V0 = 48
OWN0 = 96
H0 = 128
MS0 = 144
MVR0 = 160
MVV0 = 176
WRING = 208
NRING = 5
PH0 = 228
WF0 = 236
WRF0 = 244
MKPR = [248, 249, 250, 251, 252, 253, 254, 255, 30, 31]


def q(base):
    return f"v[{base}:{base+3}]"


def Vq(x, r):
    return V0 + 16 * x + 4 * r


def Oq(c, h):
    return OWN0 + 8 * c + 4 * h


def advance(a):
    a(f"s_lshr_b32 s{sT0}, s{sPOS}, 1")
    a(f"v_readlane_b32 s{sT1}, v{vNEXT}, s{sT0}")
    a(f"s_and_b32 s{sT2}, s{sPOS}, 1")
    a(f"s_lshl_b32 s{sT2}, s{sT2}, 3")
    a(f"s_lshr_b32 s{sT1}, s{sT1}, s{sT2}")
    a(f"s_and_b32 s{sPOS}, s{sT1}, 0xff")


def lookup_p(a, dst):
    a(f"s_lshr_b32 s{sT0}, s{sPOS}, 1")
    a(f"v_readlane_b32 s{sT1}, v{vP}, s{sT0}")
    a(f"s_and_b32 s{sT2}, s{sPOS}, 1")
    a(f"s_lshl_b32 s{sT2}, s{sT2}, 4")
    a(f"s_lshr_b32 s{sT1}, s{sT1}, s{sT2}")
    a(f"s_and_b32 s{dst}, s{sT1}, 0xffff")


def build_next_job(a):
    a(f"s_mov_b32 s{nN0}, s{sPOS}")
    lookup_p(a, nEB)
    advance(a)
    lookup_p(a, nE1)
    a(f"s_sub_u32 s{nNN}, s{sPOS}, s{nN0}")
    a(f"s_add_u32 s{nOFF}, s{nN0}, s{sBASE}")
    a(f"s_lshl_b32 s{nOFF}, s{nOFF}, 10")
    a(f"s_cmp_eq_u32 s{sROUND}, 0")
    a(f"s_cselect_b32 s{SRD_OWN}, s4, s6")
    a(f"s_cselect_b32 s{SRD_OWN+1}, s5, s7")


def next_ne(a):
    a(f"s_sub_u32 s{nNE}, s{nE1}, s{nEB}")
    a(f"s_min_u32 s{nNE}, s{nNE}, 16")
    a(f"s_lshl_b32 s{sNE32}, s{nEB}, 5")


class MaskAlloc:
    def __init__(self):
        self.k = 0

    def __call__(self):
        r = sMK + 2 * (self.k % 18)
        self.k += 1
        return f"s[{r}:{r+1}]"


def emit_next_addr(a, mk, t):
    a(f"v_add_u32 v{t[0]}, s{sNE32}, v{vRECE}")
    a(f"v_add_u32 v{t[1]}, s{sNE32}, v{vRECQ}")
    a(f"ds_read_b32 v{vSA}, v{t[0]}")
    for r in range(4):
        a(f"ds_read_b32 v{vVA+r}, v{t[1]} offset:{32*r}")
    m = mk()
    a(f"v_cmp_gt_u32_e64 {m}, s{nNE}, v{vE}")
    a(f"v_add_u32 v{vSA}, v{vSA}, v{vQ16}")
    a(f"v_cndmask_b32_e64 v{vSA}, v{vOOB}, v{vSA}, {m}")
    for r in range(4):
        m = mk()
        a(f"v_add_u32 v{t[2+r]}, {r}, v{vQ4}")
        a(f"v_cmp_gt_u32_e64 {m}, s{nNE}, v{t[2+r]}")
        a(f"v_add_u32 v{vVA+r}, v{vVA+r}, v{vN16}")
        a(f"v_cndmask_b32_e64 v{vVA+r}, v{vOOB}, v{vVA+r}, {m}")
    m = mk()
    a(f"v_cmp_gt_u32_e64 {m}, s{nNN}, v{v2Q}")
    a(f"v_cndmask_b32_e64 v{vON0}, v{vOOB}, v{vOWN0}, {m}")
    m = mk()
    a(f"v_add_u32 v{t[0]}, 1, v{v2Q}")
    a(f"v_add_u32 v{t[1]}, 0x400, v{vOWN0}")
    a(f"v_cmp_gt_u32_e64 {m}, s{nNN}, v{t[0]}")
    a(f"v_cndmask_b32_e64 v{vON1}, v{vOOB}, v{t[1]}, {m}")


def emit_s_loads(a):
    for t in range(4):
        a(f"buffer_load_dwordx4 {q(S0+4*t)}, v{vSA}, s[{SRD_SV}:{SRD_SV+3}], 0 offen offset:{64*t}")


def emit_comp_mem(a, c):
    for h, va in ((0, vOA0), (1, vOA1)):
        a(f"buffer_store_dwordx4 {q(Oq(c,h))}, v{va}, s[{SRD_OUT}:{SRD_OUT+3}], s{cOFF} offen offset:{256*c}")
    if c > 0:
        for r in range(4):
            a(f"buffer_load_dwordx4 {q(Vq(c-1,r))}, v{vVA+r}, s[{SRD_SV}:{SRD_SV+3}], 0 offen offset:{256*c}")
    for h, va in ((0, vON0), (1, vON1)):
        a(f"buffer_load_dwordx4 {q(Oq(c,h))}, v{va}, s[{SRD_OWN}:{SRD_OWN+3}], s{nOFF} offen offset:{256*c}")


def comp_wait(a, c):
    regs = [f"v{Oq(c,h)+i}" for h in range(2) for i in range(4)]
    if c > 0:
        regs += [f"v{Vq(c-1,r)+i}" for r in range(4) for i in range(4)]
    a(f"s_waitcnt vmcnt({28 if c == 0 else 24})", guards=regs)


def wfrag(a, k, ring):
    off = k * 1024
    base = vWB0 if off < 65536 else vWB1
    a(f"ds_read_b128 {q(ring)}, v{base} offset:{off % 65536}")


def item_block():
    a = Asm()
    mk = MaskAlloc()
    MK = MKPR[0:4]
    PR = MKPR[4:10]
    T = list(range(MS0, MS0 + 32))
    a(f"v_add_u32 v{T[16]}, s{sCE32}, v{vRB}")
    a(f"v_add_u32 v{T[17]}, s{sCE32}, v{vRECQ}")
    a(f"ds_read_b64 v[{vRBOP}:{vRBOP+1}], v{T[16]}")
    for r in range(4):
        a(f"ds_read_b128 {q(T[4*r])}, v{T[17]} offset:{32*r}")
    ring = [WRING + 4 * i for i in range(NRING)]
    kf = [0]
    nfr = 128

    def prefetch():
        if kf[0] < nfr:
            wfrag(a, kf[0], ring[kf[0] % NRING])
            kf[0] += 1

    for _ in range(NRING):
        prefetch()
    m = mk()
    a(f"v_cmp_gt_u32_e64 {m}, s{cNE}, v{vE}")
    a(f"s_and_b64 {m}, {m}, s[{sQLT2}:{sQLT2+1}]")
    a(f"v_cndmask_b32_e64 v{vRBOP}, 0, v{vRBOP}, {m}")
    a(f"v_cndmask_b32_e64 v{vRBOP+1}, 0, v{vRBOP+1}, {m}")
    for r in range(4):
        m = mk()
        a(f"v_add_u32 v{T[18+r]}, {r}, v{vQ4}")
        a(f"v_cmp_gt_u32_e64 {m}, s{cNE}, v{T[18+r]}")
        a(f"v_subrev_u32 v{T[4*r+1]}, s{cN0}, v{T[4*r+1]}")
        a(f"v_cndmask_b32_e64 v{T[4*r+1]}, -2, v{T[4*r+1]}, {m}")
    for side, tgt in ((0, vTA), (1, vTB)):
        for pr in range(2):
            ts = []
            for r in (2 * pr, 2 * pr + 1):
                m = mk()
                t = T[22 + 4 * side + r]
                a(f"v_cmp_eq_u32_e64 {m}, v{T[4*r+1]}, v{tgt}")
                a(f"v_cndmask_b32_e64 v{t}, 0, -1, {m}")
                ts.append(t)
            a(f"v_bfi_b32 v{MK[2*side+pr]}, s{sLO}, v{ts[0]}, v{ts[1]}")
    for pr in range(2):
        r0, r1 = 2 * pr, 2 * pr + 1
        a(f"v_perm_b32 v{PR[0+pr]}, v{T[4*r1+2]}, v{T[4*r0+2]}, s{sSELL}")
        a(f"v_perm_b32 v{PR[2+pr]}, v{T[4*r1+2]}, v{T[4*r0+2]}, s{sSELH}")
        a(f"v_perm_b32 v{PR[4+pr]}, v{T[4*r1+3]}, v{T[4*r0+3]}, s{sSELL}")
    a("s_waitcnt vmcnt(28)", guards=[f"v{S0+i}" for i in range(16)])
    k = 0
    for u in range(8):
        D = MVV0 + 4 * u
        for t in range(4):
            c = "0" if t == 0 else q(D)
            a(f"v_mfma_f32_16x16x32_bf16 {q(D)}, {q(ring[k % NRING])}, {q(S0+4*t)}, {c}")
            k += 1
            prefetch()
        for r in range(4):
            t = T[4 * u + r]
            a(f"v_mul_f32 v{t}, 0xbfb8aa3b, v{D+r}")
            a(f"v_exp_f32 v{t}, v{t}")
            a(f"v_add_f32 v{t}, 1.0, v{t}")
            a(f"v_rcp_f32 v{t}, v{t}")
            a(f"v_mul_f32 v{D+r}, v{D+r}, v{t}")
        a(f"v_cvt_pk_bf16_f32 v{H0+2*u}, v{D}, v{D+1}")
        a(f"v_cvt_pk_bf16_f32 v{H0+2*u+1}, v{D+2}, v{D+3}")
    emit_next_addr(a, mk, [PH0, PH0 + 1, PH0 + 2, PH0 + 3, WF0, WF0 + 1])
    emit_s_loads(a)
    for c in range(24):
        Gi, Ti = c // 8, c % 8
        PH = PH0 + 4 * (c % 2)
        WF = WF0 + 4 * (c % 2)
        WRF = WRF0 + 2 * (c % 2)
        a(f"ds_read_b64 v[{WRF}:{WRF+1}], v{vWR} offset:{128*c}")
        for t in range(4):
            cc = "0" if t == 0 else q(PH)
            a(f"v_mfma_f32_16x16x32_bf16 {q(PH)}, {q(H0+4*t)}, {q(ring[k % NRING])}, {cc}")
            k += 1
            prefetch()
        a(f"v_mfma_f32_16x16x16_bf16 {q(WF)}, v[{vRBOP}:{vRBOP+1}], v[{WRF}:{WRF+1}], 0")
        if Gi == 1:
            for r in range(4):
                a(f"v_mul_f32 v{MVV0+4*Ti+r}, v{PH+r}, v{WF+r}")
        else:
            for r in range(4):
                a(f"v_mul_f32 v{WF+r}, v{PH+r}, v{WF+r}")
            dst = (MS0 if Gi == 0 else MVR0) + 2 * Ti
            a(f"v_cvt_pk_bf16_f32 v{dst}, v{WF}, v{WF+1}")
            a(f"v_cvt_pk_bf16_f32 v{dst+1}, v{WF+2}, v{WF+3}")
    AS = H0
    for i in range(4):
        a(f"v_and_b32 v{AS+i}, s{sONE2}, v{MK[i]}")
    for x in range(3):
        for i in range(4):
            a(f"v_and_b32 v{AS+4+4*x+i}, v{MK[i]}, v{PR[2*x+(i%2)]}")
    pool = list(range(WRING, WRING + 40))
    CD = [pool[0], pool[4], pool[8]]
    BB = [pool[12], pool[16]]
    TT = [pool[20:28], pool[28:36]]
    it = 0
    for c in range(4):
        comp_wait(a, c)
        for p in range(4):
            C = CD[it % 3]
            o0, o1 = Oq(c, 0) + p, Oq(c, 1) + p
            a(f"v_lshlrev_b32 v{C}, 16, v{o0}")
            a(f"v_lshlrev_b32 v{C+1}, 16, v{o1}")
            a(f"v_and_b32 v{C+2}, s{sM}, v{o0}")
            a(f"v_and_b32 v{C+3}, s{sM}, v{o1}")
            if c == 0:
                a(f"v_mfma_f32_16x16x32_bf16 {q(C)}, {q(AS)}, {q(MS0+4*p)}, {q(C)}")
            else:
                x = c - 1
                B = BB[it % 2]
                t = TT[it % 2]
                for r in range(4):
                    src = Vq(x, r) + p
                    a(f"v_lshlrev_b32 v{t[r]}, 16, v{src}")
                    a(f"v_and_b32 v{t[4+r]}, s{sM}, v{src}")
                    a(f"v_mul_f32 v{t[r]}, v{t[r]}, v{MVV0+4*(2*p)+r}")
                    a(f"v_mul_f32 v{t[4+r]}, v{t[4+r]}, v{MVV0+4*(2*p+1)+r}")
                for i in range(4):
                    a(f"v_cvt_pk_bf16_f32 v{B+i}, v{t[2*i]}, v{t[2*i+1]}")
                a(f"v_mfma_f32_16x16x32_bf16 {q(C)}, {q(AS+4+4*x)}, {q(MVR0+4*p)}, {q(C)}")
                a(f"v_mfma_f32_16x16x32_bf16 {q(C)}, {q(AS)}, {q(B)}, {q(C)}")
            a(f"v_cvt_pk_bf16_f32 v{o0}, v{C}, v{C+2}")
            a(f"v_cvt_pk_bf16_f32 v{o1}, v{C+1}, v{C+3}")
            it += 1
        emit_comp_mem(a, c)
    return a


L_STAMP = 161792
WS_STAMP = 0xE00000


def gen_k2(prefetch_own=True, do_sched=True, stamps=False):
    a = Asm()

    def stamp():
        if not stamps:
            return
        a("s_memtime s[96:97]")
        a("s_waitcnt lgkmcnt(0)")
        a("v_mov_b32 v252, s96")
        a("v_mov_b32 v253, s98")
        a("ds_write_b32 v253, v252")
        a("s_add_u32 s98, s98, 4")

    a.label("message_kernel")
    a("s_cmp_ge_u32 s2, 256")
    a("s_cbranch_scc1 K2_END")
    if stamps:
        a("v_lshrrev_b32 v252, 6, v0")
        a("v_readfirstlane_b32 s98, v252")
        a("s_lshl_b32 s98, s98, 7")
        a(f"s_add_u32 s98, s98, {L_STAMP}")
        a("s_mov_b32 s99, s98")
        a("v_and_b32 v252, 31, v0")
        a("v_lshlrev_b32 v252, 2, v252")
        a("v_add_u32 v252, s98, v252")
        a("v_mov_b32 v253, 0")
        a("ds_write_b32 v252, v253")
        stamp()
    a("s_load_dwordx2 s[4:5], s[0:1], 0")
    a("s_load_dwordx2 s[6:7], s[0:1], 64")
    a("s_load_dwordx2 s[8:9], s[0:1], 80")
    a("v_lshrrev_b32 v32, 6, v0")
    a(f"v_and_b32 v{vLANE}, 63, v0")
    a(f"v_readfirstlane_b32 s{sWAVE}, v32")
    a(f"v_lshlrev_b32 v{vWB0}, 4, v{vLANE}")
    a(f"v_mov_b32 v{vOOB}, 0x40000000")
    a("v_lshlrev_b32 v33, 10, v0")
    a("v_cmp_gt_u32 vcc, 250, v0")
    a(f"v_cndmask_b32 v33, v{vOOB}, v33, vcc")
    a(f"s_lshl_b32 s{sT0}, s2, 2")
    a(f"s_add_u32 s{sT0}, s{sT0}, {WS_DESC}")
    a(f"s_mul_i32 s{sBASE}, s2, 3125")
    a(f"s_add_u32 s{sNB}, s{sBASE}, {3125+31}")
    a(f"s_add_u32 s{sBASE}, s{sBASE}, 31")
    a(f"s_lshr_b32 s{sBASE}, s{sBASE}, 5")
    a(f"s_lshr_b32 s{sNB}, s{sNB}, 5")
    a(f"s_sub_u32 s{sNB}, s{sNB}, s{sBASE}")
    a("s_waitcnt lgkmcnt(0)")
    srd(a, SRD_WS, 8, WS_SIZE)
    srd(a, SRD_SV, 4, N * 1024)
    srd(a, SRD_OUT, 6, N * 1024)
    srd(a, SRD_OWN, 4, N * 1024)
    a(f"s_cmp_ge_u32 s{sWAVE}, 4")
    a("s_cbranch_scc1 K2_DMA")
    a(f"buffer_load_dword v34, v33, s[{SRD_WS}:{SRD_WS+3}], s{sT0} offen")
    a("s_branch K2_COMMON")
    a.label("K2_DMA")
    a(f"s_sub_u32 s{sT1}, s{sWAVE}, 4")
    a(f"s_lshl_b32 s{sT0}, s{sT1}, 12")
    for k in range(8):
        a(f"s_mov_b32 m0, s{sT0}")
        for j in range(4):
            a(f"buffer_load_dwordx4 v{vWB0}, s[{SRD_WS}:{SRD_WS+3}], s{sT0} offen offset:{1024*j} lds")
        a(f"s_add_u32 s{sT0}, s{sT0}, 0x4000")
    a(f"s_cmp_lg_u32 s{sWAVE}, 4")
    a("s_cbranch_scc1 K2_DMA2")
    a(f"s_mov_b32 m0, s{sT0}")
    for j in range(3):
        a(f"buffer_load_dwordx4 v{vWB0}, s[{SRD_WS}:{SRD_WS+3}], s{sT0} offen offset:{1024*j} lds")
    a.label("K2_DMA2")
    npref = 0
    if prefetch_own:
        a(f"s_mul_i32 s{sT0}, s{sT1}, 25")
        a(f"s_add_u32 s{sT0}, s{sT0}, s{sBASE}")
        a(f"s_lshl_b32 s{sT0}, s{sT0}, 10")
        for i in range(25):
            a(f"buffer_load_dwordx4 {q(204)}, v{vWB0}, s[{SRD_SV}:{SRD_SV+3}], s{sT0} offen offset:{1024*(i%4)}")
            if i % 4 == 3:
                a(f"s_add_u32 s{sT0}, s{sT0}, 0x1000")
        npref = 25
    a.label("K2_COMMON")
    a(f"v_add_u32 v{vWB1}, 0x10000, v{vWB0}")
    a(f"v_and_b32 v{vE}, 15, v{vLANE}")
    a(f"v_lshrrev_b32 v35, 4, v{vLANE}")
    a(f"v_lshlrev_b32 v{vWR}, 3, v{vE}")
    a(f"v_add_u32 v{vWR}, {L_WR}, v{vWR}")
    a(f"v_lshlrev_b32 v{vQ4}, 2, v35")
    a(f"v_lshlrev_b32 v{vQ16}, 4, v35")
    a(f"v_lshlrev_b32 v{vN16}, 4, v{vE}")
    a(f"v_lshlrev_b32 v{vRECE}, 5, v{vE}")
    a(f"v_add_u32 v{vRECE}, {L_REC}, v{vRECE}")
    a(f"v_lshlrev_b32 v{vRECQ}, 7, v35")
    a(f"v_add_u32 v{vRECQ}, {L_REC}, v{vRECQ}")
    a("v_and_b32 v36, 1, v35")
    a(f"v_lshl_add_u32 v{vRB}, v36, 3, v{vRECE}")
    a(f"v_add_u32 v{vRB}, 16, v{vRB}")
    a(f"v_lshlrev_b32 v{v2Q}, 1, v35")
    a(f"v_lshl_add_u32 v{vOWN0}, v35, 11, v{vN16}")
    a(f"v_lshrrev_b32 v36, 2, v{vE}")
    a(f"v_and_b32 v37, 1, v{vE}")
    a("v_lshl_add_u32 v36, v36, 1, v37")
    a(f"v_and_b32 v37, 2, v{vE}")
    a("v_cmp_eq_u32 vcc, 0, v37")
    a(f"v_cndmask_b32 v{vTA}, -1, v36, vcc")
    a(f"v_cndmask_b32_e64 v{vTB}, v36, -1, vcc")
    a(f"v_cmp_gt_u32_e64 s[{sQLT2}:{sQLT2+1}], 32, v{vLANE}")
    a(f"s_mov_b32 s{sM}, 0xffff0000")
    a(f"s_mov_b32 s{sLO}, 0xffff")
    a(f"s_mov_b32 s{sONE2}, 0x3f803f80")
    a(f"s_mov_b32 s{sSELL}, 0x05040100")
    a(f"s_mov_b32 s{sSELH}, 0x07060302")
    a(f"s_mov_b32 s{sJ0}, 0")
    a(f"s_mov_b32 s{sR}, {RMAX}")
    a(f"s_mov_b32 s{sROUND}, 0")
    a.label("K2_ROUND")
    a("v_lshlrev_b32 v36, 2, v0")
    a(f"v_add_u32 v36, {L_CNT}, v36")
    a("v_mov_b32 v37, 0")
    a(f"v_mov_b32 v38, {L_FLAG}")
    a("v_cmp_gt_u32 vcc, 0x80, v0")
    a(f"s_and_saveexec_b64 s[{sMK}:{sMK+1}], vcc")
    a("ds_write_b32 v36, v37")
    a("ds_write_b32 v38, v37")
    a("s_mov_b64 exec, -1")
    a("s_barrier")
    stamp()
    a(f"s_cmp_ge_u32 s{sWAVE}, 4")
    a("s_cbranch_scc1 K2_AFTER_REC")
    REC = 64
    RK = 40
    AD = 52
    a("s_waitcnt vmcnt(0)")
    stamp()
    a("v_and_b32 v35, 0xffff, v34")
    a("v_lshrrev_b32 v36, 16, v34")
    a(f"v_subrev_u32 v36, s{sJ0}, v36")
    a("v_max_i32 v36, 0, v36")
    a(f"v_cmp_lt_u32 vcc, s{sR}, v36")
    a(f"v_min_u32 v36, s{sR}, v36")
    a("v_mov_b32 v37, 1")
    a(f"s_and_saveexec_b64 s[{sMK}:{sMK+1}], vcc")
    a("ds_write_b32 v38, v37")
    a("s_mov_b64 exec, -1")
    a("v_mul_u32_u24 v39, 1600, v0")
    a("v_add_u32 v39, v39, v35")
    a(f"v_add_u32 v39, s{sJ0}, v39")
    a("v_lshlrev_b32 v39, 5, v39")
    a(f"s_mov_b32 s{sT0}, {WS_REC}")
    for j in range(RMAX):
        a(f"v_cmp_lt_u32 vcc, {j}, v36")
        a("s_and_b64 exec, exec, vcc")
        a("s_cbranch_execz K2_REC_ISSUED")
        a(f"buffer_load_dwordx4 {q(REC+8*j)}, v39, s[{SRD_WS}:{SRD_WS+3}], s{sT0} offen offset:{32*j}")
        a(f"buffer_load_dwordx4 {q(REC+8*j+4)}, v39, s[{SRD_WS}:{SRD_WS+3}], s{sT0} offen offset:{32*j+16}")
    a.label("K2_REC_ISSUED")
    a("s_mov_b64 exec, -1")
    a(f"s_mov_b32 s{sT0}, {L_CNT}")
    a("s_waitcnt vmcnt(0)")
    stamp()
    for j in range(RMAX):
        a(f"v_cmp_lt_u32 vcc, {j}, v36")
        a("s_and_b64 exec, exec, vcc")
        a("s_cbranch_execz K2_AFTER_REC")
        a(f"v_lshl_add_u32 v{AD+j}, v{REC+8*j+1}, 2, s{sT0}")
        a(f"ds_add_rtn_u32 v{RK+j}, v{AD+j}, v37 ; NOWAIT")
    a.label("K2_AFTER_REC")
    a("s_mov_b64 exec, -1")
    a("s_waitcnt lgkmcnt(0)")
    a("s_barrier")
    stamp()
    SC = 176
    a(f"v_lshlrev_b32 v{SC}, 3, v{vLANE}")
    a(f"v_add_u32 v{SC}, {L_CNT}, v{SC}")
    a(f"v_mov_b32 v{SC+1}, {L_FLAG}")
    a(f"ds_read_b64 v[{SC+2}:{SC+3}], v{SC}")
    a(f"ds_read_b32 v{SC+1}, v{SC+1}")
    a(f"v_add_u32 v{SC+4}, v{SC+2}, v{SC+3}")
    a(f"v_mov_b32 v{SC+5}, v{SC+4}")
    wave_scan(a, SC + 5)
    a(f"v_sub_u32 v{SC+6}, v{SC+5}, v{SC+4}")
    a(f"v_add_u32 v{SC+7}, v{SC+6}, v{SC+2}")
    a(f"v_readlane_b32 s{sTOT}, v{SC+5}, 63")
    a(f"v_readfirstlane_b32 s{sMORE}, v{SC+1}")
    a(f"ds_write_b64 v{SC}, v[{SC+6}:{SC+7}] offset:{L_P-L_CNT}")
    a(f"v_lshl_or_b32 v{vP}, v{SC+7}, 16, v{SC+6}")
    a(f"s_cmp_le_u32 s{sTOT}, {CAP}")
    a("s_cbranch_scc1 K2_FITS")
    a(f"s_mov_b32 s{sR}, 3")
    a("s_barrier")
    a("s_branch K2_ROUND")
    a.label("K2_FITS")
    for i in range(1, 5):
        a(f"ds_read_b64 v[{SC+6+2*i}:{SC+7+2*i}], v{SC} offset:{L_P-L_CNT+8*i}")
    a(f"s_cmp_ge_u32 s{sWAVE}, 4")
    a("s_cbranch_scc1 K2_SCATTERED")
    for j in range(RMAX):
        a(f"v_cmp_lt_u32 vcc, {j}, v36")
        a("s_and_b64 exec, exec, vcc")
        a("s_cbranch_execz K2_PREAD")
        a(f"ds_read_b32 v{AD+j}, v{AD+j} offset:{L_P-L_CNT} ; NOWAIT")
    a.label("K2_PREAD")
    a("s_mov_b64 exec, -1")
    a("s_waitcnt lgkmcnt(0)")
    for j in range(RMAX):
        a(f"v_cmp_lt_u32 vcc, {j}, v36")
        a("s_and_b64 exec, exec, vcc")
        a("s_cbranch_execz K2_SCATTERED")
        a(f"v_add_lshl_u32 v{AD+j}, v{AD+j}, v{RK+j}, 5")
        a(f"v_add_u32 v{AD+j}, {L_REC}, v{AD+j}")
        a(f"ds_write_b128 v{AD+j}, {q(REC+8*j)} ; NOWAIT")
        a(f"ds_write_b128 v{AD+j}, {q(REC+8*j+4)} offset:16 ; NOWAIT")
    a.label("K2_SCATTERED")
    a("s_mov_b64 exec, -1")
    PV = SC + 6
    for h in range(2):
        lim, cnt = SC + 20 + 2 * h, SC + 21 + 2 * h
        a(f"v_add_u32 v{lim}, 16, v{PV+h}")
        a(f"v_mov_b32 v{cnt}, 0")
        for k in range(1, 9):
            a(f"v_cmp_le_u32_e64 s[{sMK+2*k}:{sMK+2*k+1}], v{PV+h+k}, v{lim}")
        for k in range(1, 9):
            a(f"v_addc_co_u32_e64 v{cnt}, vcc, 0, v{cnt}, s[{sMK+2*k}:{sMK+2*k+1}]")
        a(f"v_max_u32 v{cnt}, 1, v{cnt}")
        a(f"v_lshl_add_u32 v{cnt}, v{vLANE}, 1, v{cnt}")
        if h:
            a(f"v_add_u32 v{cnt}, 1, v{cnt}")
        a(f"v_min_u32 v{cnt}, s{sNB}, v{cnt}")
    a(f"v_lshl_or_b32 v{vNEXT}, v{SC+23}, 8, v{SC+21}")
    a(f"s_mov_b32 s{sPOS}, 0")
    a(f"s_mov_b32 s{cN0}, s{sWAVE}")
    a.label("K2_WALK0")
    a(f"s_cmp_eq_u32 s{cN0}, 0")
    a("s_cbranch_scc1 K2_WALK0_DONE")
    advance(a)
    a(f"s_sub_u32 s{cN0}, s{cN0}, 1")
    a("s_branch K2_WALK0")
    a.label("K2_WALK0_DONE")
    build_next_job(a)
    next_ne(a)
    a(f"v_mov_b32 v{vOA0}, v{vOOB}")
    a(f"v_mov_b32 v{vOA1}, v{vOOB}")
    a(f"s_mov_b32 s{cOFF}, 0")
    stamp()
    a(f"s_waitcnt vmcnt({npref}) lgkmcnt(0)")
    a("s_barrier")
    stamp()
    mk = MaskAlloc()
    emit_next_addr(a, mk, [PH0, PH0 + 1, PH0 + 2, PH0 + 3, WF0, WF0 + 1])
    emit_s_loads(a)
    for c in range(4):
        emit_comp_mem(a, c)
    a.label("K2_LOOP")
    stamp()
    for cs, ns in ((cN0, nN0), (cNN, nNN), (cEB, nEB), (cNE, nNE), (cE1, nE1), (cOFF, nOFF), (sCE32, sNE32)):
        a(f"s_mov_b32 s{cs}, s{ns}")
    a(f"v_mov_b32 v{vOA0}, v{vON0}")
    a(f"v_mov_b32 v{vOA1}, v{vON1}")
    a(f"s_cmp_eq_u32 s{cNN}, 0")
    a("s_cbranch_scc1 K2_DONE")
    a(f"s_add_u32 s{nEB}, s{cEB}, 16")
    a(f"s_cmp_lt_u32 s{nEB}, s{cE1}")
    a("s_cbranch_scc0 K2_NEWJOB")
    a(f"s_mov_b32 s{SRD_OWN}, s6")
    a(f"s_mov_b32 s{SRD_OWN+1}, s7")
    a("s_branch K2_GOTNEXT")
    a.label("K2_NEWJOB")
    for _ in range(7):
        advance(a)
    build_next_job(a)
    a.label("K2_GOTNEXT")
    next_ne(a)
    a(f"s_cmp_eq_u32 s{cNE}, 0")
    a("s_cbranch_scc1 K2_COPY")
    if stamps:
        stamp()
        a("s_waitcnt vmcnt(28)")
        stamp()
    blk = item_block().ins
    if do_sched:
        blk, t = schedule(blk)
        print("item block: %d instructions, modelled %d cycles" % (len(blk), t))
    a.extend(blk)
    a("s_branch K2_LOOP")
    a.label("K2_COPY")
    mk = MaskAlloc()
    a("s_waitcnt vmcnt(28)")
    emit_next_addr(a, mk, [PH0, PH0 + 1, PH0 + 2, PH0 + 3, WF0, WF0 + 1])
    emit_s_loads(a)
    for c in range(4):
        comp_wait(a, c)
        emit_comp_mem(a, c)
    a("s_branch K2_LOOP")
    a.label("K2_DONE")
    if stamps:
        a("s_waitcnt vmcnt(0)")
        stamp()
        a(f"v_lshlrev_b32 v252, 2, v{vLANE}")
        a("v_add_u32 v253, s99, v252")
        a("ds_read_b32 v254, v253")
        a("s_lshl_b32 s96, s2, 3")
        a(f"s_add_u32 s96, s96, s{sWAVE}")
        a("s_lshl_b32 s96, s96, 7")
        a(f"s_add_u32 s96, s96, {WS_STAMP}")
        a(f"s_mov_b64 exec, 0xffffffff")
        a(f"buffer_store_dword v254, v252, s[{SRD_WS}:{SRD_WS+3}], s96 offen")
        a("s_mov_b64 exec, -1")
    a(f"s_cmp_eq_u32 s{sMORE}, 0")
    a("s_cbranch_scc1 K2_END")
    a(f"s_add_u32 s{sJ0}, s{sJ0}, s{sR}")
    a(f"s_mov_b32 s{sROUND}, 1")
    a("s_waitcnt vmcnt(0)")
    a("v_lshlrev_b32 v33, 10, v0")
    a("v_cmp_gt_u32 vcc, 250, v0")
    a(f"v_cndmask_b32 v33, v{vOOB}, v33, vcc")
    a(f"s_lshl_b32 s{sT0}, s2, 2")
    a(f"s_add_u32 s{sT0}, s{sT0}, {WS_DESC}")
    a(f"buffer_load_dword v34, v33, s[{SRD_WS}:{SRD_WS+3}], s{sT0} offen")
    a("s_waitcnt vmcnt(0)")
    a("s_barrier")
    a("s_branch K2_ROUND")
    a.label("K2_END")
    a("s_endpgm")
    return a
```

```python
import sys
from asmlib import finalize, render
from gen2_k1 import gen_k1, K1_LDS
from gen2_k2 import gen_k2, K2_LDS
from gen import HEADER, kd

def build(path, **kw):
    st = kw.get("stamps", False)
    pf = kw.pop("pf", 2)
    k1kw = {k: kw.pop(k) for k in ("early_s", "rot") if k in kw}
    k1 = render(finalize(gen_k1(stamps=st, pf=pf, **k1kw).ins))
    k2 = render(finalize(gen_k2(**kw).ins))
    out = HEADER
    out += "; Two launches: edge_bin_kernel (per-edge geometry, cutoff test, binning by destination; H = silu(s@W1) per node;\n"
    out += "; weight re-layout), then message_kernel (phi = H@W2 per edge on MFMA, messages, segment sum on MFMA, residual add).\n"
    out += f"; @launch kernel=edge_bin_kernel grid=(256,1,1) block=(1024,1,1) lds={K1_LDS + (1024 if st else 0)}\n"
    out += f"; @launch kernel=message_kernel grid=(256,1,1) block=(512,1,1) lds={K2_LDS}\n"
    out += '.amdgcn_target "amdgcn-amd-amdhsa--gfx950"\n.text\n'
    for name, body in (("edge_bin_kernel", k1), ("message_kernel", k2)):
        out += f".globl {name}\n.p2align 8\n.type {name},@function\n" + body
    out += '.section .rodata,"a"\n.p2align 6\n' + kd("edge_bin_kernel", 128, 96) + ".p2align 6\n" + kd("message_kernel", 256, 100)
    open(path, "w").write(out)

if __name__ == "__main__":
    kw = {}
    for x in sys.argv[2:]:
        k, v = x.split("=")
        kw[k] = eval(v)
    build(sys.argv[1], **kw)
```

```python
import re

TRANS = ("v_exp_f32", "v_log_f32", "v_rcp_f32", "v_rsq_f32", "v_sqrt_f32", "v_sin_f32", "v_cos_f32")

_REG = re.compile(r"^(-?)(abs\()?([vsa])(\d+)\)?$")
_RNG = re.compile(r"^([vsa])\[(\d+):(\d+)\]$")


def regs_of(op):
    op = op.strip()
    m = _RNG.match(op)
    if m:
        return {f"{m.group(1)}{i}" for i in range(int(m.group(2)), int(m.group(3)) + 1)}
    m = _REG.match(op)
    if m:
        return {f"{m.group(3)}{m.group(4)}"}
    if op in ("vcc", "exec", "m0", "scc"):
        return {op}
    if op in ("vcc_lo", "vcc_hi"):
        return {"vcc"}
    if op in ("exec_lo", "exec_hi"):
        return {"exec"}
    return set()


def split_ops(rest):
    out, depth, cur = [], 0, ""
    for ch in rest:
        if ch in "[(":
            depth += 1
        elif ch in "])":
            depth -= 1
        if ch == "," and depth == 0:
            out.append(cur.strip())
            cur = ""
        else:
            cur += ch
    if cur.strip():
        out.append(cur.strip())
    return out


class Ins:
    __slots__ = ("text", "op", "kind", "w", "r", "dpp", "srcc", "ab", "wide_store", "guards", "cost",
                 "lanesel", "vsrc_lane", "idx", "mods", "pw", "pr")

    def __init__(self, text, guards=None):
        self.text = text
        self.guards = guards
        self.dpp = False
        self.pw = None
        self.pr = None
        self.srcc = set()
        self.ab = set()
        self.wide_store = set()
        self.lanesel = set()
        self.vsrc_lane = set()
        self.w = set()
        self.r = set()
        t = text.split(";")[0].strip()
        if t.endswith(":"):
            self.op, self.kind = "label", "label"
            return
        if t.startswith("."):
            self.op, self.kind = "dir", "label"
            return
        parts = t.split(None, 1)
        op = parts[0]
        self.op = op
        rest = parts[1] if len(parts) > 1 else ""
        ops = split_ops(rest)
        mods = ""
        if ops:
            last = ops[-1].split(None, 1)
            ops[-1] = last[0]
            mods = last[1] if len(last) > 1 else ""
        self.mods = mods
        R = [regs_of(o) for o in ops]
        w, r = set(), set()
        if op.startswith("v_mfma"):
            self.kind = "mfma"
            w |= R[0]
            r |= R[1] | R[2] | R[3]
            self.ab = R[1] | R[2]
            self.srcc = R[3]
        elif op.startswith("v_"):
            base = op.replace("_e32", "").replace("_e64", "").replace("_dpp", "")
            self.kind = "trans" if base in TRANS else "valu"
            r.add("exec")
            if "row_" in mods or "quad_perm" in mods or "wave_" in mods:
                self.dpp = True
            if base.startswith("v_cmpx"):
                raise ValueError("v_cmpx unsupported")
            if base.startswith("v_cmp"):
                w |= R[0]
                for x in R[1:]:
                    r |= x
            elif base in ("v_add_co_u32", "v_sub_co_u32", "v_subrev_co_u32", "v_addc_co_u32", "v_subb_co_u32",
                          "v_mad_u64_u32"):
                w |= R[0] | R[1]
                for x in R[2:]:
                    r |= x
            elif base in ("v_readlane_b32", "v_readfirstlane_b32"):
                w |= R[0]
                r |= R[1]
                self.vsrc_lane = R[1]
                if len(R) > 2:
                    r |= R[2]
                    self.lanesel = R[2]
            elif base == "v_writelane_b32":
                w |= R[0]
                r |= R[0] | R[1] | R[2]
                self.lanesel = R[2]
            elif base == "v_nop":
                pass
            else:
                w |= R[0]
                for x in R[1:]:
                    r |= x
                if base in ("v_fmac_f32", "v_pk_fmac_f16", "v_dot2c_f32_bf16") or self.dpp:
                    r |= R[0]
                if base.startswith("v_permlane"):
                    w |= R[1]
                    r |= R[0]
                    self.dpp = True
        elif op.startswith("ds_"):
            self.kind = "lds"
            r.add("exec")
            if op.startswith("ds_read") or "_rtn" in op or "permute" in op or "swizzle" in op:
                w |= R[0]
                for x in R[1:]:
                    r |= x
                if "d16" in op:
                    r |= R[0]
            else:
                for x in R:
                    r |= x
        elif op.startswith("buffer_") or op.startswith("global_"):
            self.kind = "vmem"
            r.add("exec")
            is_lds = " lds" in (" " + mods)
            if "store" in op or "atomic" in op:
                for x in R:
                    r |= x
                if op.endswith("x4") or op.endswith("x3"):
                    self.wide_store = R[0] if op.startswith("buffer_") else R[1]
                if "atomic" in op and "sc0" in mods:
                    w |= R[0]
            elif is_lds:
                for x in R:
                    r |= x
                r.add("m0")
            else:
                w |= R[0]
                for x in R[1:]:
                    r |= x
                if "d16" in op:
                    r |= R[0]
        elif op.startswith("s_load") or op.startswith("s_buffer_load") or op in ("s_memtime", "s_memrealtime"):
            self.kind = "smem"
            w |= R[0]
            for x in R[1:]:
                r |= x
        elif op == "s_waitcnt":
            self.kind = "wait"
        elif op == "s_nop":
            self.kind = "nop"
        elif op in ("s_barrier", "s_endpgm", "s_setprio", "s_sleep"):
            self.kind = "barrier" if op in ("s_barrier", "s_endpgm") else "salu"
        elif op.startswith("s_cbranch") or op == "s_branch":
            self.kind = "branch"
            if "scc" in op:
                r.add("scc")
            if "vcc" in op:
                r.add("vcc")
            if "exec" in op:
                r.add("exec")
        elif op.startswith("s_"):
            self.kind = "salu"
            if op.startswith("s_cmp") or op.startswith("s_bitcmp"):
                for x in R:
                    r |= x
                w.add("scc")
            else:
                w |= R[0]
                for x in R[1:]:
                    r |= x
                if "saveexec" in op:
                    w.add("exec")
                    r.add("exec")
                    w.add("scc")
                if op.startswith(("s_cselect", "s_addc", "s_subb", "s_cmov")):
                    r.add("scc")
                if op.startswith("s_cmov") or op in ("s_addk_i32", "s_mulk_i32"):
                    r |= R[0]
                if not op.startswith(("s_mov", "s_cselect", "s_mul", "s_movk", "s_cmov", "s_getreg", "s_setreg",
                                      "s_pack", "s_sext", "s_brev", "s_ff", "s_flbit")):
                    w.add("scc")
        else:
            raise ValueError("unknown instruction: " + text)
        self.w, self.r = w, r
        if guards:
            self.w = set(self.w) | set(guards)

    def states(self):
        if self.kind == "label":
            return 0
        if self.kind == "nop":
            return int(self.text.split()[1], 0) + 1
        return 1


def isv(x):
    return x[0] == "v" and x != "vcc"


def iss(x):
    return (x[0] == "s" and x != "scc") or x == "vcc"


def required_gap(p, c):
    need = 0
    vl = ("valu", "trans")
    if p.kind in vl:
        pw_v = {x for x in p.w if isv(x)}
        pw_s = {x for x in p.w if iss(x)}
        if c.kind == "mfma" and pw_v & c.r:
            need = max(need, 2)
        if c.kind in vl:
            if c.dpp and pw_v & c.r:
                need = max(need, 2)
            if c.vsrc_lane & pw_v:
                need = max(need, 1)
            if p.kind == "trans" and pw_v & (c.r | c.w):
                need = max(need, 1)
            if pw_s & c.lanesel:
                need = max(need, 4)
            elif pw_s & c.r:
                need = max(need, 2)
        if c.kind == "mfma" and p.kind == "trans" and pw_v & c.r:
            need = max(need, 2)
        if c.kind in ("vmem",) and pw_s & c.r:
            need = max(need, 5)
        if c.kind in ("vmem", "lds") and p.kind == "trans" and pw_v & c.r:
            need = max(need, 1)
        if c.kind in ("salu", "smem", "branch") and pw_s & c.r:
            need = max(need, 1)
    elif p.kind == "mfma":
        D = p.w
        if c.kind == "mfma":
            if D & c.ab:
                need = max(need, 8)
            if D & c.srcc and D != c.srcc:
                need = max(need, 6)
            if D & c.srcc and D == c.srcc and c.op != p.op:
                need = max(need, 6)
            if D & c.w and not (D & c.srcc):
                need = max(need, 8)
        elif c.kind in ("valu", "trans", "vmem", "lds"):
            if D & (c.r | c.w):
                need = max(need, 8)
            if c.kind in vl and p.srcc & c.w:
                need = max(need, 3)
    elif p.kind == "vmem":
        if p.wide_store and p.wide_store & c.w:
            need = max(need, 2)
    elif p.kind == "salu":
        if "m0" in p.w and "m0" in c.r and c.kind in ("vmem", "lds"):
            need = max(need, 1)
    return need


def worst_gap(p):
    if p.kind == "mfma":
        return 8
    if p.kind in ("valu", "trans"):
        if any(iss(x) for x in p.w):
            return 5
        return 2
    if p.kind == "vmem" and p.wide_store:
        return 2
    if p.kind == "salu" and "m0" in p.w:
        return 1
    return 0


class Asm:
    def __init__(self):
        self.ins = []

    def __call__(self, text, guards=None):
        for line in text.strip().split("\n"):
            line = line.strip()
            if not line or line.startswith(";"):
                continue
            self.ins.append(Ins(line, guards))

    def label(self, name):
        self.ins.append(Ins(name + ":"))

    def extend(self, other):
        self.ins.extend(other.ins if isinstance(other, Asm) else other)


COST = {"valu": 4, "trans": 8, "mfma": 8, "lds": 4, "vmem": 6, "salu": 4, "wait": 1, "nop": 4, "smem": 4}


def schedule(ins, lds_lat=110, mfma_period=16, valu_cost=None):
    n = len(ins)
    cost = dict(COST)
    if valu_cost:
        cost["valu"] = valu_cost
    succ = [[] for _ in range(n)]
    npred = [0] * n
    last_w = {}
    readers = {}
    last_vm = None
    last_lds = None
    tok = {}

    def edge(a, b, lat):
        succ[a].append((b, lat))
        npred[b] += 1

    for i, x in enumerate(ins):
        assert x.kind not in ("label", "branch", "barrier", "smem"), x.text
        deps = {}

        def add(a, lat):
            deps[a] = max(deps.get(a, 0), lat)

        for r in x.r:
            if r in last_w:
                a = last_w[r]
                p = ins[a]
                lat = cost[p.kind]
                if p.kind == "lds":
                    lat = lds_lat
                elif p.kind == "mfma":
                    lat = 16 if (x.kind == "mfma" and r in x.srcc and p.w == x.srcc) else 40
                else:
                    lat = max(lat, 4 * (required_gap(p, x) + 1))
                add(a, lat)
        for w in x.w:
            if w in last_w:
                a = last_w[w]
                p = ins[a]
                lat = cost[p.kind]
                if p.kind == "lds":
                    lat = lds_lat
                elif p.kind == "mfma" and not (x.kind == "mfma" and p.w == x.srcc):
                    lat = 40
                add(a, lat)
            for a in readers.get(w, ()):
                if a != i:
                    add(a, max(cost[ins[a].kind], 4 * (required_gap(ins[a], x) + 1)))
        if x.pr is not None and x.pr in tok:
            add(tok[x.pr], 1)
        if x.pw is not None:
            tok[x.pw] = i
        if x.kind == "vmem" or (x.kind == "wait" and "vmcnt" in x.text):
            if last_vm is not None:
                add(last_vm, 1)
            last_vm = i
        if x.kind == "lds":
            if last_lds is not None:
                add(last_lds, 1)
            last_lds = i
        for a, lat in deps.items():
            edge(a, i, lat)
        for r in x.r:
            readers.setdefault(r, []).append(i)
        for w in x.w:
            last_w[w] = i
            readers[w] = []
    prio = [0] * n
    for i in range(n - 1, -1, -1):
        best = cost[ins[i].kind]
        for b, lat in succ[i]:
            best = max(best, lat + prio[b])
        prio[i] = best
    ready_t = [0] * n
    avail = [i for i in range(n) if npred[i] == 0]
    t = 0
    mfma_free = 0
    out = []
    while avail:
        cand = []
        nonwait = [i for i in avail if ins[i].kind != "wait"]
        for i in (nonwait or avail):
            rt = ready_t[i]
            if ins[i].kind == "mfma":
                rt = max(rt, mfma_free)
            cand.append((rt, i))
        now = [i for rt, i in cand if rt <= t]
        if not now:
            t = min(rt for rt, i in cand)
            now = [i for rt, i in cand if rt <= t]
        pick = max(now, key=lambda i: (ins[i].kind == "mfma", prio[i], -i))
        avail.remove(pick)
        out.append(ins[pick])
        if ins[pick].kind == "mfma":
            mfma_free = t + mfma_period
        for b, lat in succ[pick]:
            ready_t[b] = max(ready_t[b], t + lat)
            npred[b] -= 1
            if npred[b] == 0:
                avail.append(b)
        t += cost[ins[pick].kind]
    assert len(out) == n
    return out, t


def finalize(ins):
    out = []
    fifo = []
    smem_out = set()
    smem_pending = False
    grp = {}
    keep = []
    for x in ins:
        if x.kind in ("label", "branch", "barrier"):
            if x.kind == "barrier" and x.op == "s_barrier" and (fifo or smem_pending):
                out.append(Ins("s_waitcnt lgkmcnt(0)"))
                fifo, smem_out, smem_pending = [], set(), False
            elif any(fifo) or smem_pending:
                out.append(Ins("s_waitcnt lgkmcnt(0)"))
                fifo, smem_out, smem_pending = [], set(), False
            else:
                if fifo:
                    out.append(Ins("s_waitcnt lgkmcnt(0)"))
                    fifo = []
            out.append(x)
            continue
        if x.kind == "wait" and "lgkmcnt" in x.text:
            m = re.search(r"lgkmcnt\((\d+)\)", x.text)
            k = int(m.group(1))
            if k == 0:
                fifo, smem_out, smem_pending = [], set(), False
            else:
                assert not smem_pending
                fifo = fifo[len(fifo) - k:] if len(fifo) > k else fifo
            out.append(x)
            continue
        touched = x.r | x.w
        if smem_pending and (touched & smem_out):
            out.append(Ins("s_waitcnt lgkmcnt(0)"))
            fifo, smem_out, smem_pending = [], set(), False
        need = None
        for k, d in enumerate(fifo):
            if d & touched:
                need = k
        if need is not None:
            g = grp.get(id(fifo[need]))
            if g is not None:
                for k in range(need + 1, len(fifo)):
                    if grp.get(id(fifo[k])) == g:
                        need = k
            left = len(fifo) - need - 1
            if smem_pending:
                left = 0
                smem_out, smem_pending = set(), False
            left = min(left, 15)
            out.append(Ins(f"s_waitcnt lgkmcnt({left})"))
            fifo = fifo[len(fifo) - left:] if left else []
        if x.kind == "lds":
            if "NOWAIT" in x.text:
                assert not fifo and not smem_pending, x.text
            else:
                fifo.append(set(x.w))
                mg = re.search(r"GRP(\d+)", x.text)
                if mg:
                    grp[id(fifo[-1])] = mg.group(1)
                    keep.append(fifo[-1])
        if x.kind == "smem":
            smem_pending = True
            smem_out |= x.w
        out.append(x)
    res = []
    for x in out:
        need = 0
        dist = 0
        boundary = x.kind in ("label", "branch")
        for p in reversed(res):
            if dist >= 9:
                break
            if p.kind == "label":
                break
            g = worst_gap(p) if boundary else required_gap(p, x)
            if x.kind == "branch":
                g = max(g - 1, required_gap(p, x))
            if g > dist:
                need = max(need, g - dist)
            dist += p.states()
        if need:
            res.append(Ins(f"s_nop {need - 1}"))
        res.append(x)
    return res


def render(ins):
    lines = []
    for x in ins:
        if x.kind == "label":
            lines.append(x.text)
        else:
            lines.append("    " + x.text)
    return "\n".join(lines) + "\n"
```

```python
from asmlib import Asm, schedule

N = 25000
E = 400000
G = 125
EPG = 3200
BIN_MAGIC = 43980480

WS_W2 = 0
WS_WR = 98304
WS_WEND = 101376
WS_DESC = 0x40000
WS_REC = 0x100000
WS_H = 0xE00000
WS_STAMP1 = 0x1500000
WS_STAMP2 = 0x1600000
WS_SIZE = 0x2000000

K1_CNT = 150528
K1_P = K1_CNT + 1024
K1_LDS = K1_P + 1024
K1_STAMP = K1_LDS


def srd(a, d, base, size):
    a(f"s_mov_b32 s{d}, s{base}")
    a(f"s_mov_b32 s{d+1}, s{base+1}")
    a(f"s_mov_b32 s{d+2}, {size}")
    a(f"s_mov_b32 s{d+3}, 0x00020000")


def wave_scan(a, v):
    for sh in (1, 2, 4, 8):
        a(f"v_add_u32_dpp v{v}, v{v}, v{v} row_shr:{sh} row_mask:0xf bank_mask:0xf bound_ctrl:0")
    a(f"v_add_u32_dpp v{v}, v{v}, v{v} row_bcast:15 row_mask:0xa bank_mask:0xf")
    a(f"v_add_u32_dpp v{v}, v{v}, v{v} row_bcast:31 row_mask:0xc bank_mask:0xf")


def q(b):
    return f"v[{b}:{b+3}]"


def gen_k1(stamps=False, pf=2, early_s=False, rot=True, nte=False, ntp=False, nts=False, ntw=False, st1=""):
    a = Asm()
    NTE = " nt" if nte else ""
    NTP = " nt" if ntp else ""
    NTS = " nt" if nts else ""
    NTW = " nt" if ntw else ""

    def touch():
        if not pf:
            return
        a("s_mul_i32 s92, s2, 3125")
        a("s_add_u32 s92, s92, 31")
        a("s_lshr_b32 s92, s92, 5")
        a("s_lshl_b32 s92, s92, 10")
        a("v_lshlrev_b32 v122, 7, v0")
        a("v_cmp_gt_u32 vcc, 784, v0")
        a("v_mov_b32 v123, 0x40000000")
        a("v_cndmask_b32 v122, v123, v122, vcc")
        a("buffer_load_dword v120, v122, s[84:87], s92 offen nt")

    def stamp():
        if not stamps:
            return
        a("s_mov_b64 s[76:77], exec")
        a("s_mov_b64 exec, -1")
        a("s_memtime s[74:75]")
        a("s_waitcnt lgkmcnt(0)")
        a("v_mov_b32 v124, s74")
        a("v_mov_b32 v125, s78")
        a("ds_write_b32 v125, v124")
        a("s_add_u32 s78, s78, 4")
        a("s_mov_b64 exec, s[76:77]")

    a.label("edge_bin_kernel")
    a("s_cmp_ge_u32 s2, 256")
    a("s_cbranch_scc1 K1_END")
    if stamps:
        a("v_lshrrev_b32 v124, 6, v0")
        a("v_readfirstlane_b32 s78, v124")
        a("s_lshl_b32 s78, s78, 6")
        a(f"s_add_u32 s78, s78, {K1_STAMP}")
        a("s_mov_b32 s79, s78")
        a("v_and_b32 v124, 15, v0")
        a("v_lshlrev_b32 v124, 2, v124")
        a("v_add_u32 v124, s78, v124")
        a("v_mov_b32 v125, 0")
        a("ds_write_b32 v124, v125")
        stamp()
    a("s_load_dwordx4 s[4:7], s[0:1], 8")
    a("s_load_dwordx4 s[8:11], s[0:1], 24")
    a("s_load_dwordx4 s[12:15], s[0:1], 40")
    a("s_load_dwordx2 s[16:17], s[0:1], 56")
    a("s_load_dwordx2 s[18:19], s[0:1], 80")
    a("s_load_dwordx2 s[80:81], s[0:1], 0")
    a("v_lshrrev_b32 v1, 6, v0")
    a("v_and_b32 v6, 63, v0")
    a("v_readfirstlane_b32 s3, v1")
    a("s_mov_b32 s52, 0xffff0000")
    a("s_lshr_b32 s53, s2, 4")
    a("s_lshl_b32 s53, s53, 3")
    a("s_and_b32 s54, s2, 7")
    a("s_or_b32 s73, s53, s54")
    a("v_lshlrev_b32 v9, 4, v6")
    a("s_waitcnt lgkmcnt(0)")
    srd(a, 20, 4, N * 6)
    srd(a, 24, 6, E * 4)
    srd(a, 28, 8, E * 4)
    srd(a, 32, 18, WS_SIZE)
    srd(a, 36, 12, 128 * 128 * 2)
    srd(a, 40, 14, 128 * 384 * 2)
    srd(a, 44, 16, 4 * 384 * 2)
    srd(a, 84, 80, N * 1024)
    a(f"s_add_u32 s88, s18, {WS_H}")
    a("s_addc_u32 s89, s19, 0")
    a(f"s_mov_b32 s90, {N*256}")
    a("s_mov_b32 s91, 0x00020000")
    a("s_bitcmp1_b32 s2, 3")
    a("s_cbranch_scc1 K1_HROLE")
    a(f"s_cmp_ge_u32 s73, {G}")
    a("s_cbranch_scc1 K1_WEIGHTS")
    stamp()
    a(f"s_mul_i32 s53, s73, {EPG*4}")
    a("v_lshlrev_b32 v7, 4, v0")
    a("v_cmp_gt_u32 vcc, 800, v0")
    a("v_mov_b32 v8, 0x40000000")
    a("s_mov_b64 s[50:51], vcc")
    a("v_cndmask_b32 v7, v8, v7, vcc")
    a("buffer_load_dwordx4 v[56:59], v7, s[24:27], s53 offen" + NTE)
    a("buffer_load_dwordx4 v[60:63], v7, s[28:31], s53 offen" + NTE)
    a("s_lshr_b32 s54, s73, 3")
    a("s_mul_i32 s54, s54, 5")
    a("s_lshr_b32 s54, s54, 3")
    if not rot:
        a("s_mov_b32 s54, 0")
    a("s_lshl_b32 s54, s54, 4")
    a("s_add_u32 s54, s54, s3")
    a("s_lshl_b32 m0, s54, 10")
    for k in range(10):
        a(f"s_cmp_ge_u32 m0, {147*1024}")
        a(f"s_cbranch_scc1 K1_SKIP{k}")
        a(f"buffer_load_dwordx4 v9, s[20:23], m0 offen{NTP} lds")
        a.label(f"K1_SKIP{k}")
        if k < 9:
            a("s_add_u32 m0, m0, 0x4000")
            a(f"s_sub_u32 s54, m0, {160*1024}")
            a(f"s_cmp_ge_u32 m0, {160*1024}")
            a("s_cselect_b32 m0, s54, m0")
    a("s_load_dwordx2 s[48:49], s[10:11], 0")
    a("v_lshlrev_b32 v10, 2, v0")
    a(f"v_add_u32 v10, {K1_CNT}, v10")
    a("v_mov_b32 v11, 0")
    a("v_cmp_gt_u32 vcc, 256, v0")
    a("s_and_saveexec_b64 s[56:57], vcc")
    a("ds_write_b32 v10, v11")
    a("s_mov_b64 exec, s[56:57]")
    a(f"s_mov_b32 s55, {BIN_MAGIC}")
    a(f"s_mov_b32 s58, {K1_CNT}")
    a("s_movk_i32 s59, 0x200")
    a("v_mov_b32 v5, 1")
    for e in range(4):
        a(f"s_mov_b64 s[{60+2*e}:{61+2*e}], 0")
    SRC, DST = 56, 60
    AD = 64
    SH = 72
    CA = 80
    RK = 84
    PP = 88
    EN = 104
    a("s_waitcnt vmcnt(9)")
    for i in range(8):
        r = SRC + i
        a(f"v_mul_u32_u24 v{AD+i}, 6, v{r}")
        a(f"v_and_b32 v{AD+i}, -4, v{AD+i}")
        a(f"v_and_b32 v{SH+i}, 1, v{r}")
        a(f"v_lshlrev_b32 v{SH+i}, 4, v{SH+i}")
    for e in range(4):
        a(f"v_mul_hi_u32 v{CA+e}, v{DST+e}, s55")
        a(f"v_lshl_add_u32 v{CA+e}, v{CA+e}, 2, s58")
        a(f"v_mov_b32 v{EN+4*e}, v{SRC+e}")
        a(f"v_mov_b32 v{EN+4*e+1}, v{DST+e}")
    stamp()
    a("s_waitcnt vmcnt(0) lgkmcnt(0)")
    stamp()
    a("s_barrier")
    stamp()
    touch()
    a("s_mov_b64 exec, s[50:51]")
    a("s_cbranch_execz K1_PHASE_B")
    for e in range(4):
        for i in (e, 4 + e):
            a(f"ds_read2_b32 v[{PP+2*i}:{PP+2*i+1}], v{AD+i} offset0:0 offset1:1")
    for e in range(4):
        s, d = PP + 2 * e, PP + 8 + 2 * e
        t = 12 + 8 * e
        a(f"v_lshrrev_b64 v[{s}:{s+1}], v{SH+e}, v[{s}:{s+1}]")
        a(f"v_lshrrev_b64 v[{d}:{d+1}], v{SH+4+e}, v[{d}:{d+1}]")
        a(f"v_lshlrev_b32 v{t}, 16, v{s}")
        a(f"v_lshlrev_b32 v{t+1}, 16, v{d}")
        a(f"v_and_b32 v{t+2}, s52, v{s}")
        a(f"v_and_b32 v{t+3}, s52, v{d}")
        a(f"v_lshlrev_b32 v{t+4}, 16, v{s+1}")
        a(f"v_lshlrev_b32 v{t+5}, 16, v{d+1}")
        a(f"v_sub_f32 v{t}, v{t}, v{t+1}")
        a(f"v_sub_f32 v{t+2}, v{t+2}, v{t+3}")
        a(f"v_sub_f32 v{EN+4*e+3}, v{t+4}, v{t+5}")
        a(f"v_cvt_pk_bf16_f32 v{EN+4*e+2}, v{t}, v{t+2}")
        a(f"v_mul_f32 v{t+1}, v{t}, v{t}")
        a(f"v_fmac_f32 v{t+1}, v{t+2}, v{t+2}")
        a(f"v_fmac_f32 v{t+1}, v{EN+4*e+3}, v{EN+4*e+3}")
        a(f"v_cmp_nlt_f32 vcc, 0x41ca0000, v{t+1}")
        a(f"v_cmp_class_f32_e64 s[{60+2*e}:{61+2*e}], v{t+1}, s59")
        a(f"s_or_b64 s[{60+2*e}:{61+2*e}], s[{60+2*e}:{61+2*e}], vcc")
        a(f"s_mov_b64 exec, s[{60+2*e}:{61+2*e}]")
        a(f"ds_add_rtn_u32 v{RK+e}, v{CA+e}, v5")
        a("s_mov_b64 exec, s[50:51]")
    a.label("K1_PHASE_B")
    a("s_mov_b64 exec, -1")
    stamp()
    a("s_barrier")
    stamp()
    a(f"v_add_u32 v10, {K1_CNT}, v9")
    a("ds_read_b128 v[12:15], v10")
    a("v_add_u32 v17, v12, v13")
    a("v_add_u32 v18, v17, v14")
    a("v_add_u32 v19, v18, v15")
    a("v_mov_b32 v20, v19")
    wave_scan(a, 20)
    a("v_sub_u32 v24, v20, v19")
    a("v_add_u32 v25, v24, v12")
    a("v_add_u32 v26, v24, v17")
    a("v_add_u32 v27, v24, v18")
    a("ds_write_b128 v10, v[24:27] offset:1024")
    a("v_readlane_b32 s68, v20, 63")
    a("s_cmp_lg_u32 s3, 15")
    a("s_cbranch_scc1 K1_NODESC")
    for i in range(4):
        a(f"v_lshl_or_b32 v{28+i}, v{12+i}, 16, v{24+i}")
    a("s_lshl_b32 s69, s73, 10")
    a(f"s_add_u32 s69, s69, {WS_DESC}")
    a("buffer_store_dwordx4 v[28:31], v9, s[32:35], s69 offen")
    a.label("K1_NODESC")
    for e in range(4):
        a(f"s_mov_b64 exec, s[{60+2*e}:{61+2*e}]")
        a(f"ds_read_b32 v{12+e}, v{CA+e} offset:1024")
    for e in range(4):
        a(f"s_mov_b64 exec, s[{60+2*e}:{61+2*e}]")
        a(f"v_add_lshl_u32 v{12+e}, v{12+e}, v{RK+e}, 4")
        a(f"ds_write_b128 v{12+e}, {q(EN+4*e)}")
    a("s_mov_b64 exec, -1")
    a("s_lshl_b32 s60, s48, 16")
    a("s_and_b32 s61, s48, s52")
    a("s_lshl_b32 s62, s49, 16")
    a("s_and_b32 s63, s49, s52")
    a(f"s_mul_i32 s69, s73, {EPG*32}")
    a(f"s_add_u32 s69, s69, {WS_REC}")
    a("s_movk_i32 s70, 3125")
    a("s_mov_b32 s71, 0x40a00000")
    stamp()
    a("s_barrier")
    stamp()
    a("v_mov_b32 v8, v0")
    a("s_lshl_b32 s72, s3, 6")
    a.label("K1_DENSE")
    a("s_cmp_ge_u32 s72, s68")
    a("s_cbranch_scc1 K1_FIN")
    a("v_cmp_gt_u32 vcc, s68, v8")
    a("s_and_b64 exec, exec, vcc")
    b = Asm()
    b("v_lshlrev_b32 v10, 4, v8")
    b("ds_read_b128 v[12:15], v10")
    b("v_cvt_pk_bf16_f32 v15, v15, v15")
    b("v_and_b32 v15, s52, v15")
    b("v_lshlrev_b32 v16, 16, v14")
    b("v_and_b32 v17, s52, v14")
    b("v_mul_f32 v18, v16, v16")
    b("v_mul_f32 v19, v17, v17")
    b("v_mul_f32 v20, v15, v15")
    b("v_cvt_pk_bf16_f32 v18, v18, v19")
    b("v_cvt_pk_bf16_f32 v20, v20, v20")
    b("v_and_b32 v19, s52, v18")
    b("v_lshlrev_b32 v18, 16, v18")
    b("v_and_b32 v20, s52, v20")
    b("v_add_f32 v18, v18, v19")
    b("v_add_f32 v18, v18, v20")
    b("v_cvt_pk_bf16_f32 v18, v18, v18")
    b("v_and_b32 v18, s52, v18")
    b("v_add_f32 v18, 0x322bcc77, v18")
    b("v_cvt_pk_bf16_f32 v18, v18, v18")
    b("v_and_b32 v18, s52, v18")
    b("v_sqrt_f32 v18, v18")
    b("v_mul_hi_u32 v21, v13, s55")
    b("v_mul_u32_u24 v21, s70, v21")
    b("v_add_u32 v21, 31, v21")
    b("v_lshrrev_b32 v21, 5, v21")
    b("v_lshlrev_b32 v44, 10, v12")
    b("v_sub_u32 v45, v13, v21")
    b("v_cvt_pk_bf16_f32 v18, v18, v18")
    b("v_and_b32 v18, s52, v18")
    b("v_rcp_f32 v19, v18")
    for k in range(4):
        b(f"v_mul_f32 v{22+k}, s{60+k}, v18")
    b("v_mul_f32 v26, 0x40490fdb, v18")
    b("v_cvt_pk_bf16_f32 v22, v22, v23")
    b("v_cvt_pk_bf16_f32 v24, v24, v25")
    b("v_cvt_pk_bf16_f32 v26, v26, v26")
    b("v_and_b32 v23, s52, v22")
    b("v_lshlrev_b32 v22, 16, v22")
    b("v_and_b32 v25, s52, v24")
    b("v_lshlrev_b32 v24, 16, v24")
    b("v_and_b32 v26, s52, v26")
    b("v_mul_f32 v26, 0x3e4ccccd, v26")
    b("v_cvt_pk_bf16_f32 v26, v26, v26")
    b("v_and_b32 v26, s52, v26")
    for k in range(5):
        b(f"v_mul_f32 v{22+k}, 0.15915494, v{22+k}")
    for k in range(5):
        b(f"v_rndne_f32 v{28+k}, v{22+k}")
    for k in range(5):
        b(f"v_sub_f32 v{22+k}, v{22+k}, v{28+k}")
    for k in range(4):
        b(f"v_sin_f32 v{22+k}, v{22+k}")
    b("v_cos_f32 v26, v26")
    b("v_mul_f32 v16, v16, v19")
    b("v_mul_f32 v17, v17, v19")
    b("v_mul_f32 v15, v15, v19")
    b("v_cvt_pk_bf16_f32 v46, v16, v17")
    b("v_cvt_pk_bf16_f32 v47, v15, 0")
    b("v_cvt_pk_bf16_f32 v22, v22, v23")
    b("v_cvt_pk_bf16_f32 v24, v24, v25")
    b("v_cvt_pk_bf16_f32 v26, v26, v26")
    b("v_and_b32 v23, s52, v22")
    b("v_lshlrev_b32 v22, 16, v22")
    b("v_and_b32 v25, s52, v24")
    b("v_lshlrev_b32 v24, 16, v24")
    b("v_and_b32 v26, s52, v26")
    for k in range(4):
        b(f"v_mul_f32 v{22+k}, v{22+k}, v19")
    b("v_add_f32 v26, 1.0, v26")
    b("v_cvt_pk_bf16_f32 v22, v22, v23")
    b("v_cvt_pk_bf16_f32 v24, v24, v25")
    b("v_cvt_pk_bf16_f32 v26, v26, v26")
    b("v_and_b32 v23, s52, v22")
    b("v_lshlrev_b32 v22, 16, v22")
    b("v_and_b32 v25, s52, v24")
    b("v_lshlrev_b32 v24, 16, v24")
    b("v_and_b32 v26, s52, v26")
    b("v_mul_f32 v26, 0.5, v26")
    b("v_mul_f32 v27, 0, v18")
    b("v_cmp_gt_f32 vcc, s71, v18")
    b("v_cndmask_b32 v26, v27, v26, vcc")
    for k in range(4):
        b(f"v_mul_f32 v{22+k}, v{22+k}, v26")
    b("v_cvt_pk_bf16_f32 v48, v22, v23")
    b("v_cvt_pk_bf16_f32 v49, v24, v25")
    b("v_lshlrev_b32 v28, 16, v48")
    b("v_and_b32 v29, s52, v48")
    b("v_lshlrev_b32 v30, 16, v49")
    b("v_and_b32 v31, s52, v49")
    for k in range(4):
        b(f"v_sub_f32 v{22+k}, v{22+k}, v{28+k}")
    b("v_cvt_pk_bf16_f32 v50, v22, v23")
    b("v_cvt_pk_bf16_f32 v51, v24, v25")
    b("v_lshlrev_b32 v11, 5, v8")
    b("buffer_store_dwordx4 v[44:47], v11, s[32:35], s69 offen " + st1)
    b("buffer_store_dwordx4 v[48:51], v11, s[32:35], s69 offen offset:16 " + st1)
    a.extend(schedule(b.ins)[0])
    a("v_add_u32 v8, 0x400, v8")
    a("s_add_u32 s72, s72, 0x400")
    a("s_branch K1_DENSE")
    a.label("K1_WEIGHTS")
    touch()
    a(f"s_cmp_lg_u32 s73, {G}")
    a("s_cbranch_scc1 K1_END")
    a("s_mov_b32 s64, 0x05040100")
    a("s_mov_b32 s65, 0x07060302")
    a("v_and_b32 v7, 15, v0")
    a("v_bfe_u32 v8, v0, 4, 2")
    a("s_cmp_ge_u32 s3, 12")
    a("s_cbranch_scc1 K1_WRBF")
    a("v_mul_u32_u24 v10, 6144, v8")
    a("v_lshl_add_u32 v10, v7, 4, v10")
    a("v_add_u32 v11, 3072, v10")
    a("s_and_b32 s55, s3, 3")
    a("s_lshr_b32 s57, s3, 2")
    a("s_mul_i32 s59, s55, 24576")
    a("s_lshl_b32 s60, s57, 8")
    a("s_add_u32 s59, s59, s60")
    for j in range(8):
        a(f"buffer_load_dwordx4 {q(12+4*j)}, v{10 + j//4}, s[40:43], s59 offen offset:{768*(j%4)}{NTW}")
    a("s_lshl_b32 s62, s57, 15")
    a("s_lshl_b32 s60, s55, 10")
    a("s_add_u32 s62, s62, s60")
    a("s_waitcnt vmcnt(0)")
    for T in range(8):
        o = 48 + 4 * T
        for jj in range(4):
            a(f"v_perm_b32 v{o+jj}, v{12+4*(2*jj+1)+T//2}, v{12+4*(2*jj)+T//2}, s{64+T%2}")
        a(f"buffer_store_dwordx4 {q(o)}, v9, s[32:35], s62 offen")
        a("s_add_u32 s62, s62, 0x1000")
    a("s_branch K1_END")
    a.label("K1_WRBF")
    a("s_cmp_lg_u32 s3, 12")
    a("s_cbranch_scc1 K1_END")
    for j in range(4):
        a(f"buffer_load_dwordx4 {q(12+4*j)}, v9, s[44:47], 0 offen offset:{768*j}")
    a("v_lshlrev_b32 v10, 10, v8")
    a("v_lshl_add_u32 v10, v7, 3, v10")
    a(f"s_mov_b32 s62, {WS_WR}")
    a("s_mov_b32 exec_hi, 0xffff")
    a("s_waitcnt vmcnt(0)")
    for T in range(8):
        o = 48 + 2 * T
        a(f"v_perm_b32 v{o}, v{16+T//2}, v{12+T//2}, s{64+T%2}")
        a(f"v_perm_b32 v{o+1}, v{24+T//2}, v{20+T//2}, s{64+T%2}")
        a(f"buffer_store_dwordx2 v[{o}:{o+1}], v10, s[32:35], s62 offen offset:{128*T}")
    a("s_branch K1_END")
    a.label("K1_HROLE")
    stamp()
    a("v_and_b32 v7, 15, v0")
    a("v_bfe_u32 v8, v0, 4, 2")
    a("s_cmp_ge_u32 s3, 7")
    a("s_cselect_b32 s56, 0, 8")
    a("s_cselect_b32 s57, 7, 0")
    a("s_sub_u32 s56, s2, s56")
    a("s_sub_u32 s57, s3, s57")
    a("s_mul_i32 s56, s56, 3125")
    a("s_add_u32 s56, s56, 31")
    a("s_lshr_b32 s56, s56, 5")
    a("s_lshl_b32 s57, s57, 4")
    a("s_add_u32 s57, s57, s56")
    a("s_lshl_b32 s58, s57, 10")
    a("v_lshlrev_b32 v11, 10, v7")
    a("v_lshl_add_u32 v11, v8, 4, v11")
    SA = 40
    a("s_cmp_ge_u32 s3, 4")
    a("s_cbranch_scc1 K1_NOW1")
    a("s_mov_b32 s64, 0x05040100")
    a("s_mov_b32 s65, 0x07060302")
    a("v_lshlrev_b32 v10, 11, v8")
    a("v_lshl_add_u32 v10, v7, 4, v10")
    a("s_lshl_b32 s59, s3, 13")
    WR_ = 56
    for j in range(8):
        a(f"buffer_load_dwordx4 {q(WR_+4*j)}, v10, s[36:39], s59 offen offset:{256*j}{NTW}")
    if early_s:
        for t in range(4):
            a(f"buffer_load_dwordx4 {q(SA+4*t)}, v11, s[84:87], s58 offen offset:{64*t}{NTS}")
    a("s_lshl_b32 s59, s3, 10")
    a("v_add_u32 v28, s59, v9")
    a(f"s_waitcnt vmcnt({4 if early_s else 0})")
    for T in range(8):
        o = 88 + 4 * T
        for jj in range(4):
            a(f"v_perm_b32 v{o+jj}, v{WR_+4*(2*jj+1)+T//2}, v{WR_+4*(2*jj)+T//2}, s{64+T%2}")
        a(f"ds_write_b128 v28, {q(o)} offset:{4096*T}")
    a("s_branch K1_W1DONE")
    a.label("K1_NOW1")
    if early_s:
        a("s_cmp_ge_u32 s3, 14")
        a("s_cbranch_scc1 K1_W1DONE")
        for t in range(4):
            a(f"buffer_load_dwordx4 {q(SA+4*t)}, v11, s[84:87], s58 offen offset:{64*t}{NTS}")
    a.label("K1_W1DONE")
    stamp()
    a("s_barrier")
    stamp()
    a("s_cmp_ge_u32 s3, 14")
    a("s_cbranch_scc1 K1_FIN")
    if not early_s:
        for t in range(4):
            a(f"buffer_load_dwordx4 {q(SA+4*t)}, v11, s[84:87], s58 offen offset:{64*t}{NTS}")
    if pf:
        a("s_waitcnt vmcnt(0)")
    touch()
    b = Asm()
    RING = [56 + 4 * i for i in range(4)]
    D0 = 72
    TM = 12
    OUT = 104
    kf = [0]

    def pfw():
        if kf[0] < 32:
            b(f"ds_read_b128 {q(RING[kf[0] % 4])}, v9 offset:{1024*kf[0]}")
            kf[0] += 1
    for _ in range(4):
        pfw()
    b(f"s_waitcnt vmcnt({1 if pf else 0})", guards=[f"v{SA+i}" for i in range(16)])
    k = 0
    for T in range(8):
        D = D0 + 4 * T
        for t in range(4):
            c = "0" if t == 0 else q(D)
            b(f"v_mfma_f32_16x16x32_bf16 {q(D)}, {q(SA+4*t)}, {q(RING[k % 4])}, {c}")
            k += 1
            pfw()
        for r in range(4):
            t = TM + (4 * T + r) % 16
            b(f"v_mul_f32 v{t}, 0xbfb8aa3b, v{D+r}")
            b(f"v_exp_f32 v{t}, v{t}")
            b(f"v_add_f32 v{t}, 1.0, v{t}")
            b(f"v_rcp_f32 v{t}, v{t}")
            b(f"v_mul_f32 v{D+r}, v{D+r}, v{t}")
        if T % 2 == 1:
            for r in range(4):
                b(f"v_cvt_pk_bf16_f32 v{OUT+4*r+T//2}, v{D-4+r}, v{D+r}")
    b("v_lshlrev_b32 v30, 10, v8")
    b("v_lshl_add_u32 v30, v7, 4, v30")
    b("s_lshl_b32 s58, s57, 8")
    for r in range(4):
        b(f"buffer_store_dwordx4 {q(OUT+4*r)}, v30, s[88:91], s58 offen offset:{256*r} {st1}")
    sch, tt = schedule(b.ins)
    print("K1 H tile: %d instructions, modelled %d cycles" % (len(sch), tt))
    a.extend(sch)
    a.label("K1_FIN")
    if stamps:
        stamp()
        a("s_waitcnt vmcnt(0)")
        stamp()
        a("s_mov_b64 exec, 0xffff")
        a("v_lshlrev_b32 v124, 2, v6")
        a("v_add_u32 v125, s79, v124")
        a("ds_read_b32 v126, v125")
        a("s_lshl_b32 s74, s2, 4")
        a("s_add_u32 s74, s74, s3")
        a("s_lshl_b32 s74, s74, 6")
        a(f"s_add_u32 s74, s74, {WS_STAMP1}")
        a("buffer_store_dword v126, v124, s[32:35], s74 offen")
    a.label("K1_END")
    a("s_endpgm")
    return a
```

```python
from asmlib import Asm, Ins, schedule
from gen3_k1 import N, G, EPG, WS_W2, WS_WR, WS_WEND, WS_DESC, WS_REC, WS_H, WS_SIZE, WS_STAMP2, srd, wave_scan

L_W2 = 0
L_WR = 98304
L_CNT = 102400
L_P = L_CNT + 512
L_FLAG = L_P + 576
L_REC = L_FLAG + 64
CAP = 400
RSLOW = 1
L_OWN = L_REC + (CAP + 16) * 32
NL = 44
L_STAMP = L_OWN + NL * 1024
K2_LDS = L_STAMP + 1024
assert K2_LDS <= 163840 and L_OWN % 16 == 0
RMAX = 8

sWAVE = 3
SRD_SV, SRD_OUT, SRD_WS, SRD_OWN, SRD_H = 12, 16, 20, 24, 96
sM, sBASE, sNB, sJ0, sR, sTOT, sROUND, sMORE = 28, 29, 30, 31, 32, 33, 34, 35
cN0, cNN, cEB, cNE, cE1, cOFF = 36, 37, 38, 39, 40, 41
nN0, nNN, nEB, nNE, nE1, nOFF = 42, 43, 44, 45, 46, 47
sT0, sT1, sT2, sPOS = 48, 49, 50, 51
sLO, sONE2, sSELL, sSELH = 52, 53, 54, 55
sQLT2 = 56
sCE32, sNE32 = 58, 59
sMK = 60
NMK = 16
nSRC = 92
sST = 94
sHW = 0
sSIG = 1
sL0 = 100
nLDS = 101

vLANE, vWB0, vWB1, vWR, vE, vQ4, vQ16, vN16, vRECE, vRECQ, vRB, vTA, vTB, vOWN0, v2Q, vNEXT, vP, vOOB = range(1, 19)
vOA0, vOA1 = 19, 20
vVA = 22
vHA = 26
vRBOP = 28
vID = 30
H0 = 32
V0 = 48
OWN0 = 96
SOP = 128
MS0 = 144
MVR0 = 160
MVV0 = 176
WRING = 208
NRING = 6
PH0 = 232
WF0 = 240
WRF0 = 248


def q(base):
    return f"v[{base}:{base+3}]"


def d(base):
    return f"v[{base}:{base+1}]"


def Vq(x, r):
    return V0 + 16 * x + 4 * r


def Oq(c, h):
    return OWN0 + 8 * c + 4 * h


def advance(a):
    a(f"s_lshr_b32 s{sT0}, s{sPOS}, 1")
    a(f"v_readlane_b32 s{sT1}, v{vNEXT}, s{sT0}")
    a(f"s_and_b32 s{sT2}, s{sPOS}, 1")
    a(f"s_lshl_b32 s{sT2}, s{sT2}, 3")
    a(f"s_lshr_b32 s{sT1}, s{sT1}, s{sT2}")
    a(f"s_and_b32 s{sPOS}, s{sT1}, 0xff")


def lookup_p(a, dst):
    a(f"s_lshr_b32 s{sT0}, s{sPOS}, 1")
    a(f"v_readlane_b32 s{sT1}, v{vP}, s{sT0}")
    a(f"s_and_b32 s{sT2}, s{sPOS}, 1")
    a(f"s_lshl_b32 s{sT2}, s{sT2}, 4")
    a(f"s_lshr_b32 s{sT1}, s{sT1}, s{sT2}")
    a(f"s_and_b32 s{dst}, s{sT1}, 0xffff")


def build_next_job(a):
    a(f"s_mov_b32 s{nN0}, s{sPOS}")
    lookup_p(a, nEB)
    advance(a)
    lookup_p(a, nE1)
    a(f"s_sub_u32 s{nNN}, s{sPOS}, s{nN0}")
    a(f"s_add_u32 s{nOFF}, s{nN0}, s{sBASE}")
    a(f"s_lshl_b32 s{nOFF}, s{nOFF}, 10")
    a(f"s_cmp_eq_u32 s{sROUND}, 0")
    a(f"s_cselect_b32 s{nSRC}, s4, s6")
    a(f"s_cselect_b32 s{nSRC+1}, s5, s7")
    a(f"s_cselect_b32 s{nLDS}, 1, 0")
    a(f"s_cmp_ge_u32 s{nN0}, s{sL0}")
    a(f"s_cselect_b32 s{nLDS}, s{nLDS}, 0")


def next_ne(a):
    a(f"s_sub_u32 s{nNE}, s{nE1}, s{nEB}")
    a(f"s_min_u32 s{nNE}, s{nNE}, 16")
    a(f"s_lshl_b32 s{sNE32}, s{nEB}, 5")


class MaskAlloc:
    def __init__(self):
        self.k = 0

    def __call__(self):
        r = sMK + 2 * (self.k % NMK)
        self.k += 1
        return f"s[{r}:{r+1}]"


def emit_h_addr(a, mk, t):
    a(f"v_add_u32 v{t}, s{sNE32}, v{vRECE}")
    a(f"ds_read_b32 v{vHA}, v{t}")
    m = mk()
    a(f"v_cmp_gt_u32_e64 {m}, s{nNE}, v{vE}")
    a(f"v_lshrrev_b32 v{vHA}, 2, v{vHA}")
    a(f"v_add_u32 v{vHA}, v{vHA}, v{vQ16}")
    a(f"v_cndmask_b32_e64 v{vHA}, v{vOOB}, v{vHA}, {m}")


def emit_h_loads(a):
    for t in range(4):
        a(f"buffer_load_dwordx4 {q(H0+4*t)}, v{vHA}, s[{SRD_H}:{SRD_H+3}], 0 offen offset:{64*t}")


def emit_own_addr(a, mk, t):
    m = mk()
    a(f"v_cmp_gt_u32_e64 {m}, s{cNN}, v{v2Q}")
    a(f"v_cndmask_b32_e64 v{vOA0}, v{vOOB}, v{vOWN0}, {m}")
    m = mk()
    a(f"v_add_u32 v{t[0]}, 1, v{v2Q}")
    a(f"v_add_u32 v{t[1]}, 0x400, v{vOWN0}")
    a(f"v_cmp_gt_u32_e64 {m}, s{cNN}, v{t[0]}")
    a(f"v_cndmask_b32_e64 v{vOA1}, v{vOOB}, v{t[1]}, {m}")


def emit_v_loads(a):
    for c in range(1, 4):
        for r in range(4):
            a(f"buffer_load_dwordx4 {q(Vq(c-1,r))}, v{vVA+r}, s[{SRD_SV}:{SRD_SV+3}], 0 offen offset:{256*c}{NTV}")


def emit_own_loads(a):
    for c in range(4):
        for h, va in ((0, vOA0), (1, vOA1)):
            a(f"buffer_load_dwordx4 {q(Oq(c,h))}, v{va}, s[{SRD_OWN}:{SRD_OWN+3}], s{cOFF} offen offset:{256*c}{NTO}")


def emit_comp_stores(a, c):
    for h, va in ((0, vOA0), (1, vOA1)):
        a(f"buffer_store_dwordx4 {q(Oq(c,h))}, v{va}, s[{SRD_OUT}:{SRD_OUT+3}], s{cOFF} offen offset:{256*c}{NT}")


NT = ""
NTV = ""
NTO = ""


def comp_wait(a, c):
    regs = [f"v{Oq(c,h)+i}" for h in range(2) for i in range(4)]
    if c > 0:
        regs += [f"v{Vq(c-1,r)+i}" for r in range(4) for i in range(4)]
    a(f"s_waitcnt vmcnt({(16, 14, 12, 10)[c]})", guards=regs)


def wfrag(a, k, ring):
    off = k * 1024
    base = vWB0 if off < 65536 else vWB1
    a(f"ds_read_b128 {q(ring)}, v{base} offset:{off % 65536}")


def item_block(memonly=False):
    a = Asm()
    mk = MaskAlloc()
    T = list(range(MVV0, MVV0 + 32))
    MK = [MS0 + i for i in range(4)]
    PR = [MS0 + 4 + i for i in range(6)]
    a(f"v_add_u32 v{T[16]}, s{sCE32}, v{vRB}")
    a(f"v_add_u32 v{T[17]}, s{sCE32}, v{vRECQ}")
    for r in range(4):
        a(f"ds_read_b128 {q(T[4*r])}, v{T[17]} offset:{32*r}")
    a(f"ds_read_b64 {d(vRBOP)}, v{T[16]}")
    ring = [WRING + 4 * i for i in range(NRING)]
    kf = [0]

    def prefetch():
        if kf[0] < 96:
            wfrag(a, kf[0], ring[kf[0] % NRING])
            kf[0] += 1

    if not memonly:
        for _ in range(NRING):
            prefetch()
    for r in range(4):
        m = mk()
        a(f"v_add_u32 v{T[18+r]}, {r}, v{vQ4}")
        a(f"v_cmp_gt_u32_e64 {m}, s{cNE}, v{T[18+r]}")
        a(f"v_add_u32 v{vVA+r}, v{T[4*r]}, v{vN16}")
        a(f"v_cndmask_b32_e64 v{vVA+r}, v{vOOB}, v{vVA+r}, {m}")
        a(f"v_subrev_u32 v{T[4*r+1]}, s{cN0}, v{T[4*r+1]}")
        a(f"v_cndmask_b32_e64 v{T[4*r+1]}, -2, v{T[4*r+1]}, {m}")
    emit_v_loads(a)
    if memonly:
        emit_h_addr(a, mk, T[16])
        emit_h_loads(a)
        for c in range(4):
            comp_wait(a, c)
            emit_comp_stores(a, c)
        return a
    m = mk()
    a(f"v_cmp_gt_u32_e64 {m}, s{cNE}, v{vE}")
    a(f"s_and_b64 {m}, {m}, s[{sQLT2}:{sQLT2+1}]")
    a(f"v_cndmask_b32_e64 v{vRBOP}, 0, v{vRBOP}, {m}")
    a(f"v_cndmask_b32_e64 v{vRBOP+1}, 0, v{vRBOP+1}, {m}")
    for side, tgt in ((0, vTA), (1, vTB)):
        for pr in range(2):
            ts = []
            for r in (2 * pr, 2 * pr + 1):
                m = mk()
                t = T[22 + 4 * side + r]
                a(f"v_cmp_eq_u32_e64 {m}, v{T[4*r+1]}, v{tgt}")
                a(f"v_cndmask_b32_e64 v{t}, 0, -1, {m}")
                ts.append(t)
            a(f"v_bfi_b32 v{MK[2*side+pr]}, s{sLO}, v{ts[0]}, v{ts[1]}")
    for pr in range(2):
        r0, r1 = 2 * pr, 2 * pr + 1
        a(f"v_perm_b32 v{PR[0+pr]}, v{T[4*r1+2]}, v{T[4*r0+2]}, s{sSELL}")
        a(f"v_perm_b32 v{PR[2+pr]}, v{T[4*r1+2]}, v{T[4*r0+2]}, s{sSELH}")
        a(f"v_perm_b32 v{PR[4+pr]}, v{T[4*r1+3]}, v{T[4*r0+3]}, s{sSELL}")
    AS = SOP
    for i in range(4):
        a(f"v_and_b32 v{AS+i}, s{sONE2}, v{MK[i]}")
    for x in range(3):
        for i in range(4):
            a(f"v_and_b32 v{AS+4+4*x+i}, v{MK[i]}, v{PR[2*x+(i%2)]}")
    emit_h_addr(a, mk, 27)
    k = 0
    order = ORDER
    for ci, c in enumerate(order):
        Gi, Ti = c // 8, c % 8
        PH = PH0 + 4 * (ci % 2)
        WF = WF0 + 4 * (ci % 2)
        WRF = WRF0 + 2 * (ci % 2)
        a(f"ds_read_b64 {d(WRF)}, v{vWR} offset:{128*c}")
        for t in range(4):
            cc = "0" if t == 0 else q(PH)
            a(f"v_mfma_f32_16x16x32_bf16 {q(PH)}, {q(H0+4*t)}, {q(ring[k % NRING])}, {cc}")
            k += 1
            prefetch()
        a(f"v_mfma_f32_16x16x16_bf16 {q(WF)}, {d(vRBOP)}, {d(WRF)}, 0")
        if Gi == 1:
            for r in range(4):
                a(f"v_mul_f32 v{MVV0+4*Ti+r}, v{PH+r}, v{WF+r}")
        else:
            for r in range(4):
                a(f"v_mul_f32 v{WF+r}, v{PH+r}, v{WF+r}")
            dst = (MS0 if Gi == 0 else MVR0) + 2 * Ti
            a(f"v_cvt_pk_bf16_f32 v{dst}, v{WF}, v{WF+1}")
            a(f"v_cvt_pk_bf16_f32 v{dst+1}, v{WF+2}, v{WF+3}")
    emit_h_loads(a)
    U = [WRING, WRING + 16]
    BB = [240, 244]
    CD = [248, 252]
    it = 0
    ub = 0
    for c in range(4):
        comp_wait(a, c)
        for pp in range(2):
            if c > 0:
                x = c - 1
                u = U[ub % 2]
                ub += 1
                for r in range(4):
                    a(f"v_mfma_f32_16x16x16_bf16 {q(u+4*r)}, {d(vID)}, {d(Vq(x,r)+2*pp)}, 0")
                for r in range(4):
                    for j in range(4):
                        a(f"v_mul_f32 v{u+4*r+j}, v{u+4*r+j}, v{MVV0+4*(4*pp+j)+r}")
            for p in (2 * pp, 2 * pp + 1):
                C = CD[it % 2]
                o0, o1 = Oq(c, 0) + p, Oq(c, 1) + p
                a(f"v_lshlrev_b32 v{C}, 16, v{o0}")
                a(f"v_lshlrev_b32 v{C+1}, 16, v{o1}")
                a(f"v_and_b32 v{C+2}, s{sM}, v{o0}")
                a(f"v_and_b32 v{C+3}, s{sM}, v{o1}")
                if c == 0:
                    a(f"v_mfma_f32_16x16x32_bf16 {q(C)}, {q(AS)}, {q(MS0+4*p)}, {q(C)}")
                else:
                    B = BB[it % 2]
                    j0 = 2 * (p % 2)
                    a(f"v_cvt_pk_bf16_f32 v{B}, v{u+j0}, v{u+4+j0}")
                    a(f"v_cvt_pk_bf16_f32 v{B+1}, v{u+8+j0}, v{u+12+j0}")
                    a(f"v_cvt_pk_bf16_f32 v{B+2}, v{u+j0+1}, v{u+4+j0+1}")
                    a(f"v_cvt_pk_bf16_f32 v{B+3}, v{u+8+j0+1}, v{u+12+j0+1}")
                    a(f"v_mfma_f32_16x16x32_bf16 {q(C)}, {q(AS+4+4*x)}, {q(MVR0+4*p)}, {q(C)}")
                    a(f"v_mfma_f32_16x16x32_bf16 {q(C)}, {q(AS)}, {q(B)}, {q(C)}")
                a(f"v_cvt_pk_bf16_f32 v{o0}, v{C}, v{C+2}")
                a(f"v_cvt_pk_bf16_f32 v{o1}, v{C+1}, v{C+3}")
                it += 1
        emit_comp_stores(a, c)
    return a


ORDER = list(range(16, 24)) + list(range(0, 8)) + list(range(8, 16))
_wfrag_plain = wfrag


def wfrag(a, k, ring):
    c = ORDER[k // 4]
    _wfrag_plain(a, 4 * c + k % 4, ring)


def gen_k2(do_sched=True, stamps=False, memonly=False, window=8, early=14, ownpf=0, nt=False, ntv=False, nto=False, nomem=False, prio=0):
    a = Asm()
    global NT, NTV, NTO
    NT = " nt" if nt else ""
    NTV = " nt" if ntv else ""
    NTO = " nt" if nto else ""

    def stamp():
        if not stamps:
            return
        a("s_memtime s[10:11]")
        a("s_waitcnt lgkmcnt(0)")
        a("v_mov_b32 v252, s10")
        a(f"v_mov_b32 v253, s{sST}")
        a("ds_write_b32 v253, v252")
        a(f"s_add_u32 s{sST}, s{sST}, 4")

    a.label("message_kernel")
    a("s_cmp_ge_u32 s2, 256")
    a("s_cbranch_scc1 K2_END")
    if stamps:
        a("v_lshrrev_b32 v252, 6, v0")
        a(f"v_readfirstlane_b32 s{sST}, v252")
        a(f"s_lshl_b32 s{sST}, s{sST}, 7")
        a(f"s_add_u32 s{sST}, s{sST}, {L_STAMP}")
        a(f"s_mov_b32 s{sST+1}, s{sST}")
        a("v_and_b32 v252, 31, v0")
        a("v_lshlrev_b32 v252, 2, v252")
        a(f"v_add_u32 v252, s{sST}, v252")
        a("v_mov_b32 v253, 0")
        a("ds_write_b32 v252, v253")
        stamp()
    a("s_load_dwordx2 s[4:5], s[0:1], 0")
    a("s_load_dwordx2 s[6:7], s[0:1], 64")
    a("s_load_dwordx2 s[8:9], s[0:1], 80")
    a("v_lshrrev_b32 v32, 6, v0")
    a(f"v_and_b32 v{vLANE}, 63, v0")
    a(f"v_readfirstlane_b32 s{sWAVE}, v32")
    a(f"v_lshlrev_b32 v{vWB0}, 4, v{vLANE}")
    a(f"v_mov_b32 v{vOOB}, 0x40000000")
    a(f"s_mul_i32 s{sBASE}, s2, 3125")
    a(f"s_add_u32 s{sNB}, s{sBASE}, {3125+31}")
    a(f"s_add_u32 s{sBASE}, s{sBASE}, 31")
    a(f"s_lshr_b32 s{sBASE}, s{sBASE}, 5")
    a(f"s_lshr_b32 s{sNB}, s{sNB}, 5")
    a(f"s_sub_u32 s{sNB}, s{sNB}, s{sBASE}")
    a(f"s_sub_u32 s{sL0}, s{sNB}, {NL}")
    a(f"s_mov_b32 s{sJ0}, 0")
    a(f"s_mov_b32 s{sR}, {RMAX}")
    a(f"s_mov_b32 s{sROUND}, 0")

    def desc_load():
        a("v_lshrrev_b32 v33, 1, v0")
        a("v_lshlrev_b32 v33, 10, v33")
        a(f"v_cmp_gt_u32 vcc, {2*G}, v0")
        a(f"v_cndmask_b32 v33, v{vOOB}, v33, vcc")
        a(f"s_lshl_b32 s{sT0}, s2, 2")
        a(f"s_add_u32 s{sT0}, s{sT0}, {WS_DESC}")
        a(f"buffer_load_dword v34, v33, s[{SRD_WS}:{SRD_WS+3}], s{sT0} offen")

    def zero_counters():
        a("v_lshlrev_b32 v36, 2, v0")
        a(f"v_add_u32 v36, {L_CNT}, v36")
        a("v_mov_b32 v37, 0")
        a(f"v_mov_b32 v38, {L_FLAG}")
        a("v_cmp_gt_u32 vcc, 0x80, v0")
        a(f"s_and_saveexec_b64 s[{sMK}:{sMK+1}], vcc")
        a("ds_write_b32 v36, v37")
        a("ds_write_b32 v38, v37")
        a("ds_write_b32 v38, v37 offset:4")
        a("s_mov_b64 exec, -1")

    zero_counters()
    a("s_waitcnt lgkmcnt(0)")
    a(f"s_cmp_ge_u32 s{sWAVE}, 4")
    a(f"s_cselect_b32 s{sSIG}, 1, 0")
    srd(a, SRD_WS, 8, WS_SIZE)
    srd(a, SRD_SV, 4, N * 1024)
    srd(a, SRD_OUT, 6, N * 1024)
    srd(a, SRD_OWN, 4, N * 1024)
    a(f"s_add_u32 s{SRD_H}, s8, {WS_H}")
    a(f"s_addc_u32 s{SRD_H+1}, s9, 0")
    a(f"s_mov_b32 s{SRD_H+2}, {N*256}")
    a(f"s_mov_b32 s{SRD_H+3}, 0x00020000")
    if nomem:
        for r in (SRD_H, SRD_SV, SRD_OUT, SRD_OWN):
            a(f"s_mov_b32 s{r+2}, 0")
    a(f"s_cmp_ge_u32 s{sWAVE}, 4")
    a("s_cbranch_scc1 K2_NODESC")
    desc_load()
    a.label("K2_NODESC")
    a("s_barrier")
    stamp()
    a(f"v_add_u32 v{vWB1}, 0x10000, v{vWB0}")
    a(f"v_and_b32 v{vE}, 15, v{vLANE}")
    a(f"v_lshrrev_b32 v35, 4, v{vLANE}")
    a(f"v_lshlrev_b32 v{vWR}, 3, v{vE}")
    a(f"v_add_u32 v{vWR}, {L_WR}, v{vWR}")
    a(f"v_lshlrev_b32 v{vQ4}, 2, v35")
    a(f"v_lshlrev_b32 v{vQ16}, 4, v35")
    a(f"v_lshlrev_b32 v{vN16}, 4, v{vE}")
    a(f"v_lshlrev_b32 v{vRECE}, 5, v{vE}")
    a(f"v_add_u32 v{vRECE}, {L_REC}, v{vRECE}")
    a(f"v_lshlrev_b32 v{vRECQ}, 7, v35")
    a(f"v_add_u32 v{vRECQ}, {L_REC}, v{vRECQ}")
    a("v_and_b32 v36, 1, v35")
    a(f"v_lshl_add_u32 v{vRB}, v36, 3, v{vRECE}")
    a(f"v_add_u32 v{vRB}, 16, v{vRB}")
    a(f"v_lshlrev_b32 v{v2Q}, 1, v35")
    a(f"v_lshl_add_u32 v{vOWN0}, v35, 11, v{vN16}")
    a(f"v_lshrrev_b32 v36, 2, v{vE}")
    a(f"v_and_b32 v37, 1, v{vE}")
    a("v_lshl_add_u32 v39, v36, 1, v37")
    a(f"v_and_b32 v40, 2, v{vE}")
    a("v_cmp_eq_u32 vcc, 0, v40")
    a(f"v_cndmask_b32 v{vTA}, -1, v39, vcc")
    a(f"v_cndmask_b32_e64 v{vTB}, v39, -1, vcc")
    a("v_lshlrev_b32 v37, 4, v37")
    a("v_mov_b32 v41, 0x3f80")
    a("v_lshlrev_b32 v41, v37, v41")
    a(f"v_cmp_eq_u32_e64 s[{sMK}:{sMK+1}], v36, v35")
    a(f"v_cndmask_b32_e64 v41, 0, v41, s[{sMK}:{sMK+1}]")
    a(f"v_cndmask_b32 v{vID}, 0, v41, vcc")
    a(f"v_cndmask_b32_e64 v{vID+1}, v41, 0, vcc")
    a(f"v_cmp_gt_u32_e64 s[{sQLT2}:{sQLT2+1}], 32, v{vLANE}")
    a(f"s_mov_b32 s{sM}, 0xffff0000")
    a(f"s_mov_b32 s{sLO}, 0xffff")
    a(f"s_mov_b32 s{sONE2}, 0x3f803f80")
    a(f"s_mov_b32 s{sSELL}, 0x05040100")
    a(f"s_mov_b32 s{sSELH}, 0x07060302")
    a(f"s_cmp_lt_u32 s{sWAVE}, 4")
    a("s_cbranch_scc1 K2_ROUND")
    a(f"s_sub_u32 s{sT1}, s{sWAVE}, 4")
    a(f"s_lshr_b32 s{sT0}, s2, 3")
    a(f"s_mul_i32 s{sT0}, s{sT0}, 3")
    a(f"s_mov_b32 s{sT2}, 0x0a3d70a4")
    a(f"s_mul_hi_u32 s{sT2}, s{sT0}, s{sT2}")
    a(f"s_mul_i32 s{sT2}, s{sT2}, 25")
    a(f"s_sub_u32 s{sT0}, s{sT0}, s{sT2}")
    a(f"s_lshl_b32 s{sT0}, s{sT0}, 2")
    a(f"s_add_u32 s{sT0}, s{sT0}, s{sT1}")
    a(f"s_lshl_b32 m0, s{sT0}, 10")
    a(f"s_lshl_b32 s{sT1}, s{sT1}, 10")
    def wdma(i0, i1):
        for i in range(i0, i1):
            a(f"buffer_load_dwordx4 v{vWB0}, s[{SRD_WS}:{SRD_WS+3}], m0 offen lds")
            a("s_add_u32 m0, m0, 0x1000")
            a(f"s_cmp_ge_u32 m0, {100*1024}")
            a(f"s_cselect_b32 m0, s{sT1}, m0")
            if window and window <= i < early:
                a(f"s_waitcnt vmcnt({window})")
    if ownpf:
        a(f"s_lshl_b32 s{sT0}, s{sBASE}, 10")
        a(f"s_lshl_b32 s{sT2}, s{sT1}, 3")
        a(f"s_add_u32 s{sT0}, s{sT0}, s{sT2}")
        a(f"v_lshlrev_b32 v200, 7, v{vLANE}")
        a(f"buffer_load_dword v204, v200, s[{SRD_SV}:{SRD_SV+3}], s{sT0} offen nt")
        a(f"s_add_u32 s{sT0}, s{sT0}, 0x8000")
        a(f"s_cmp_eq_u32 s{sWAVE}, 7")
        a(f"s_cselect_b32 s{sT0}, 0x40000000, s{sT0}")
        a(f"buffer_load_dword v204, v200, s[{SRD_SV}:{SRD_SV+3}], s{sT0} offen nt")
    wdma(0, early)
    a("s_barrier")
    wdma(early, 25)
    a(f"s_add_u32 s{sT0}, s{sBASE}, s{sL0}")
    a(f"s_lshl_b32 s{sT0}, s{sT0}, 10")
    a(f"s_add_u32 s{sT0}, s{sT0}, s{sT1}")
    a(f"s_add_u32 m0, s{sT1}, {L_OWN}")
    for i in range(NL // 4):
        a(f"buffer_load_dwordx4 v{vWB0}, s[{SRD_SV}:{SRD_SV+3}], s{sT0} offen nt lds")
        a("s_add_u32 m0, m0, 0x1000")
        a(f"s_add_u32 s{sT0}, s{sT0}, 0x1000")
    a("s_branch K2_AFTER_BAR1")
    a.label("K2_ROUND")
    a(f"s_cmp_ge_u32 s{sWAVE}, 4")
    a("s_cbranch_scc1 K2_AFTER_REC")
    REC = 64
    RK = 40
    AD = 48
    a("s_waitcnt vmcnt(0)")
    stamp()
    a("v_and_b32 v35, 0xffff, v34")
    a("v_lshrrev_b32 v36, 16, v34")
    a("v_and_b32 v37, 1, v0")
    a("v_sub_u32 v36, v36, v37")
    a("v_add_u32 v36, 1, v36")
    a("v_lshrrev_b32 v36, 1, v36")
    a(f"v_subrev_u32 v36, s{sJ0}, v36")
    a("v_max_i32 v36, 0, v36")
    a(f"v_cmp_lt_u32 vcc, s{sR}, v36")
    a(f"v_min_u32 v36, s{sR}, v36")
    a("v_lshrrev_b32 v39, 1, v0")
    a(f"v_mul_u32_u24 v39, {EPG}, v39")
    a("v_add3_u32 v39, v39, v35, v37")
    a(f"s_lshl_b32 s{sT0}, s{sJ0}, 1")
    a(f"v_add_u32 v39, s{sT0}, v39")
    a("v_lshlrev_b32 v39, 5, v39")
    a("v_mov_b32 v37, 1")
    a(f"v_mov_b32 v38, {L_FLAG}")
    a(f"s_and_saveexec_b64 s[{sMK}:{sMK+1}], vcc")
    a("ds_write_b32 v38, v37")
    a("s_mov_b64 exec, -1")
    a(f"s_mov_b32 s{sT0}, {WS_REC}")
    for j in range(RMAX):
        a(f"v_cmp_lt_u32 vcc, {j}, v36")
        a("s_and_b64 exec, exec, vcc")
        a("s_cbranch_execz K2_REC_ISSUED")
        a(f"buffer_load_dwordx4 {q(REC+8*j)}, v39, s[{SRD_WS}:{SRD_WS+3}], s{sT0} offen offset:{64*j}")
        a(f"buffer_load_dwordx4 {q(REC+8*j+4)}, v39, s[{SRD_WS}:{SRD_WS+3}], s{sT0} offen offset:{64*j+16}")
    a.label("K2_REC_ISSUED")
    a("s_mov_b64 exec, -1")
    a(f"s_mov_b32 s{sT0}, {L_CNT}")
    a("s_waitcnt vmcnt(0)")
    stamp()
    for j in range(RMAX):
        a(f"v_cmp_lt_u32 vcc, {j}, v36")
        a("s_and_b64 exec, exec, vcc")
        a("s_cbranch_execz K2_AFTER_REC")
        a(f"v_lshl_add_u32 v{AD+j}, v{REC+8*j+1}, 2, s{sT0}")
        a(f"ds_add_rtn_u32 v{RK+j}, v{AD+j}, v37 ; NOWAIT")
    a.label("K2_AFTER_REC")
    a("s_mov_b64 exec, -1")
    a("s_waitcnt lgkmcnt(0)")
    a("s_barrier")
    a.label("K2_AFTER_BAR1")
    stamp()
    SC = 176
    a(f"v_lshlrev_b32 v{SC}, 3, v{vLANE}")
    a(f"v_add_u32 v{SC}, {L_CNT}, v{SC}")
    a(f"v_mov_b32 v{SC+1}, {L_FLAG}")
    a(f"ds_read_b64 v[{SC+2}:{SC+3}], v{SC}")
    a(f"ds_read_b32 v{SC+1}, v{SC+1}")
    a(f"v_add_u32 v{SC+4}, v{SC+2}, v{SC+3}")
    a(f"v_mov_b32 v{SC+5}, v{SC+4}")
    wave_scan(a, SC + 5)
    a(f"v_sub_u32 v{SC+6}, v{SC+5}, v{SC+4}")
    a(f"v_add_u32 v{SC+7}, v{SC+6}, v{SC+2}")
    a(f"v_readlane_b32 s{sTOT}, v{SC+5}, 63")
    a(f"v_readfirstlane_b32 s{sMORE}, v{SC+1}")
    a(f"ds_write_b64 v{SC}, v[{SC+6}:{SC+7}] offset:{L_P-L_CNT}")
    a(f"v_lshl_or_b32 v{vP}, v{SC+7}, 16, v{SC+6}")
    a(f"s_cmp_le_u32 s{sTOT}, {CAP}")
    a("s_cbranch_scc1 K2_FITS")
    a(f"s_mov_b32 s{sR}, {RSLOW}")
    a("s_barrier")
    zero_counters()
    a("s_barrier")
    a("s_branch K2_ROUND")
    a.label("K2_FITS")
    for i in range(1, 5):
        a(f"ds_read_b64 v[{SC+6+2*i}:{SC+7+2*i}], v{SC} offset:{L_P-L_CNT+8*i} ; NOWAIT")
    a(f"s_cmp_ge_u32 s{sWAVE}, 4")
    a("s_cbranch_scc1 K2_SCATTERED")
    for j in range(RMAX):
        a(f"v_cmp_lt_u32 vcc, {j}, v36")
        a("s_and_b64 exec, exec, vcc")
        a("s_cbranch_execz K2_PREAD")
        a(f"ds_read_b32 v{AD+j}, v{AD+j} offset:{L_P-L_CNT} ; NOWAIT")
    a.label("K2_PREAD")
    a("s_mov_b64 exec, -1")
    a("s_waitcnt lgkmcnt(0)")
    for j in range(RMAX):
        a(f"v_cmp_lt_u32 vcc, {j}, v36")
        a("s_and_b64 exec, exec, vcc")
        a("s_cbranch_execz K2_SCATTERED")
        a(f"v_add_lshl_u32 v{AD+j}, v{AD+j}, v{RK+j}, 5")
        a(f"v_add_u32 v{AD+j}, {L_REC}, v{AD+j}")
        a(f"ds_write_b128 v{AD+j}, {q(REC+8*j)} ; NOWAIT")
        a(f"ds_write_b128 v{AD+j}, {q(REC+8*j+4)} offset:16 ; NOWAIT")
    a.label("K2_SCATTERED")
    a("s_mov_b64 exec, -1")
    a("s_waitcnt lgkmcnt(0)")
    PV = SC + 6
    for h in range(2):
        lim, cnt = SC + 20 + 2 * h, SC + 21 + 2 * h
        a(f"v_add_u32 v{lim}, 16, v{PV+h}")
        a(f"v_mov_b32 v{cnt}, 0")
        for k in range(1, 9):
            a(f"v_cmp_le_u32_e64 s[{sMK+2*k}:{sMK+2*k+1}], v{PV+h+k}, v{lim}")
        for k in range(1, 9):
            a(f"v_addc_co_u32_e64 v{cnt}, vcc, 0, v{cnt}, s[{sMK+2*k}:{sMK+2*k+1}]")
        a(f"v_max_u32 v{cnt}, 1, v{cnt}")
        a(f"v_lshl_add_u32 v{cnt}, v{vLANE}, 1, v{cnt}")
        if h:
            a(f"v_add_u32 v{cnt}, 1, v{cnt}")
        a(f"v_min_u32 v{cnt}, s{sNB}, v{cnt}")
    a(f"v_lshl_or_b32 v{vNEXT}, v{SC+23}, 8, v{SC+21}")
    a(f"s_mov_b32 s{sPOS}, 0")
    a(f"s_mov_b32 s{cN0}, s{sWAVE}")
    a.label("K2_WALK0")
    a(f"s_cmp_eq_u32 s{cN0}, 0")
    a("s_cbranch_scc1 K2_WALK0_DONE")
    advance(a)
    a(f"s_sub_u32 s{cN0}, s{cN0}, 1")
    a("s_branch K2_WALK0")
    a.label("K2_WALK0_DONE")
    build_next_job(a)
    next_ne(a)
    a(f"v_mov_b32 v{vOA0}, v{vOOB}")
    a(f"v_mov_b32 v{vOA1}, v{vOOB}")
    a(f"s_mov_b32 s{cOFF}, 0")
    stamp()
    a(f"s_waitcnt vmcnt({NL//4}) lgkmcnt(0)")
    a("s_barrier")
    stamp()
    mk = MaskAlloc()
    emit_h_addr(a, mk, 27)
    emit_h_loads(a)
    for c in range(4):
        emit_comp_stores(a, c)
    a.label("K2_LOOP")
    stamp()
    for cs, ns in ((cN0, nN0), (cNN, nNN), (cEB, nEB), (cNE, nNE), (cE1, nE1), (cOFF, nOFF), (sCE32, sNE32),
                   (SRD_OWN, nSRC), (SRD_OWN + 1, nSRC + 1)):
        a(f"s_mov_b32 s{cs}, s{ns}")
    a(f"s_cmp_eq_u32 s{cNN}, 0")
    a("s_cbranch_scc1 K2_DONE")
    mk = MaskAlloc()
    emit_own_addr(a, mk, [MVV0, MVV0 + 1])
    a(f"s_cmp_eq_u32 s{nLDS}, 0")
    a("s_cbranch_scc1 K2_OWN_GLOBAL")
    a(f"v_mov_b32 v{MVV0}, {L_FLAG+4}")
    a(f"ds_read_b32 v{MVV0}, v{MVV0}")
    a(f"v_readfirstlane_b32 s{sT0}, v{MVV0}")
    a(f"s_cmp_lg_u32 s{sT0}, 4")
    a("s_cbranch_scc1 K2_OWN_GLOBAL")
    a(f"s_sub_u32 s{sT0}, s{cN0}, s{sL0}")
    a(f"s_lshl_b32 s{sT0}, s{sT0}, 10")
    a(f"s_add_u32 s{sT0}, s{sT0}, {L_OWN}")
    a(f"v_add_u32 v{MVV0}, s{sT0}, v{vOWN0}")
    for c in range(4):
        for h in range(2):
            a(f"ds_read_b128 {q(Oq(c,h))}, v{MVV0} offset:{1024*h+256*c} ; NOWAIT")
    a(f"s_mov_b32 s{sHW}, 0")
    a("s_branch K2_OWN_DONE")
    a.label("K2_OWN_GLOBAL")
    emit_own_loads(a)
    a(f"s_mov_b32 s{sHW}, 1")
    a.label("K2_OWN_DONE")
    a(f"s_add_u32 s{nEB}, s{cEB}, 16")
    a(f"s_cmp_lt_u32 s{nEB}, s{cE1}")
    a("s_cbranch_scc0 K2_NEWJOB")
    a(f"s_mov_b32 s{nSRC}, s6")
    a(f"s_mov_b32 s{nSRC+1}, s7")
    a(f"s_mov_b32 s{nLDS}, 0")
    a("s_branch K2_GOTNEXT")
    a.label("K2_NEWJOB")
    for _ in range(7):
        advance(a)
    build_next_job(a)
    a.label("K2_GOTNEXT")
    next_ne(a)
    stamp()
    a(f"s_cmp_eq_u32 s{sHW}, 0")
    a("s_cbranch_scc1 K2_HW8")
    a("s_waitcnt vmcnt(16) lgkmcnt(0)")
    a("s_branch K2_HWD")
    a.label("K2_HW8")
    a("s_waitcnt vmcnt(8) lgkmcnt(0)")
    a.label("K2_HWD")
    a(f"s_cmp_eq_u32 s{sSIG}, 0")
    a("s_cbranch_scc1 K2_NOSIG")
    a(f"v_mov_b32 v{MVV0}, {L_FLAG+4}")
    a(f"v_mov_b32 v{MVV0+1}, 1")
    a("s_mov_b64 exec, 1")
    a(f"ds_add_u32 v{MVV0}, v{MVV0+1}")
    a("s_mov_b64 exec, -1")
    a(f"s_mov_b32 s{sSIG}, 0")
    a.label("K2_NOSIG")
    stamp()
    a(f"s_cmp_eq_u32 s{cNE}, 0")
    a("s_cbranch_scc1 K2_COPY")
    if not memonly:
        blk = item_block().ins
        if do_sched:
            blk, t = schedule(blk)
            print("item block: %d instructions, modelled %d cycles" % (len(blk), t))
        if prio:
            i0 = next(i for i, x in enumerate(blk) if "16x16x32" in x.text)
            i1 = next(i for i, x in enumerate(blk) if "vmcnt(16)" in x.text)
            if prio == 1:
                blk = blk[:i0] + [Ins("s_setprio 2")] + blk[i0:i1] + [Ins("s_setprio 0")] + blk[i1:]
            elif prio == 2:
                blk = blk[:i0] + [Ins("s_setprio 0")] + blk[i0:i1] + [Ins("s_setprio 2")] + blk[i1:]
        a.extend(blk)
        a("s_branch K2_LOOP")
    a.label("K2_COPY")
    a.extend(item_block(memonly=True).ins)
    a("s_branch K2_LOOP")
    a.label("K2_DONE")
    if stamps:
        a("s_waitcnt vmcnt(0)")
        stamp()
        a(f"v_lshlrev_b32 v252, 2, v{vLANE}")
        a(f"v_add_u32 v253, s{sST+1}, v252")
        a("ds_read_b32 v254, v253")
        a("s_lshl_b32 s10, s2, 3")
        a(f"s_add_u32 s10, s10, s{sWAVE}")
        a("s_lshl_b32 s10, s10, 7")
        a(f"s_add_u32 s10, s10, {WS_STAMP2}")
        a(f"s_mov_b64 exec, 0xffffffff")
        a(f"buffer_store_dword v254, v252, s[{SRD_WS}:{SRD_WS+3}], s10 offen")
        a("s_mov_b64 exec, -1")
    a(f"s_cmp_eq_u32 s{sMORE}, 0")
    a("s_cbranch_scc1 K2_END")
    a(f"s_add_u32 s{sJ0}, s{sJ0}, s{sR}")
    a(f"s_mov_b32 s{sROUND}, 1")
    a("s_waitcnt vmcnt(0)")
    desc_load()
    a("s_waitcnt vmcnt(0)")
    a("s_barrier")
    zero_counters()
    a("s_barrier")
    a("s_branch K2_ROUND")
    a.label("K2_END")
    a("s_endpgm")
    return a
```

```python
import sys
from asmlib import finalize, render
from gen3_k1 import gen_k1, K1_LDS
from gen3_k2 import gen_k2, K2_LDS
from gen import HEADER, kd

def build(path, **kw):
    st = kw.get("stamps", False)
    pf = kw.pop("pf", 2)
    k1kw = {k: kw.pop(k) for k in ("early_s", "rot", "nte", "ntp", "nts", "ntw") if k in kw}
    k1 = render(finalize(gen_k1(stamps=st, pf=pf, **k1kw).ins))
    k2 = render(finalize(gen_k2(**kw).ins))
    out = HEADER
    out += "; Two launches: edge_bin_kernel (per-edge geometry, cutoff test, binning by destination; H = silu(s@W1) per node;\n"
    out += "; weight re-layout), then message_kernel (phi = H@W2 per edge on MFMA, messages, segment sum on MFMA, residual add).\n"
    out += f"; @launch kernel=edge_bin_kernel grid=(256,1,1) block=(1024,1,1) lds={K1_LDS + (1024 if st else 0)}\n"
    out += f"; @launch kernel=message_kernel grid=(256,1,1) block=(512,1,1) lds={K2_LDS}\n"
    out += '.amdgcn_target "amdgcn-amd-amdhsa--gfx950"\n.text\n'
    for name, body in (("edge_bin_kernel", k1), ("message_kernel", k2)):
        out += f".globl {name}\n.p2align 8\n.type {name},@function\n" + body
    out += '.section .rodata,"a"\n.p2align 6\n' + kd("edge_bin_kernel", 128, 96) + ".p2align 6\n" + kd("message_kernel", 256, 102)
    open(path, "w").write(out)

if __name__ == "__main__":
    kw = {}
    for x in sys.argv[2:]:
        k, v = x.split("=")
        kw[k] = eval(v)
    build(sys.argv[1], **kw)
```

```python
import re

TRANS = ("v_exp_f32", "v_log_f32", "v_rcp_f32", "v_rsq_f32", "v_sqrt_f32", "v_sin_f32", "v_cos_f32")

_REG = re.compile(r"^(-?)(abs\()?([vsa])(\d+)\)?$")
_RNG = re.compile(r"^([vsa])\[(\d+):(\d+)\]$")


def regs_of(op):
    op = op.strip()
    m = _RNG.match(op)
    if m:
        return {f"{m.group(1)}{i}" for i in range(int(m.group(2)), int(m.group(3)) + 1)}
    m = _REG.match(op)
    if m:
        return {f"{m.group(3)}{m.group(4)}"}
    if op in ("vcc", "exec", "m0", "scc"):
        return {op}
    if op in ("vcc_lo", "vcc_hi"):
        return {"vcc"}
    if op in ("exec_lo", "exec_hi"):
        return {"exec"}
    return set()


def split_ops(rest):
    out, depth, cur = [], 0, ""
    for ch in rest:
        if ch in "[(":
            depth += 1
        elif ch in "])":
            depth -= 1
        if ch == "," and depth == 0:
            out.append(cur.strip())
            cur = ""
        else:
            cur += ch
    if cur.strip():
        out.append(cur.strip())
    return out


class Ins:
    __slots__ = ("text", "op", "kind", "w", "r", "dpp", "srcc", "ab", "wide_store", "guards", "cost",
                 "lanesel", "vsrc_lane", "idx", "mods", "pw", "pr")

    def __init__(self, text, guards=None):
        self.text = text
        self.guards = guards
        self.dpp = False
        self.pw = None
        self.pr = None
        self.srcc = set()
        self.ab = set()
        self.wide_store = set()
        self.lanesel = set()
        self.vsrc_lane = set()
        self.w = set()
        self.r = set()
        t = text.split(";")[0].strip()
        if t.endswith(":"):
            self.op, self.kind = "label", ("soft" if "SOFT" in text else "label")
            return
        if t.startswith("."):
            self.op, self.kind = "dir", "label"
            return
        parts = t.split(None, 1)
        op = parts[0]
        self.op = op
        rest = parts[1] if len(parts) > 1 else ""
        ops = split_ops(rest)
        mods = ""
        if ops:
            last = ops[-1].split(None, 1)
            ops[-1] = last[0]
            mods = last[1] if len(last) > 1 else ""
        self.mods = mods
        R = [regs_of(o) for o in ops]
        w, r = set(), set()
        if op.startswith("v_mfma"):
            self.kind = "mfma"
            w |= R[0]
            r |= R[1] | R[2] | R[3]
            self.ab = R[1] | R[2]
            self.srcc = R[3]
        elif op.startswith("v_"):
            base = op.replace("_e32", "").replace("_e64", "").replace("_dpp", "")
            self.kind = "trans" if base in TRANS else "valu"
            r.add("exec")
            if "row_" in mods or "quad_perm" in mods or "wave_" in mods:
                self.dpp = True
            if base.startswith("v_cmpx"):
                raise ValueError("v_cmpx unsupported")
            if base.startswith("v_cmp"):
                w |= R[0]
                for x in R[1:]:
                    r |= x
            elif base in ("v_add_co_u32", "v_sub_co_u32", "v_subrev_co_u32", "v_addc_co_u32", "v_subb_co_u32",
                          "v_mad_u64_u32"):
                w |= R[0] | R[1]
                for x in R[2:]:
                    r |= x
            elif base in ("v_readlane_b32", "v_readfirstlane_b32"):
                w |= R[0]
                r |= R[1]
                self.vsrc_lane = R[1]
                if len(R) > 2:
                    r |= R[2]
                    self.lanesel = R[2]
            elif base == "v_writelane_b32":
                w |= R[0]
                r |= R[0] | R[1] | R[2]
                self.lanesel = R[2]
            elif base == "v_nop":
                pass
            else:
                w |= R[0]
                for x in R[1:]:
                    r |= x
                if base in ("v_fmac_f32", "v_pk_fmac_f16", "v_dot2c_f32_bf16") or self.dpp:
                    r |= R[0]
                if base.startswith("v_permlane"):
                    w |= R[1]
                    r |= R[0]
                    self.dpp = True
        elif op.startswith("ds_"):
            self.kind = "lds"
            r.add("exec")
            if op.startswith("ds_read") or "_rtn" in op or "permute" in op or "swizzle" in op:
                w |= R[0]
                for x in R[1:]:
                    r |= x
                if "d16" in op:
                    r |= R[0]
            else:
                for x in R:
                    r |= x
        elif op.startswith("buffer_") or op.startswith("global_"):
            self.kind = "vmem"
            r.add("exec")
            is_lds = " lds" in (" " + mods)
            if "store" in op or "atomic" in op:
                for x in R:
                    r |= x
                if op.endswith("x4") or op.endswith("x3"):
                    self.wide_store = R[0] if op.startswith("buffer_") else R[1]
                if "atomic" in op and "sc0" in mods:
                    w |= R[0]
            elif is_lds:
                for x in R:
                    r |= x
                r.add("m0")
            else:
                w |= R[0]
                for x in R[1:]:
                    r |= x
                if "d16" in op:
                    r |= R[0]
        elif op.startswith("s_load") or op.startswith("s_buffer_load") or op in ("s_memtime", "s_memrealtime"):
            self.kind = "smem"
            w |= R[0]
            for x in R[1:]:
                r |= x
        elif op == "s_waitcnt":
            self.kind = "wait"
        elif op == "s_nop":
            self.kind = "nop"
        elif op in ("s_barrier", "s_endpgm", "s_setprio", "s_sleep"):
            self.kind = "barrier" if op in ("s_barrier", "s_endpgm") else "salu"
        elif op.startswith("s_cbranch") or op == "s_branch":
            self.kind = "branch"
            if "scc" in op:
                r.add("scc")
            if "vcc" in op:
                r.add("vcc")
            if "exec" in op:
                r.add("exec")
        elif op.startswith("s_"):
            self.kind = "salu"
            if op.startswith("s_cmp") or op.startswith("s_bitcmp"):
                for x in R:
                    r |= x
                w.add("scc")
            else:
                w |= R[0]
                for x in R[1:]:
                    r |= x
                if "saveexec" in op:
                    w.add("exec")
                    r.add("exec")
                    w.add("scc")
                if op.startswith(("s_cselect", "s_addc", "s_subb", "s_cmov")):
                    r.add("scc")
                if op.startswith("s_cmov") or op in ("s_addk_i32", "s_mulk_i32"):
                    r |= R[0]
                if not op.startswith(("s_mov", "s_cselect", "s_mul", "s_movk", "s_cmov", "s_getreg", "s_setreg",
                                      "s_pack", "s_sext", "s_brev", "s_ff", "s_flbit", "s_getpc")):
                    w.add("scc")
        else:
            raise ValueError("unknown instruction: " + text)
        self.w, self.r = w, r
        if guards:
            self.w = set(self.w) | set(guards)

    def states(self):
        if self.kind in ("label", "soft"):
            return 0
        if self.kind == "nop":
            return int(self.text.split()[1], 0) + 1
        return 1


def isv(x):
    return x[0] == "v" and x != "vcc"


def iss(x):
    return (x[0] == "s" and x != "scc") or x == "vcc"


def required_gap(p, c):
    need = 0
    vl = ("valu", "trans")
    if p.kind in vl:
        pw_v = {x for x in p.w if isv(x)}
        pw_s = {x for x in p.w if iss(x)}
        if c.kind == "mfma" and pw_v & c.r:
            need = max(need, 2)
        if c.kind in vl:
            if c.dpp and pw_v & c.r:
                need = max(need, 2)
            if c.vsrc_lane & pw_v:
                need = max(need, 1)
            if p.kind == "trans" and pw_v & (c.r | c.w):
                need = max(need, 1)
            if pw_s & c.lanesel:
                need = max(need, 4)
            elif pw_s & c.r:
                need = max(need, 2)
        if c.kind == "mfma" and p.kind == "trans" and pw_v & c.r:
            need = max(need, 2)
        if c.kind in ("vmem",) and pw_s & c.r:
            need = max(need, 5)
        if c.kind in ("vmem", "lds") and p.kind == "trans" and pw_v & c.r:
            need = max(need, 1)
        if c.kind in ("salu", "smem", "branch") and pw_s & c.r:
            need = max(need, 1)
    elif p.kind == "mfma":
        D = p.w
        if c.kind == "mfma":
            if D & c.ab:
                need = max(need, 8)
            if D & c.srcc and D != c.srcc:
                need = max(need, 6)
            if D & c.srcc and D == c.srcc and c.op != p.op:
                need = max(need, 6)
            if D & c.w and not (D & c.srcc):
                need = max(need, 8)
        elif c.kind in ("valu", "trans", "vmem", "lds"):
            if D & (c.r | c.w):
                need = max(need, 8)
            if c.kind in vl and p.srcc & c.w:
                need = max(need, 3)
    elif p.kind == "vmem":
        if p.wide_store and p.wide_store & c.w:
            need = max(need, 2)
    elif p.kind == "salu":
        if "m0" in p.w and "m0" in c.r and c.kind in ("vmem", "lds"):
            need = max(need, 1)
    return need


def worst_gap(p):
    if p.kind == "mfma":
        return 8
    if p.kind in ("valu", "trans"):
        if any(iss(x) for x in p.w):
            return 5
        return 2
    if p.kind == "vmem" and p.wide_store:
        return 2
    if p.kind == "salu" and "m0" in p.w:
        return 1
    return 0


class Asm:
    def __init__(self):
        self.ins = []

    def __call__(self, text, guards=None):
        for line in text.strip().split("\n"):
            line = line.strip()
            if not line or line.startswith(";"):
                continue
            self.ins.append(Ins(line, guards))

    def label(self, name):
        self.ins.append(Ins(name + ":"))

    def extend(self, other):
        self.ins.extend(other.ins if isinstance(other, Asm) else other)


COST = {"valu": 4, "trans": 8, "mfma": 8, "lds": 4, "vmem": 6, "salu": 4, "wait": 1, "nop": 4, "smem": 4}


def schedule(ins, lds_lat=110, mfma_period=16, valu_cost=None, lazy_waits=True, cluster=None, lazy_first=False):
    n = len(ins)
    cost = dict(COST)
    if valu_cost:
        cost["valu"] = valu_cost
    succ = [[] for _ in range(n)]
    npred = [0] * n
    last_w = {}
    readers = {}
    last_vm = None
    last_lds = None
    tok = {}

    def edge(a, b, lat):
        succ[a].append((b, lat))
        npred[b] += 1

    for i, x in enumerate(ins):
        assert x.kind not in ("label", "branch", "barrier", "smem"), x.text
        deps = {}

        def add(a, lat):
            deps[a] = max(deps.get(a, 0), lat)

        for r in x.r:
            if r in last_w:
                a = last_w[r]
                p = ins[a]
                lat = cost[p.kind]
                if p.kind == "lds":
                    lat = lds_lat
                elif p.kind == "mfma":
                    lat = 16 if (x.kind == "mfma" and r in x.srcc and p.w == x.srcc) else 40
                else:
                    lat = max(lat, 4 * (required_gap(p, x) + 1))
                add(a, lat)
        for w in x.w:
            if w in last_w:
                a = last_w[w]
                p = ins[a]
                lat = cost[p.kind]
                if p.kind == "lds":
                    lat = lds_lat
                elif p.kind == "mfma" and not (x.kind == "mfma" and p.w == x.srcc):
                    lat = 40
                add(a, lat)
            for a in readers.get(w, ()):
                if a != i:
                    add(a, max(cost[ins[a].kind], 4 * (required_gap(ins[a], x) + 1)))
        if x.pr is not None and x.pr in tok:
            add(tok[x.pr], 1)
        if x.pw is not None:
            tok[x.pw] = i
        if x.kind == "vmem" or (x.kind == "wait" and "vmcnt" in x.text):
            if last_vm is not None:
                add(last_vm, 1)
            last_vm = i
        if x.kind == "lds":
            if last_lds is not None:
                add(last_lds, 1)
            last_lds = i
        for a, lat in deps.items():
            edge(a, i, lat)
        for r in x.r:
            readers.setdefault(r, []).append(i)
        for w in x.w:
            last_w[w] = i
            readers[w] = []
    prio = [0] * n
    for i in range(n - 1, -1, -1):
        best = cost[ins[i].kind]
        for b, lat in succ[i]:
            best = max(best, lat + prio[b])
        prio[i] = best
    ready_t = [0] * n
    avail = [i for i in range(n) if npred[i] == 0]
    t = 0
    mfma_free = 0
    out = []
    mode = ["V", 0]
    while avail:
        cand = []
        nonwait = [i for i in avail if ins[i].kind != "wait"] if lazy_waits else avail
        if lazy_first and not any(x.kind == "wait" for x in out):
            nonwait = avail
        for i in (nonwait or avail):
            rt = ready_t[i]
            if ins[i].kind == "mfma":
                rt = max(rt, mfma_free)
            cand.append((rt, i))
        now = [i for rt, i in cand if rt <= t]
        if not now:
            t = min(rt for rt, i in cand)
            now = [i for rt, i in cand if rt <= t]
        if cluster:
            nm, nv = cluster[:2]
            isv_ = lambda i: ins[i].kind in ("valu", "trans")
            ism_ = lambda i: ins[i].kind == "mfma"
            for _ in range(2):
                if mode[0] == "M":
                    soon = [i for rt, i in cand if ism_(i) and rt <= t + 16]
                    if mode[1] >= nm or not soon:
                        if any(isv_(i) for i in now):
                            mode[:] = ["V", 0]
                            out.append(Ins("s_setprio 0"))
                            continue
                    break
                else:
                    vs = [i for i in now if isv_(i)]
                    soon = [i for rt, i in cand if ism_(i) and rt <= t + 8]
                    if (mode[1] >= nv or not vs) and soon:
                        mode[:] = ["M", 0]
                        out.append(Ins("s_setprio 1"))
                        continue
                    break
            if mode[0] == "M":
                ms = [i for i in now if ism_(i)]
                oth = [i for i in now if not ism_(i) and not isv_(i)]
                if ms:
                    pick = max(ms, key=lambda i: (prio[i], -i))
                elif oth:
                    pick = max(oth, key=lambda i: (prio[i], -i))
                else:
                    soon = [(rt, i) for rt, i in cand if ism_(i) and rt <= t + 16]
                    if soon:
                        t = min(rt for rt, i in soon)
                        pick = max([i for rt, i in soon if rt <= t], key=lambda i: (prio[i], -i))
                    else:
                        pick = max(now, key=lambda i: (prio[i], -i))
                if ism_(pick):
                    mode[1] += 1
            else:
                nonm = [i for i in now if not ism_(i)]
                pick = max(nonm or now, key=lambda i: (prio[i], -i))
                if isv_(pick):
                    mode[1] += 1
        else:
            pick = max(now, key=lambda i: (ins[i].kind == "mfma", prio[i], -i))
        avail.remove(pick)
        out.append(ins[pick])
        if ins[pick].kind == "mfma":
            mfma_free = t + (8 if "4x4x4" in ins[pick].op else mfma_period)
        for b, lat in succ[pick]:
            ready_t[b] = max(ready_t[b], t + lat)
            npred[b] -= 1
            if npred[b] == 0:
                avail.append(b)
        t += 4 if (ins[pick].kind == "mfma" and "x32" not in ins[pick].op) else cost[ins[pick].kind]
    if cluster:
        out.append(Ins("s_setprio 0"))
    return out, t


def finalize(ins):
    out = []
    fifo = []
    smem_out = set()
    smem_pending = False
    grp = {}
    keep = []
    for x in ins:
        if x.kind == "branch" and "NODRAIN" in x.text:
            out.append(x)
            continue
        if x.kind in ("label", "branch", "barrier"):
            if x.kind == "barrier" and x.op == "s_barrier" and (fifo or smem_pending):
                out.append(Ins("s_waitcnt lgkmcnt(0)"))
                fifo, smem_out, smem_pending = [], set(), False
            elif any(fifo) or smem_pending:
                out.append(Ins("s_waitcnt lgkmcnt(0)"))
                fifo, smem_out, smem_pending = [], set(), False
            else:
                if fifo:
                    out.append(Ins("s_waitcnt lgkmcnt(0)"))
                    fifo = []
            out.append(x)
            continue
        if x.kind == "wait" and "lgkmcnt" in x.text:
            m = re.search(r"lgkmcnt\((\d+)\)", x.text)
            k = int(m.group(1))
            if k == 0:
                fifo, smem_out, smem_pending = [], set(), False
            else:
                assert not smem_pending
                fifo = fifo[len(fifo) - k:] if len(fifo) > k else fifo
            out.append(x)
            continue
        touched = x.r | x.w
        if smem_pending and (touched & smem_out):
            out.append(Ins("s_waitcnt lgkmcnt(0)"))
            fifo, smem_out, smem_pending = [], set(), False
        need = None
        for k, d in enumerate(fifo):
            if d & touched:
                need = k
        if need is not None:
            g = grp.get(id(fifo[need]))
            if g is not None:
                for k in range(need + 1, len(fifo)):
                    if grp.get(id(fifo[k])) == g:
                        need = k
            left = len(fifo) - need - 1
            if smem_pending:
                left = 0
                smem_out, smem_pending = set(), False
            left = min(left, 15)
            out.append(Ins(f"s_waitcnt lgkmcnt({left})"))
            fifo = fifo[len(fifo) - left:] if left else []
        if x.kind == "lds":
            if "NOWAIT" in x.text:
                assert not fifo and not smem_pending, x.text
            else:
                fifo.append(set(x.w))
                mg = re.search(r"GRP(\d+)", x.text)
                if mg:
                    grp[id(fifo[-1])] = mg.group(1)
                    keep.append(fifo[-1])
        if x.kind == "smem":
            smem_pending = True
            smem_out |= x.w
        out.append(x)
    res = []
    for x in out:
        need = 0
        dist = 0
        boundary = x.kind in ("label", "branch")
        for p in reversed(res):
            if dist >= 9:
                break
            if p.kind == "label":
                break
            g = worst_gap(p) if boundary else required_gap(p, x)
            if x.kind == "branch":
                g = max(g - 1, required_gap(p, x))
            if g > dist:
                need = max(need, g - dist)
            dist += p.states()
        if need:
            res.append(Ins(f"s_nop {need - 1}"))
        res.append(x)
    return res


def render(ins):
    lines = []
    for x in ins:
        if x.kind in ("label", "soft"):
            lines.append(x.text)
        else:
            lines.append("    " + x.text)
    return "\n".join(lines) + "\n"
```

```python
from asmlib import Asm, Ins, schedule
from gen3_k1 import N, G, EPG, WS_W2, WS_WR, WS_WEND, WS_DESC, WS_REC, WS_H, WS_SIZE, WS_STAMP2, srd, wave_scan

L_W2 = 0
L_WR = 98304
L_CNT = 102400
L_P = L_CNT + 512
L_FLAG = L_P + 576
L_REC = L_FLAG + 64
CAP = 400
RSLOW = 1
L_OWN = L_REC + (CAP + 16) * 32
NL = 44
L_STAMP = L_OWN + NL * 1024
K2_LDS = L_STAMP + 1024
assert K2_LDS <= 163840 and L_OWN % 16 == 0
RMAX = 8

sHW, sSIG = 0, 1
sWAVE = 3
SRD_SV, SRD_OUT, SRD_WS, SRD_OWN, SRD_H = 12, 16, 20, 24, 96
sM, sBASE, sNB, sJ0, sR, sTOT, sROUND, sMORE = 28, 29, 30, 31, 32, 33, 34, 35
cN0, cNN, cEB, cNE, cE1, cOFF = 36, 37, 38, 39, 40, 41
nN0, nNN, nEB, nNE, nE1, nOFF = 42, 43, 44, 45, 46, 47
sT0, sT1, sT2, sPOS = 48, 49, 50, 51
sLO, sONE2, sSELL, sSELH = 52, 53, 54, 55
sQLT2 = 56
sCE32, sNE32 = 58, 59
sMK = 60
NMK = 12
tN0, tEB, tE1, tPOS, tCONT, tLDS, sFIRST, sDMA = 84, 85, 86, 87, 88, 89, 90, 91
nSRC = 92
sST = 94
sL0 = 100
nLDS = 101

vLANE, vWB0, vWB1, vWR, vE, vQ4, vQ16, vN16, vRECE, vRECQ, vRB, vTA, vTB, vOWN0, v2Q, vNEXT, vP, vOOB = range(1, 19)
vOA0, vOA1 = 19, 20
vVA = 22
vHA = 26
vRBOP = 28
vID = 30
H0 = 32
V0 = 48
OWN0 = 96
SOP = 128
MS0 = 144
MVR0 = 160
MVV0 = 176
U0 = 192
WRING = 208
NRING = 5
WRF0 = 228
B0 = 232
C1 = 236
PH0 = 240
WF0 = 248
vMASK, v16 = 21, 27

NT = NTV = NTO = ""
ORDER = list(range(0, 8)) + [8, 16, 9, 17, 10, 18, 11, 19] + [12, 20, 13, 21, 14, 22, 15, 23]


def q(base):
    return f"v[{base}:{base+3}]"


def d(base):
    return f"v[{base}:{base+1}]"


def Vq(x, r):
    return V0 + 16 * x + 4 * r


def Oq(c, h):
    return OWN0 + 8 * c + 4 * h


def advance(a):
    a(f"s_lshr_b32 s{sT0}, s{sPOS}, 1")
    a(f"v_readlane_b32 s{sT1}, v{vNEXT}, s{sT0}")
    a(f"s_and_b32 s{sT2}, s{sPOS}, 1")
    a(f"s_lshl_b32 s{sT2}, s{sT2}, 3")
    a(f"s_lshr_b32 s{sT1}, s{sT1}, s{sT2}")
    a(f"s_and_b32 s{sPOS}, s{sT1}, 0xff")


def lookup_p(a, dst):
    a(f"s_lshr_b32 s{sT0}, s{sPOS}, 1")
    a(f"v_readlane_b32 s{sT1}, v{vP}, s{sT0}")
    a(f"s_and_b32 s{sT2}, s{sPOS}, 1")
    a(f"s_lshl_b32 s{sT2}, s{sT2}, 4")
    a(f"s_lshr_b32 s{sT1}, s{sT1}, s{sT2}")
    a(f"s_and_b32 s{dst}, s{sT1}, 0xffff")


def next_item(a, steps, allow_cont=True):
    if allow_cont:
        a(f"s_add_u32 s{nEB}, s{cEB}, 16")
        a(f"s_cmp_lt_u32 s{nEB}, s{cE1}")
        a(f"s_cselect_b32 s{tCONT}, 1, 0")
        a(f"s_mov_b32 s{tPOS}, s{sPOS}")
    for _ in range(steps):
        advance(a)
    a(f"s_mov_b32 s{tN0}, s{sPOS}")
    lookup_p(a, tEB)
    advance(a)
    lookup_p(a, tE1)
    if allow_cont:
        a(f"s_cmp_eq_u32 s{tCONT}, 0")
        a(f"s_cselect_b32 s{nN0}, s{tN0}, s{nN0}")
        a(f"s_cselect_b32 s{nEB}, s{tEB}, s{nEB}")
        a(f"s_cselect_b32 s{nE1}, s{tE1}, s{nE1}")
        a(f"s_cselect_b32 s{sPOS}, s{sPOS}, s{tPOS}")
        a(f"s_or_b32 s{tCONT}, s{tCONT}, s{sROUND}")
    else:
        a(f"s_mov_b32 s{nN0}, s{tN0}")
        a(f"s_mov_b32 s{nEB}, s{tEB}")
        a(f"s_mov_b32 s{nE1}, s{tE1}")
        a(f"s_mov_b32 s{tCONT}, s{sROUND}")
    a(f"s_sub_u32 s{nNN}, s{sPOS}, s{nN0}")
    a(f"s_add_u32 s{nOFF}, s{nN0}, s{sBASE}")
    a(f"s_lshl_b32 s{nOFF}, s{nOFF}, 10")
    a(f"s_cmp_eq_u32 s{tCONT}, 0")
    a(f"s_cselect_b32 s{nSRC}, s4, s6")
    a(f"s_cselect_b32 s{nSRC+1}, s5, s7")
    a(f"s_cselect_b32 s{tLDS}, 1, 0")
    a(f"s_cmp_ge_u32 s{nN0}, s{sL0}")
    a(f"s_cselect_b32 s{nLDS}, s{tLDS}, 0")
    a(f"s_sub_u32 s{nNE}, s{nE1}, s{nEB}")
    a(f"s_min_u32 s{nNE}, s{nNE}, 16")
    a(f"s_lshl_b32 s{sNE32}, s{nEB}, 5")


class MaskAlloc:
    def __init__(self, k=0):
        self.k = k

    def __call__(self):
        r = sMK + 2 * (self.k % NMK)
        self.k += 1
        return f"s[{r}:{r+1}]"


def emit_h_addr(a, mk, t):
    a(f"v_add_u32 v{t}, s{sNE32}, v{vRECE}")
    a(f"ds_read_b32 v{vHA}, v{t}")
    m = mk()
    a(f"v_cmp_gt_u32_e64 {m}, s{nNE}, v{vE}")
    a(f"v_lshrrev_b32 v{vHA}, 2, v{vHA}")
    a(f"v_add_u32 v{vHA}, v{vHA}, v{vQ16}")
    a(f"v_cndmask_b32_e64 v{vHA}, v{vOOB}, v{vHA}, {m}")


def emit_h_loads(a):
    for t in range(4):
        a(f"buffer_load_dwordx4 {q(H0+4*t)}, v{vHA}, s[{SRD_H}:{SRD_H+3}], 0 offen offset:{64*t}")


def emit_comp_stores(a, c):
    for h, va in ((0, vOA0), (1, vOA1)):
        a(f"buffer_store_dwordx4 {q(Oq(c,h))}, v{va}, s[{SRD_OUT}:{SRD_OUT+3}], s{cOFF} offen offset:{256*c}{NT}")


def comp_wait(a, c):
    regs = [f"v{Oq(c,h)+i}" for h in range(2) for i in range(4)]
    if c > 0:
        regs += [f"v{Vq(c-1,r)+i}" for r in range(4) for i in range(4)]
    a(f"s_waitcnt vmcnt({(16, 14, 12, 10)[c]})", guards=regs)


def wfrag(a, k, ring):
    c = ORDER[k // 4]
    off = (4 * c + k % 4) * 1024
    base = vWB0 if off < 65536 else vWB1
    a(f"ds_read_b128 {q(ring)}, v{base} offset:{off % 65536}" + (f" ; GRP{k//GRPN}" if GRPN > 1 else ""))


T = list(range(MVR0, MVR0 + 32))


def v_load(a, i):
    c, r = 1 + i // 4, i % 4
    a(f"buffer_load_dwordx4 {q(Vq(c-1,r))}, v{vVA+r}, s[{SRD_SV}:{SRD_SV+3}], 0 offen offset:{256*c}{NTV}")


VSPREAD = 1
GRPN = 4


def MVV(Ti, r):
    return (MVV0 + 4 * Ti + r) if Ti < 4 else (MS0 + 4 * (Ti - 4) + r)


def wait_own(a):
    a("s_waitcnt vmcnt(12)", guards=[f"v{OWN0+i}" for i in range(32)])


def wait_v(a):
    a("s_waitcnt vmcnt(2)", guards=[f"v{V0+i}" for i in range(48)])


def item_block(memonly=False):
    a = Asm()
    mk = MaskAlloc(6)
    if memonly:
        for i in range(12):
            v_load(a, i)
        next_item(a, 7)
        emit_h_addr(a, mk, U0)
        wait_own(a)
        emit_comp_stores(a, 0)
        wait_v(a)
        emit_h_loads(a)
        for c in range(1, 4):
            emit_comp_stores(a, c)
        return a
    MK = [U0 + i for i in range(4)]
    PR = [U0 + 4 + i for i in range(6)]
    ring = [WRING + 4 * i for i in range(NRING)]
    kf = [0]

    def prefetch():
        if kf[0] < 96:
            wfrag(a, kf[0], ring[kf[0] % NRING])
            kf[0] += 1

    for _ in range(NRING):
        prefetch()
    m = mk()
    a(f"v_cmp_gt_u32_e64 {m}, s{cNE}, v{vE}")
    a(f"s_and_b64 {m}, {m}, s[{sQLT2}:{sQLT2+1}]")
    a(f"v_cndmask_b32_e64 v{vRBOP}, 0, v{vRBOP}, {m}")
    a(f"v_cndmask_b32_e64 v{vRBOP+1}, 0, v{vRBOP+1}, {m}")
    for side, tgt in ((0, vTA), (1, vTB)):
        for pr in range(2):
            ts = []
            for r in (2 * pr, 2 * pr + 1):
                m = mk()
                t = T[22 + 4 * side + r]
                a(f"v_cmp_eq_u32_e64 {m}, v{T[4*r+1]}, v{tgt}")
                a(f"v_cndmask_b32_e64 v{t}, 0, -1, {m}")
                ts.append(t)
            a(f"v_bfi_b32 v{MK[2*side+pr]}, s{sLO}, v{ts[0]}, v{ts[1]}")
    for pr in range(2):
        r0, r1 = 2 * pr, 2 * pr + 1
        a(f"v_perm_b32 v{PR[0+pr]}, v{T[4*r1+2]}, v{T[4*r0+2]}, s{sSELL}")
        a(f"v_perm_b32 v{PR[2+pr]}, v{T[4*r1+2]}, v{T[4*r0+2]}, s{sSELH}")
        a(f"v_perm_b32 v{PR[4+pr]}, v{T[4*r1+3]}, v{T[4*r0+3]}, s{sSELL}")
    AS = SOP
    for i in range(4):
        a(f"v_and_b32 v{AS+i}, s{sONE2}, v{MK[i]}")
    for x in range(3):
        for i in range(4):
            a(f"v_and_b32 v{AS+4+4*x+i}, v{MK[i]}, v{PR[2*x+(i%2)]}")
    next_item(a, 7)

    def cinit(C, c, p):
        o0, o1 = Oq(c, 0) + p, Oq(c, 1) + p
        a(f"v_lshlrev_b32 v{C}, v{v16}, v{o0}")
        a(f"v_lshlrev_b32 v{C+1}, v{v16}, v{o1}")
        a(f"v_and_b32 v{C+2}, v{vMASK}, v{o0}")
        a(f"v_and_b32 v{C+3}, v{vMASK}, v{o1}")

    def cpack(C, c, p):
        a(f"v_cvt_pk_bf16_f32 v{Oq(c,0)+p}, v{C}, v{C+2}")
        a(f"v_cvt_pk_bf16_f32 v{Oq(c,1)+p}, v{C+1}, v{C+3}")

    def vwork(pp, Us, Bs, Cs):
        it = 0
        for x in range(3):
            u = Us[x % len(Us)]
            for r in range(4):
                if M4:
                    a(f"v_mfma_f32_4x4x4_16b_bf16 {q(u+4*r)}, {d(vID)}, {d(Vq(x,r)+2*pp)}, 0")
                else:
                    a(f"v_mfma_f32_16x16x16_bf16 {q(u+4*r)}, {d(vID)}, {d(Vq(x,r)+2*pp)}, 0")
            for j in range(4):
                for r in range(4):
                    a(f"v_mul_f32 v{u+4*r+j}, v{u+4*r+j}, v{MVV(4*pp+j, r)}")
            for p in (2 * pp, 2 * pp + 1):
                C = Cs[it % len(Cs)]
                B = Bs[it % len(Bs)]
                it += 1
                cinit(C, x + 1, p)
                j0 = 2 * (p % 2)
                a(f"v_cvt_pk_bf16_f32 v{B}, v{u+j0}, v{u+4+j0}")
                a(f"v_cvt_pk_bf16_f32 v{B+1}, v{u+8+j0}, v{u+12+j0}")
                a(f"v_cvt_pk_bf16_f32 v{B+2}, v{u+j0+1}, v{u+4+j0+1}")
                a(f"v_cvt_pk_bf16_f32 v{B+3}, v{u+8+j0+1}, v{u+12+j0+1}")
                a(f"v_mfma_f32_16x16x32_bf16 {q(C)}, {q(AS+4+4*x)}, {q(MVR0+4*p)}, {q(C)}")
                a(f"v_mfma_f32_16x16x32_bf16 {q(C)}, {q(AS)}, {q(B)}, {q(C)}")
                cpack(C, x + 1, p)
            if pp == 1:
                emit_comp_stores(a, x + 1)

    k = 0
    for ci, c in enumerate(ORDER):
        Gi, Ti = c // 8, c % 8
        PH = PH0 + 4 * (ci % 2)
        WF = WF0 + 4 * (ci % 2)
        WRF = WRF0 + 2 * (ci % 2)
        if ci == 8:
            wait_own(a)
            a.ins[-1].pr = "tile7"
            for p in range(4):
                C = (vVA, C1, B0, U0)[p]
                cinit(C, 0, p)
                a(f"v_mfma_f32_16x16x32_bf16 {q(C)}, {q(AS)}, {q(MS0+4*p)}, {q(C)}")
                cpack(C, 0, p)
            emit_comp_stores(a, 0)
        if ci == 16:
            wait_v(a)
            a.ins[-1].pr = "tile15"
            vwork(0, [U0], [B0], [vVA, C1])
        a(f"ds_read_b64 {d(WRF)}, v{vWR} offset:{128*c}")
        if ci == 12:
            emit_h_addr(a, mk, vHA)
        for t in range(4):
            cc = "0" if t == 0 else q(PH)
            a(f"v_mfma_f32_16x16x32_bf16 {q(PH)}, {q(H0+4*t)}, {q(ring[k % NRING])}, {cc}")
            k += 1
            prefetch()
        a(f"v_mfma_f32_16x16x16_bf16 {q(WF)}, {d(vRBOP)}, {d(WRF)}, 0")
        a.ins[-1].pw = f"tile{ci}"
        for i in range(12):
            if i // 2 == ci:
                v_load(a, i)
                if ci:
                    a.ins[-1].pr = f"tile{ci-1}"
        if Gi == 1:
            for r in range(4):
                a(f"v_mul_f32 v{MVV(Ti, r)}, v{PH+r}, v{WF+r}")
        else:
            for r in range(4):
                a(f"v_mul_f32 v{WF+r}, v{PH+r}, v{WF+r}")
            dst = (MS0 if Gi == 0 else MVR0) + 2 * Ti
            a(f"v_cvt_pk_bf16_f32 v{dst}, v{WF}, v{WF+1}")
            a(f"v_cvt_pk_bf16_f32 v{dst+1}, v{WF+2}, v{WF+3}")
    emit_h_loads(a)
    vwork(1, [MVV0, U0, WRING], [B0, 224, 240, 244], [vVA, C1, 248, 252])
    return a


M4 = True


def gen_k2(do_sched=True, stamps=False, memonly=False, w0=8, w1=16, nt=False, ntv=False, nto=False, nomem=False,
           prio=1, touch=0, vspread=1, ntst=False, usel=True, grpn=2, ldsl=110, m4=True):
    a = Asm()
    global NT, NTV, NTO, VSPREAD, GRPN, M4
    M4 = m4
    GRPN = grpn
    VSPREAD = vspread
    NT = (" " + nt) if isinstance(nt, str) else (" nt" if nt else "")
    NTV = " nt" if ntv else ""
    NTO = " nt" if nto else ""

    def stamp():
        if not stamps:
            return
        a("s_memtime s[10:11]")
        a("s_waitcnt lgkmcnt(0)")
        a("v_mov_b32 v252, s10")
        a(f"v_mov_b32 v253, s{sST}")
        a("ds_write_b32 v253, v252")
        a(f"s_add_u32 s{sST}, s{sST}, 4")

    a.label("message_kernel")
    a("s_cmp_ge_u32 s2, 256")
    a("s_cbranch_scc1 K2_END")
    if stamps:
        a("v_lshrrev_b32 v252, 6, v0")
        a(f"v_readfirstlane_b32 s{sST}, v252")
        a(f"s_lshl_b32 s{sST}, s{sST}, 7")
        a(f"s_add_u32 s{sST}, s{sST}, {L_STAMP}")
        a(f"s_mov_b32 s{sST+1}, s{sST}")
        a("v_and_b32 v252, 31, v0")
        a("v_lshlrev_b32 v252, 2, v252")
        a(f"v_add_u32 v252, s{sST}, v252")
        a("v_mov_b32 v253, 0")
        a("ds_write_b32 v252, v253")
        stamp()
    a("s_load_dwordx2 s[8:9], s[0:1], 80")
    a("s_load_dwordx2 s[4:5], s[0:1], 0")
    a("s_load_dwordx2 s[6:7], s[0:1], 64")
    a("v_lshrrev_b32 v32, 6, v0")
    a(f"v_and_b32 v{vLANE}, 63, v0")
    a(f"v_readfirstlane_b32 s{sWAVE}, v32")
    a(f"v_lshlrev_b32 v{vWB0}, 4, v{vLANE}")
    a(f"v_mov_b32 v{vOOB}, 0x40000000")
    a(f"s_mul_i32 s{sBASE}, s2, 3125")
    a(f"s_add_u32 s{sNB}, s{sBASE}, {3125+31}")
    a(f"s_add_u32 s{sBASE}, s{sBASE}, 31")
    a(f"s_lshr_b32 s{sBASE}, s{sBASE}, 5")
    a(f"s_lshr_b32 s{sNB}, s{sNB}, 5")
    a(f"s_sub_u32 s{sNB}, s{sNB}, s{sBASE}")
    a(f"s_sub_u32 s{sL0}, s{sNB}, {NL}")
    a(f"s_mov_b32 s{sJ0}, 0")
    a(f"s_mov_b32 s{sR}, {RMAX}")
    a(f"s_mov_b32 s{sROUND}, 0")

    def desc_addr():
        a("v_lshrrev_b32 v33, 1, v0")
        a("v_lshlrev_b32 v33, 10, v33")
        a(f"v_cmp_gt_u32 vcc, {2*G}, v0")
        a(f"v_cndmask_b32 v33, v{vOOB}, v33, vcc")
        a(f"s_lshl_b32 s{sT0}, s2, 2")
        a(f"s_add_u32 s{sT0}, s{sT0}, {WS_DESC}")

    def desc_load():
        a(f"buffer_load_dword v34, v33, s[{SRD_WS}:{SRD_WS+3}], s{sT0} offen")

    def zero_counters():
        a("v_lshlrev_b32 v36, 2, v0")
        a(f"v_add_u32 v36, {L_CNT}, v36")
        a("v_mov_b32 v37, 0")
        a(f"v_mov_b32 v38, {L_FLAG}")
        a("v_cmp_gt_u32 vcc, 0x80, v0")
        a(f"s_and_saveexec_b64 s[{sMK}:{sMK+1}], vcc")
        a("ds_write_b32 v36, v37")
        a("ds_write_b32 v38, v37")
        a("ds_write_b32 v38, v37 offset:4")
        a("s_mov_b64 exec, -1")

    desc_addr()
    a(f"s_sub_u32 s{sT1}, s{sWAVE}, 4")
    a(f"s_lshr_b32 s{tN0}, s2, 3")
    a(f"s_mul_i32 s{tN0}, s{tN0}, 3")
    a(f"s_mov_b32 s{sT2}, 0x0a3d70a4")
    a(f"s_mul_hi_u32 s{sT2}, s{tN0}, s{sT2}")
    a(f"s_mul_i32 s{sT2}, s{sT2}, 25")
    a(f"s_sub_u32 s{tN0}, s{tN0}, s{sT2}")
    a(f"s_lshl_b32 s{tN0}, s{tN0}, 2")
    a(f"s_add_u32 s{tN0}, s{tN0}, s{sT1}")
    a(f"s_lshl_b32 m0, s{tN0}, 10")
    a(f"s_lshl_b32 s{sDMA}, s{sT1}, 10")
    a("s_waitcnt lgkmcnt(0)")
    srd(a, SRD_WS, 8, WS_SIZE)

    def wdma(i0, i1):
        for i in range(i0, i1):
            a(f"buffer_load_dwordx4 v{vWB0}, s[{SRD_WS}:{SRD_WS+3}], m0 offen lds")
            a("s_add_u32 m0, m0, 0x1000")
            a(f"s_cmp_ge_u32 m0, {100*1024}")
            a(f"s_cselect_b32 m0, s{sDMA}, m0")

    a(f"s_cmp_ge_u32 s{sWAVE}, 4")
    a(f"s_cselect_b32 s{sSIG}, 1, 0")
    a("s_cbranch_scc1 K2_W0")
    desc_load()
    a("s_branch K2_INIT")
    a.label("K2_W0")
    wdma(0, w0)
    a.label("K2_INIT")
    zero_counters()
    srd(a, SRD_SV, 4, N * 1024)
    srd(a, SRD_OUT, 6, N * 1024)
    srd(a, SRD_OWN, 4, N * 1024)
    a(f"s_add_u32 s{SRD_H}, s8, {WS_H}")
    a(f"s_addc_u32 s{SRD_H+1}, s9, 0")
    a(f"s_mov_b32 s{SRD_H+2}, {N*256}")
    a(f"s_mov_b32 s{SRD_H+3}, 0x00020000")
    if nomem:
        for r in (SRD_H, SRD_SV, SRD_OUT, SRD_OWN):
            a(f"s_mov_b32 s{r+2}, 0")
    a(f"v_add_u32 v{vWB1}, 0x10000, v{vWB0}")
    a(f"v_and_b32 v{vE}, 15, v{vLANE}")
    a(f"v_lshrrev_b32 v35, 4, v{vLANE}")
    a(f"v_lshlrev_b32 v{vWR}, 3, v{vE}")
    a(f"v_add_u32 v{vWR}, {L_WR}, v{vWR}")
    a(f"v_lshlrev_b32 v{vQ4}, 2, v35")
    a(f"v_lshlrev_b32 v{vQ16}, 4, v35")
    a(f"v_lshlrev_b32 v{vN16}, 4, v{vE}")
    a(f"v_lshlrev_b32 v{vRECE}, 5, v{vE}")
    a(f"v_add_u32 v{vRECE}, {L_REC}, v{vRECE}")
    a(f"v_lshlrev_b32 v{vRECQ}, 7, v35")
    a(f"v_add_u32 v{vRECQ}, {L_REC}, v{vRECQ}")
    a("v_and_b32 v36, 1, v35")
    a(f"v_lshl_add_u32 v{vRB}, v36, 3, v{vRECE}")
    a(f"v_add_u32 v{vRB}, 16, v{vRB}")
    a(f"v_lshlrev_b32 v{v2Q}, 1, v35")
    a(f"v_lshl_add_u32 v{vOWN0}, v35, 11, v{vN16}")
    a(f"v_lshrrev_b32 v36, 2, v{vE}")
    a(f"v_and_b32 v37, 1, v{vE}")
    a("v_lshl_add_u32 v39, v36, 1, v37")
    a(f"v_and_b32 v40, 2, v{vE}")
    a("v_cmp_eq_u32 vcc, 0, v40")
    a(f"v_cndmask_b32 v{vTA}, -1, v39, vcc")
    a(f"v_cndmask_b32_e64 v{vTB}, v39, -1, vcc")
    a("v_lshlrev_b32 v37, 4, v37")
    a("v_mov_b32 v41, 0x3f80")
    a("v_lshlrev_b32 v41, v37, v41")
    if not M4:
        a(f"v_cmp_eq_u32_e64 s[{sMK}:{sMK+1}], v36, v35")
        a(f"v_cndmask_b32_e64 v41, 0, v41, s[{sMK}:{sMK+1}]")
    a(f"v_cndmask_b32 v{vID}, 0, v41, vcc")
    a(f"v_cndmask_b32_e64 v{vID+1}, v41, 0, vcc")
    a(f"v_mov_b32 v{vMASK}, 0xffff0000")
    a(f"v_mov_b32 v{v16}, 16")
    a(f"v_cmp_gt_u32_e64 s[{sQLT2}:{sQLT2+1}], 32, v{vLANE}")
    a(f"s_mov_b32 s{sM}, 0xffff0000")
    a(f"s_mov_b32 s{sLO}, 0xffff")
    a(f"s_mov_b32 s{sONE2}, 0x3f803f80")
    a(f"s_mov_b32 s{sSELL}, 0x05040100")
    a(f"s_mov_b32 s{sSELH}, 0x07060302")
    a(f"s_cmp_lt_u32 s{sWAVE}, 4")
    a("s_cbranch_scc1 K2_RECSIDE")
    a("s_barrier")
    wdma(w0, w1)
    if touch:
        a(f"s_lshl_b32 s{sT0}, s{sBASE}, 10")
        a(f"s_lshl_b32 s{sT2}, s{sDMA}, 3")
        a(f"s_add_u32 s{sT0}, s{sT0}, s{sT2}")
        a(f"v_lshlrev_b32 v200, 7, v{vLANE}")
        for i in range(touch):
            a(f"buffer_load_dword v204, v200, s[{SRD_SV}:{SRD_SV+3}], s{sT0} offen nt")
            a(f"s_add_u32 s{sT0}, s{sT0}, 0x8000")
    a("s_barrier")
    wdma(w1, 25)
    a("s_branch K2_AFTER_B1")
    a.label("K2_ROUND")
    a(f"s_cmp_lt_u32 s{sWAVE}, 4")
    a("s_cbranch_scc1 K2_RECSIDE")
    a("s_barrier")
    a("s_branch K2_AFTER_REC")
    a.label("K2_RECSIDE")
    REC = 64
    RK = 40
    AD = 48
    a("v_and_b32 v37, 1, v0")
    a("v_lshrrev_b32 v39, 1, v0")
    a(f"v_mul_u32_u24 v39, {EPG}, v39")
    a(f"s_lshl_b32 s{sT0}, s{sJ0}, 1")
    a(f"v_add3_u32 v39, v39, v37, s{sT0}")
    a(f"s_mov_b32 s{sT0}, {WS_REC}")
    a("s_waitcnt vmcnt(0)")
    stamp()
    a("v_and_b32 v35, 0xffff, v34")
    a("v_lshrrev_b32 v36, 16, v34")
    a("v_add_lshl_u32 v39, v39, v35, 5")
    a("v_sub_u32 v36, v36, v37")
    a("v_add_u32 v36, 1, v36")
    a("v_lshrrev_b32 v36, 1, v36")
    a(f"v_subrev_u32 v36, s{sJ0}, v36")
    a("v_max_i32 v36, 0, v36")
    a(f"v_cmp_lt_u32_e64 s[{sMK}:{sMK+1}], s{sR}, v36")
    a(f"v_min_u32 v36, s{sR}, v36")
    for j in range(RMAX):
        a(f"v_cmp_lt_u32 vcc, {j}, v36")
        a("s_and_b64 exec, exec, vcc")
        a("s_cbranch_execz K2_REC_ISSUED")
        a(f"buffer_load_dwordx4 {q(REC+8*j)}, v39, s[{SRD_WS}:{SRD_WS+3}], s{sT0} offen offset:{64*j}")
        a(f"buffer_load_dwordx4 {q(REC+8*j+4)}, v39, s[{SRD_WS}:{SRD_WS+3}], s{sT0} offen offset:{64*j+16}")
    a.label("K2_REC_ISSUED")
    a("s_mov_b64 exec, -1")
    a("s_barrier")
    a("v_mov_b32 v37, 1")
    a(f"v_mov_b32 v38, {L_FLAG}")
    a(f"s_mov_b64 exec, s[{sMK}:{sMK+1}]")
    a("ds_write_b32 v38, v37")
    a("s_mov_b64 exec, -1")
    a(f"s_mov_b32 s{sT0}, {L_CNT}")
    a("s_waitcnt vmcnt(0) lgkmcnt(0)")
    stamp()
    for j in range(RMAX):
        a(f"v_cmp_lt_u32 vcc, {j}, v36")
        a("s_and_b64 exec, exec, vcc")
        a("s_cbranch_execz K2_AFTER_REC")
        a(f"v_lshl_add_u32 v{AD+j}, v{REC+8*j+1}, 2, s{sT0}")
        a(f"ds_add_rtn_u32 v{RK+j}, v{AD+j}, v37 ; NOWAIT")
    a.label("K2_AFTER_REC")
    a("s_mov_b64 exec, -1")
    a("s_waitcnt lgkmcnt(0)")
    a("s_barrier")
    a.label("K2_AFTER_B1")
    stamp()
    SC = 176
    a(f"v_lshlrev_b32 v{SC}, 3, v{vLANE}")
    a(f"v_add_u32 v{SC}, {L_CNT}, v{SC}")
    a(f"v_mov_b32 v{SC+1}, {L_FLAG}")
    a(f"ds_read_b32 v{SC+1}, v{SC+1}")
    a(f"ds_read_b64 v[{SC+2}:{SC+3}], v{SC}")
    a(f"v_add_u32 v{SC+4}, v{SC+2}, v{SC+3}")
    a(f"v_mov_b32 v{SC+5}, v{SC+4}")
    wave_scan(a, SC + 5)
    a(f"v_sub_u32 v{SC+6}, v{SC+5}, v{SC+4}")
    a(f"v_add_u32 v{SC+7}, v{SC+6}, v{SC+2}")
    a(f"ds_write_b64 v{SC}, v[{SC+6}:{SC+7}] offset:{L_P-L_CNT} ; NOWAIT")
    a(f"v_readlane_b32 s{sTOT}, v{SC+5}, 63")
    a(f"v_readfirstlane_b32 s{sMORE}, v{SC+1}")
    a(f"v_lshl_or_b32 v{vP}, v{SC+7}, 16, v{SC+6}")
    a(f"s_cmp_le_u32 s{sTOT}, {CAP}")
    a("s_cbranch_scc1 K2_FITS")
    a(f"s_mov_b32 s{sR}, {RSLOW}")
    a("s_waitcnt lgkmcnt(0)")
    a("s_barrier")
    zero_counters()
    a("s_branch K2_ROUND")
    a.label("K2_FITS")
    a(f"s_cmp_ge_u32 s{sWAVE}, 4")
    a("s_cbranch_scc1 K2_PREAD")
    for j in range(RMAX):
        a(f"v_cmp_lt_u32 vcc, {j}, v36")
        a("s_and_b64 exec, exec, vcc")
        a("s_cbranch_execz K2_PREAD")
        a(f"ds_read_b32 v{AD+j}, v{AD+j} offset:{L_P-L_CNT} ; NOWAIT")
    a.label("K2_PREAD")
    a("s_mov_b64 exec, -1")
    for i in range(1, 5):
        a(f"ds_read_b64 v[{SC+6+2*i}:{SC+7+2*i}], v{SC} offset:{L_P-L_CNT+8*i} ; NOWAIT")
    a("s_waitcnt lgkmcnt(0)")
    a(f"s_cmp_ge_u32 s{sWAVE}, 4")
    a("s_cbranch_scc1 K2_SCATTERED")
    for j in range(RMAX):
        a(f"v_cmp_lt_u32 vcc, {j}, v36")
        a("s_and_b64 exec, exec, vcc")
        a("s_cbranch_execz K2_SCATTERED")
        a(f"v_add_lshl_u32 v{AD+j}, v{AD+j}, v{RK+j}, 5")
        a(f"v_add_u32 v{AD+j}, {L_REC}, v{AD+j}")
        a(f"ds_write_b128 v{AD+j}, {q(REC+8*j)} ; NOWAIT")
        a(f"ds_write_b128 v{AD+j}, {q(REC+8*j+4)} offset:16 ; NOWAIT")
    a.label("K2_SCATTERED")
    a("s_mov_b64 exec, -1")
    PV = SC + 6
    for h in range(2):
        lim, cnt = SC + 20 + 2 * h, SC + 21 + 2 * h
        a(f"v_add_u32 v{lim}, 16, v{PV+h}")
        a(f"v_lshl_add_u32 v{cnt}, v{vLANE}, 1, {h+1}")
        for k in range(2, 9):
            a(f"v_cmp_le_u32_e64 s[{sMK+2*k}:{sMK+2*k+1}], v{PV+h+k}, v{lim}")
        for k in range(2, 9):
            a(f"v_addc_co_u32_e64 v{cnt}, vcc, 0, v{cnt}, s[{sMK+2*k}:{sMK+2*k+1}]")
        a(f"v_min_u32 v{cnt}, s{sNB}, v{cnt}")
    a(f"v_lshl_or_b32 v{vNEXT}, v{SC+23}, 8, v{SC+21}")
    a(f"s_mov_b32 s{sPOS}, 0")
    a(f"s_mov_b32 s{cN0}, s{sWAVE}")
    a.label("K2_WALK0")
    a(f"s_cmp_eq_u32 s{cN0}, 0")
    a("s_cbranch_scc1 K2_WALK0_DONE")
    advance(a)
    a(f"s_sub_u32 s{cN0}, s{cN0}, 1")
    a("s_branch K2_WALK0")
    a.label("K2_WALK0_DONE")
    next_item(a, 0, allow_cont=False)
    a(f"s_mov_b32 s{sFIRST}, 1")
    stamp()
    a("s_waitcnt lgkmcnt(0)")
    a("s_barrier")
    stamp()
    a(f"s_cmp_eq_u32 s{sSIG}, 0")
    a("s_cbranch_scc1 K2_NOSTAGE")
    a(f"s_add_u32 s{sT0}, s{sBASE}, s{sL0}")
    a(f"s_lshl_b32 s{sT0}, s{sT0}, 10")
    a(f"s_add_u32 s{sT0}, s{sT0}, s{sDMA}")
    a(f"s_add_u32 m0, s{sDMA}, {L_OWN}")
    for i in range(NL // 4):
        a(f"buffer_load_dwordx4 v{vWB0}, s[{SRD_SV}:{SRD_SV+3}], s{sT0} offen{' nt' if ntst else ''} lds")
        a("s_add_u32 m0, m0, 0x1000")
        a(f"s_add_u32 s{sT0}, s{sT0}, 0x1000")
    a(f"s_waitcnt vmcnt({NL//4})")
    a.label("K2_NOSTAGE")
    mk = MaskAlloc()
    emit_h_addr(a, mk, vHA)
    emit_h_loads(a)
    a("s_barrier")
    a.label("K2_LOOP")
    stamp()
    for cs, ns in ((cN0, nN0), (cNN, nNN), (cEB, nEB), (cNE, nNE), (cE1, nE1), (cOFF, nOFF), (sCE32, sNE32),
                   (SRD_OWN, nSRC), (SRD_OWN + 1, nSRC + 1)):
        a(f"s_mov_b32 s{cs}, s{ns}")
    a(f"s_cmp_eq_u32 s{cNN}, 0")
    a("s_cbranch_scc1 K2_DONE")
    a(f"v_mov_b32 v{T[18]}, {L_FLAG+4}")
    a(f"v_add_u32 v{T[16]}, s{sCE32}, v{vRB}")
    a(f"v_add_u32 v{T[17]}, s{sCE32}, v{vRECQ}")
    a(f"ds_read_b32 v{T[18]}, v{T[18]}")
    for r in range(4):
        a(f"ds_read_b128 {q(T[4*r])}, v{T[17]} offset:{32*r}")
    a(f"ds_read_b64 {d(vRBOP)}, v{T[16]}")
    mk = MaskAlloc()
    m0_, m1_ = mk(), mk()
    a(f"v_cmp_gt_u32_e64 {m0_}, s{cNN}, v{v2Q}")
    a(f"v_add_u32 v{T[30]}, 1, v{v2Q}")
    a(f"v_add_u32 v{T[31]}, 0x400, v{vOWN0}")
    a(f"v_cmp_gt_u32_e64 {m1_}, s{cNN}, v{T[30]}")
    a(f"v_cndmask_b32_e64 v{vOA0}, v{vOOB}, v{vOWN0}, {m0_}")
    ms = []
    for r in range(4):
        m = mk()
        ms.append(m)
        a(f"v_add_u32 v{T[20+r]}, {r}, v{vQ4}")
        a(f"v_cmp_gt_u32_e64 {m}, s{cNE}, v{T[20+r]}")
    a(f"v_cndmask_b32_e64 v{vOA1}, v{vOOB}, v{T[31]}, {m1_}")
    a(f"s_sub_u32 s{sT0}, s{cN0}, s{sL0}")
    a(f"s_lshl_b32 s{sT0}, s{sT0}, 10")
    a(f"s_add_u32 s{sT0}, s{sT0}, {L_OWN}")
    a(f"v_add_u32 v{T[19]}, s{sT0}, v{vOWN0}")
    a(f"s_xor_b32 s{sHW}, s{sFIRST}, 1")
    a(f"s_mov_b32 s{sFIRST}, 0")
    a(f"v_readfirstlane_b32 s{sT0}, v{T[18]}")
    for r in range(4):
        a(f"v_add_u32 v{vVA+r}, v{T[4*r]}, v{vN16}")
        a(f"v_cndmask_b32_e64 v{vVA+r}, v{vOOB}, v{vVA+r}, {ms[r]}")
        a(f"v_subrev_u32 v{T[4*r+1]}, s{cN0}, v{T[4*r+1]}")
        a(f"v_cndmask_b32_e64 v{T[4*r+1]}, -2, v{T[4*r+1]}, {ms[r]}")
    a("s_waitcnt lgkmcnt(0)")
    a(f"s_cmp_eq_u32 s{sT0}, {4 if usel else 77}")
    a(f"s_cselect_b32 s{sT0}, s{nLDS}, 0")
    a(f"s_cmp_eq_u32 s{sT0}, 0")
    a("s_cbranch_scc1 K2_OWN_GLOBAL")
    for c in range(4):
        for h in range(2):
            a(f"ds_read_b128 {q(Oq(c,h))}, v{T[19]} offset:{1024*h+256*c} ; NOWAIT")
    a("s_branch K2_OWN_DONE")
    a.label("K2_OWN_GLOBAL")
    for c in range(4):
        for h, va in ((0, vOA0), (1, vOA1)):
            a(f"buffer_load_dwordx4 {q(Oq(c,h))}, v{va}, s[{SRD_OWN}:{SRD_OWN+3}], s{cOFF} offen offset:{256*c}{NTO}")
    a(f"s_add_u32 s{sHW}, s{sHW}, 2")
    a.label("K2_OWN_DONE")
    stamp()
    a(f"s_cmp_eq_u32 s{sHW}, 1")
    a("s_cbranch_scc1 K2_HW1")
    a(f"s_cmp_eq_u32 s{sHW}, 3")
    a("s_cbranch_scc1 K2_HW3")
    a(f"s_cmp_eq_u32 s{sHW}, 2")
    a("s_cbranch_scc1 K2_HW2")
    a("s_waitcnt vmcnt(0)")
    a.label("K2_HW1")
    a("s_waitcnt vmcnt(6)")
    a.label("K2_HW2")
    a("s_waitcnt vmcnt(8)")
    a.label("K2_HW3")
    a("s_waitcnt vmcnt(14) lgkmcnt(0)")
    a(f"s_cmp_eq_u32 s{sSIG}, 0")
    a("s_cbranch_scc1 K2_NOSIG")
    a(f"v_mov_b32 v{T[30]}, {L_FLAG+4}")
    a(f"v_mov_b32 v{T[31]}, 1")
    a("s_mov_b64 exec, 1")
    a(f"ds_add_u32 v{T[30]}, v{T[31]}")
    a("s_mov_b64 exec, -1")
    a(f"s_mov_b32 s{sSIG}, 0")
    a.label("K2_NOSIG")
    stamp()
    a(f"s_cmp_eq_u32 s{cNE}, 0")
    a("s_cbranch_scc1 K2_COPY")
    if not memonly:
        blk = item_block().ins
        if do_sched:
            blk, t = schedule(blk, lds_lat=ldsl, lazy_waits=False)
            print("item block: %d instructions, modelled %d cycles" % (len(blk), t))
        a.extend(blk)
        a("s_branch K2_LOOP")
    a.label("K2_COPY")
    a.extend(item_block(memonly=True).ins)
    a("s_branch K2_LOOP")
    a.label("K2_DONE")
    if stamps:
        a("s_waitcnt vmcnt(0)")
        stamp()
        a(f"v_lshlrev_b32 v252, 2, v{vLANE}")
        a(f"v_add_u32 v253, s{sST+1}, v252")
        a("ds_read_b32 v254, v253")
        a("s_lshl_b32 s10, s2, 3")
        a(f"s_add_u32 s10, s10, s{sWAVE}")
        a("s_lshl_b32 s10, s10, 7")
        a(f"s_add_u32 s10, s10, {WS_STAMP2}")
        a(f"s_mov_b64 exec, 0xffffffff")
        a(f"buffer_store_dword v254, v252, s[{SRD_WS}:{SRD_WS+3}], s10 offen")
        a("s_mov_b64 exec, -1")
    a(f"s_cmp_eq_u32 s{sMORE}, 0")
    a("s_cbranch_scc1 K2_END")
    a(f"s_add_u32 s{sJ0}, s{sJ0}, s{sR}")
    a(f"s_mov_b32 s{sROUND}, 1")
    a(f"s_mov_b32 s{sSIG}, 0")
    a("s_waitcnt vmcnt(0)")
    desc_addr()
    desc_load()
    a("s_waitcnt vmcnt(0)")
    a("s_barrier")
    zero_counters()
    a("s_branch K2_ROUND")
    a.label("K2_END")
    a("s_endpgm")
    return a
```

```python
import sys
from asmlib import finalize, render
from gen3_k1 import gen_k1, K1_LDS
from gen6_k2 import gen_k2, K2_LDS
from gen import HEADER, kd

def build(path, **kw):
    st = kw.get("stamps", False)
    pf = kw.pop("pf", 2)
    k1kw = {k: kw.pop(k) for k in ("early_s", "rot", "nte", "ntp", "nts", "ntw", "st1") if k in kw}
    k1 = render(finalize(gen_k1(stamps=st, pf=pf, **k1kw).ins))
    k2 = render(finalize(gen_k2(**kw).ins))
    out = HEADER
    out += "; Two launches: edge_bin_kernel (per-edge geometry, cutoff test, binning by destination; H = silu(s@W1) per node;\n"
    out += "; weight re-layout), then message_kernel (phi = H@W2 per edge on MFMA, messages, segment sum on MFMA, residual add).\n"
    out += f"; @launch kernel=edge_bin_kernel grid=(256,1,1) block=(1024,1,1) lds={K1_LDS + (1024 if st else 0)}\n"
    out += f"; @launch kernel=message_kernel grid=(256,1,1) block=(512,1,1) lds={K2_LDS}\n"
    out += '.amdgcn_target "amdgcn-amd-amdhsa--gfx950"\n.text\n'
    for name, body in (("edge_bin_kernel", k1), ("message_kernel", k2)):
        out += f".globl {name}\n.p2align 8\n.type {name},@function\n" + body
    out += '.section .rodata,"a"\n.p2align 6\n' + kd("edge_bin_kernel", 128, 96) + ".p2align 6\n" + kd("message_kernel", 256, 102)
    open(path, "w").write(out)

if __name__ == "__main__":
    kw = {}
    for x in sys.argv[2:]:
        k, v = x.split("=")
        kw[k] = eval(v)
    build(sys.argv[1], **kw)
```

```python
from asmlib import Asm, Ins, schedule
from gen3_k1 import N, G, EPG, WS_W2, WS_WR, WS_WEND, WS_DESC, WS_REC, WS_H, WS_SIZE, WS_STAMP2, srd, wave_scan

L_W2 = 0
L_WR = 98304
L_CNT = 102400
L_P = L_CNT + 512
L_FLAG = L_P + 576
L_REC = L_FLAG + 64
CAP = 400
RSLOW = 1
L_OWN = L_REC + (CAP + 16) * 32
NL = 44
L_STAMP = L_OWN + NL * 1024
K2_LDS = L_STAMP + 1024
assert K2_LDS <= 163840 and L_OWN % 16 == 0
RMAX = 8

sHW, sSIG = 0, 1
sWAVE = 3
SRD_SV, SRD_OUT, SRD_WS, SRD_OWN, SRD_H = 12, 16, 20, 24, 96
sM, sBASE, sNB, sJ0, sR, sTOT, sROUND, sMORE = 28, 29, 30, 31, 32, 33, 34, 35
cN0, cNN, cEB, cNE, cE1, cOFF = 36, 37, 38, 39, 40, 41
nN0, nNN, nEB, nNE, nE1, nOFF = 42, 43, 44, 45, 46, 47
sT0, sT1, sT2, sPOS = 48, 49, 50, 51
sLO, sONE2, sSELL, sSELH = 52, 53, 54, 55
sQLT2 = 56
sCE32, sNE32 = 58, 59
sMK = 60
NMK = 12
tN0, tEB, tE1, tPOS, tCONT, tLDS, sFIRST, sDMA = 84, 85, 86, 87, 88, 89, 90, 91
nSRC = 92
sST = 94
sL0 = 100
nLDS = 101

vLANE, vWB0, vWB1, vWR, vE, vQ4, vQ16, vN16, vRECE, vRECQ, vRB, vTA, vTB, vOWN0, v2Q, vNEXT, vP, vOOB = range(1, 19)
vOA0, vOA1 = 19, 20
vMASK, v16 = 21, 27
M4 = True
VC = True
vVA = 22
vHA = 26
vRBOP = 28
vID = 30
H0 = 32
V0 = 48
OWN0 = 96
SOP = 128
MS0 = 144
MVR0 = 160
MVV0 = 176
WRING = 208
NRING = 7
PH0 = 240
WF0 = 248
WRF0 = 236

NT = NTV = NTO = ""
ORDER = list(range(16, 24)) + list(range(0, 8)) + list(range(8, 16))


def q(base):
    return f"v[{base}:{base+3}]"


def d(base):
    return f"v[{base}:{base+1}]"


def Vq(x, r):
    return V0 + 16 * x + 4 * r


def Oq(c, h):
    return OWN0 + 8 * c + 4 * h


def advance(a):
    a(f"s_lshr_b32 s{sT0}, s{sPOS}, 1")
    a(f"v_readlane_b32 s{sT1}, v{vNEXT}, s{sT0}")
    a(f"s_and_b32 s{sT2}, s{sPOS}, 1")
    a(f"s_lshl_b32 s{sT2}, s{sT2}, 3")
    a(f"s_lshr_b32 s{sT1}, s{sT1}, s{sT2}")
    a(f"s_and_b32 s{sPOS}, s{sT1}, 0xff")


def lookup_p(a, dst):
    a(f"s_lshr_b32 s{sT0}, s{sPOS}, 1")
    a(f"v_readlane_b32 s{sT1}, v{vP}, s{sT0}")
    a(f"s_and_b32 s{sT2}, s{sPOS}, 1")
    a(f"s_lshl_b32 s{sT2}, s{sT2}, 4")
    a(f"s_lshr_b32 s{sT1}, s{sT1}, s{sT2}")
    a(f"s_and_b32 s{dst}, s{sT1}, 0xffff")


def finish_next(a):
    a(f"s_sub_u32 s{nNN}, s{sPOS}, s{nN0}")
    a(f"s_add_u32 s{nOFF}, s{nN0}, s{sBASE}")
    a(f"s_lshl_b32 s{nOFF}, s{nOFF}, 10")
    a(f"s_cmp_eq_u32 s{tCONT}, 0")
    a(f"s_cselect_b32 s{nSRC}, s4, s6")
    a(f"s_cselect_b32 s{nSRC+1}, s5, s7")
    a(f"s_cselect_b32 s{tLDS}, 1, 0")
    a(f"s_cmp_ge_u32 s{nN0}, s{sL0}")
    a(f"s_cselect_b32 s{nLDS}, s{tLDS}, 0")
    a(f"s_sub_u32 s{nNE}, s{nE1}, s{nEB}")
    a(f"s_min_u32 s{nNE}, s{nNE}, 16")
    a(f"s_lshl_b32 s{sNE32}, s{nEB}, 5")


def next_item(a, steps, allow_cont=True):
    if allow_cont:
        finish_next(a)
        return
    a(f"s_mov_b32 s{nN0}, s{sPOS}")
    lookup_p(a, nEB)
    advance(a)
    lookup_p(a, nE1)
    a(f"s_mov_b32 s{tCONT}, s{sROUND}")
    finish_next(a)


class MaskAlloc:
    def __init__(self, k=0):
        self.k = k

    def __call__(self):
        r = sMK + 2 * (self.k % NMK)
        self.k += 1
        return f"s[{r}:{r+1}]"


def emit_h_addr(a, mk, t):
    a(f"v_add_u32 v{t}, s{sNE32}, v{vRECE}")
    a(f"ds_read_b32 v{vHA}, v{t}")
    m = mk()
    a(f"v_cmp_gt_u32_e64 {m}, s{nNE}, v{vE}")
    a(f"v_lshrrev_b32 v{vHA}, 2, v{vHA}")
    a(f"v_add_u32 v{vHA}, v{vHA}, v{vQ16}")
    a(f"v_cndmask_b32_e64 v{vHA}, v{vOOB}, v{vHA}, {m}")


def emit_h_loads(a):
    for t in range(4):
        a(f"buffer_load_dwordx4 {q(H0+4*t)}, v{vHA}, s[{SRD_H}:{SRD_H+3}], 0 offen offset:{64*t}")


def emit_comp_stores(a, c):
    for h, va in ((0, vOA0), (1, vOA1)):
        a(f"buffer_store_dwordx4 {q(Oq(c,h))}, v{va}, s[{SRD_OUT}:{SRD_OUT+3}], s{cOFF} offen offset:{256*c}{NT}")


def comp_wait(a, c):
    regs = [f"v{Oq(c,h)+i}" for h in range(2) for i in range(4)]
    if c > 0:
        regs += [f"v{Vq(c-1,r)+i}" for r in range(4) for i in range(4)]
    a(f"s_waitcnt vmcnt({((22, 18, 14, 10) if OWNIN else (16, 14, 12, 10))[c]})", guards=regs)


def wfrag(a, k, ring):
    c = ORDER[k // 4]
    off = (4 * c + k % 4) * 1024
    base = vWB0 if off < 65536 else vWB1
    a(f"ds_read_b128 {q(ring)}, v{base} offset:{off % 65536}" + (f" ; GRP{k//GRPN}" if GRPN > 1 else ""))


T = list(range(MVV0, MVV0 + 32))


def own_load(a, c):
    for h, va in ((0, vOA0), (1, vOA1)):
        a(f"buffer_load_dwordx4 {q(Oq(c,h))}, v{va}, s[{SRD_OWN}:{SRD_OWN+3}], s{cOFF} offen offset:{256*c}{NTO}")


def v_load(a, i):
    c, r = 1 + i // 4, i % 4
    if OWNIN and i == 0:
        own_load(a, 0)
    a(f"buffer_load_dwordx4 {q(Vq(c-1,r))}, v{vVA+r}, s[{SRD_SV}:{SRD_SV+3}], 0 offen offset:{256*c}{NTV}")
    if OWNIN and r == 3:
        own_load(a, c)


VSPREAD = 1
OWNIN = False
GRPN = 4


def item_block(memonly=False):
    a = Asm()
    mk = MaskAlloc(6)
    if memonly:
        for i in range(12):
            v_load(a, i)
        next_item(a, 7)
        emit_h_addr(a, mk, vHA)
        emit_h_loads(a)
        for c in range(4):
            comp_wait(a, c)
            emit_comp_stores(a, c)
        return a
    MK = [MS0 + i for i in range(4)]
    PR = [MS0 + 4 + i for i in range(6)]
    ring = [WRING + 4 * i for i in range(NRING)]
    kf = [0]

    def prefetch():
        if kf[0] < 96:
            wfrag(a, kf[0], ring[kf[0] % NRING])
            kf[0] += 1

    for _ in range(NRING):
        prefetch()
    m = mk()
    a(f"v_cmp_gt_u32_e64 {m}, s{cNE}, v{vE}")
    a(f"s_and_b64 {m}, {m}, s[{sQLT2}:{sQLT2+1}]")
    a(f"v_cndmask_b32_e64 v{vRBOP}, 0, v{vRBOP}, {m}")
    a(f"v_cndmask_b32_e64 v{vRBOP+1}, 0, v{vRBOP+1}, {m}")
    for side, tgt in ((0, vTA), (1, vTB)):
        for pr in range(2):
            ts = []
            for r in (2 * pr, 2 * pr + 1):
                m = mk()
                t = T[22 + 4 * side + r]
                a(f"v_cmp_eq_u32_e64 {m}, v{T[4*r+1]}, v{tgt}")
                a(f"v_cndmask_b32_e64 v{t}, 0, -1, {m}")
                ts.append(t)
            a(f"v_bfi_b32 v{MK[2*side+pr]}, s{sLO}, v{ts[0]}, v{ts[1]}")
    for pr in range(2):
        r0, r1 = 2 * pr, 2 * pr + 1
        a(f"v_perm_b32 v{PR[0+pr]}, v{T[4*r1+2]}, v{T[4*r0+2]}, s{sSELL}")
        a(f"v_perm_b32 v{PR[2+pr]}, v{T[4*r1+2]}, v{T[4*r0+2]}, s{sSELH}")
        a(f"v_perm_b32 v{PR[4+pr]}, v{T[4*r1+3]}, v{T[4*r0+3]}, s{sSELL}")
    AS = SOP
    for i in range(4):
        a(f"v_and_b32 v{AS+i}, s{sONE2}, v{MK[i]}")
    for x in range(3):
        for i in range(4):
            a(f"v_and_b32 v{AS+4+4*x+i}, v{MK[i]}, v{PR[2*x+(i%2)]}")
    next_item(a, 7)
    k = 0
    for ci, c in enumerate(ORDER):
        Gi, Ti = c // 8, c % 8
        PH = PH0 + 4 * (ci % 2)
        WF = WF0 + 4 * (ci % 2)
        WRF = WRF0 + 2 * (ci % 2)
        a(f"ds_read_b64 {d(WRF)}, v{vWR} offset:{128*c}")
        if ci == 16:
            emit_h_addr(a, mk, vHA)
        for t in range(4):
            cc = "0" if t == 0 else q(PH)
            a(f"v_mfma_f32_16x16x32_bf16 {q(PH)}, {q(H0+4*t)}, {q(ring[k % NRING])}, {cc}")
            k += 1
            prefetch()
        a(f"v_mfma_f32_16x16x16_bf16 {q(WF)}, {d(vRBOP)}, {d(WRF)}, 0")
        a.ins[-1].pw = f"tile{ci}"
        for i in range(12):
            if i * VSPREAD // 2 == ci:
                v_load(a, i)
                if ci:
                    a.ins[-1].pr = f"tile{ci-1}"
        if Gi == 1:
            for r in range(4):
                a(f"v_mul_f32 v{MVV0+4*Ti+r}, v{PH+r}, v{WF+r}")
        else:
            for r in range(4):
                a(f"v_mul_f32 v{WF+r}, v{PH+r}, v{WF+r}")
            dst = (MS0 if Gi == 0 else MVR0) + 2 * Ti
            a(f"v_cvt_pk_bf16_f32 v{dst}, v{WF}, v{WF+1}")
            a(f"v_cvt_pk_bf16_f32 v{dst+1}, v{WF+2}, v{WF+3}")
    emit_h_loads(a)
    U = [WRING, WRING + 16]
    BB = [240, 244]
    CD = [248, 252]
    it = 0
    ub = 0
    for c in range(4):
        comp_wait(a, c)
        for pp in range(2):
            if c > 0:
                x = c - 1
                u = U[ub % 2]
                ub += 1
                for r in range(4):
                    a(f"v_mfma_f32_{'4x4x4_16b' if M4 else '16x16x16'}_bf16 {q(u+4*r)}, {d(vID)}, {d(Vq(x,r)+2*pp)}, 0")
                for r in range(4):
                    for j in range(4):
                        a(f"v_mul_f32 v{u+4*r+j}, v{u+4*r+j}, v{MVV0+4*(4*pp+j)+r}")
            for p in (2 * pp, 2 * pp + 1):
                C = CD[it % 2] if c else WRING + 4 * p
                o0, o1 = Oq(c, 0) + p, Oq(c, 1) + p
                k16, kM = (f"v{v16}", f"v{vMASK}") if VC else ("16", f"s{sM}")
                a(f"v_lshlrev_b32 v{C}, {k16}, v{o0}")
                a(f"v_lshlrev_b32 v{C+1}, {k16}, v{o1}")
                a(f"v_and_b32 v{C+2}, {kM}, v{o0}")
                a(f"v_and_b32 v{C+3}, {kM}, v{o1}")
                if c == 0:
                    a(f"v_mfma_f32_16x16x32_bf16 {q(C)}, {q(AS)}, {q(MS0+4*p)}, {q(C)}")
                else:
                    B = BB[it % 2]
                    j0 = 2 * (p % 2)
                    a(f"v_cvt_pk_bf16_f32 v{B}, v{u+j0}, v{u+4+j0}")
                    a(f"v_cvt_pk_bf16_f32 v{B+1}, v{u+8+j0}, v{u+12+j0}")
                    a(f"v_cvt_pk_bf16_f32 v{B+2}, v{u+j0+1}, v{u+4+j0+1}")
                    a(f"v_cvt_pk_bf16_f32 v{B+3}, v{u+8+j0+1}, v{u+12+j0+1}")
                    a(f"v_mfma_f32_16x16x32_bf16 {q(C)}, {q(AS+4+4*x)}, {q(MVR0+4*p)}, {q(C)}")
                    a(f"v_mfma_f32_16x16x32_bf16 {q(C)}, {q(AS)}, {q(B)}, {q(C)}")
                a(f"v_cvt_pk_bf16_f32 v{o0}, v{C}, v{C+2}")
                a(f"v_cvt_pk_bf16_f32 v{o1}, v{C+1}, v{C+3}")
                it += 1
        emit_comp_stores(a, c)
    return a


def gen_k2(do_sched=True, stamps=False, memonly=False, w0=8, w1=16, nt=False, ntv=False, nto=False, nomem=False,
           prio=1, touch=0, vspread=1, ntst=False, usel=True, grpn=4, ldsl=110, stage=True, exp=0, ownin=False, fine=False, m4=True, vc=True, tnt=False):
    a = Asm()
    global NT, NTV, NTO, VSPREAD, GRPN, OWNIN, M4, VC
    M4, VC = m4, vc
    OWNIN = ownin
    GRPN = grpn
    VSPREAD = vspread
    NT = (" " + nt) if isinstance(nt, str) else (" nt" if nt else "")
    NTV = " nt" if ntv else ""
    NTO = " nt" if nto else ""

    def stamp():
        if not stamps:
            return
        a("s_memtime s[10:11]")
        a("s_waitcnt lgkmcnt(0)")
        a("v_mov_b32 v252, s10")
        a(f"v_mov_b32 v253, s{sST}")
        a("ds_write_b32 v253, v252")
        a(f"s_add_u32 s{sST}, s{sST}, 4")

    def rstamp(idx):
        if not stamps:
            return
        a("s_memrealtime s[10:11]")
        a("s_waitcnt lgkmcnt(0)")
        a("v_mov_b32 v252, s10")
        a(f"v_mov_b32 v253, s{sST+1}")
        a(f"ds_write_b32 v253, v252 offset:{4*idx}")

    a.label("message_kernel")
    a("s_cmp_ge_u32 s2, 256")
    a("s_cbranch_scc1 K2_END")
    if stamps:
        a("v_lshrrev_b32 v252, 6, v0")
        a(f"v_readfirstlane_b32 s{sST}, v252")
        a(f"s_lshl_b32 s{sST}, s{sST}, 7")
        a(f"s_add_u32 s{sST}, s{sST}, {L_STAMP}")
        a(f"s_mov_b32 s{sST+1}, s{sST}")
        a("v_and_b32 v252, 31, v0")
        a("v_lshlrev_b32 v252, 2, v252")
        a(f"v_add_u32 v252, s{sST}, v252")
        a("v_mov_b32 v253, 0")
        a("ds_write_b32 v252, v253")
        stamp()
        rstamp(30)
    a("s_load_dwordx2 s[8:9], s[0:1], 80")
    a("s_load_dwordx2 s[4:5], s[0:1], 0")
    a("s_load_dwordx2 s[6:7], s[0:1], 64")
    a("v_lshrrev_b32 v32, 6, v0")
    a(f"v_and_b32 v{vLANE}, 63, v0")
    a(f"v_readfirstlane_b32 s{sWAVE}, v32")
    a(f"v_lshlrev_b32 v{vWB0}, 4, v{vLANE}")
    a(f"v_mov_b32 v{vOOB}, 0x40000000")
    a(f"s_mul_i32 s{sBASE}, s2, 3125")
    a(f"s_add_u32 s{sNB}, s{sBASE}, {3125+31}")
    a(f"s_add_u32 s{sBASE}, s{sBASE}, 31")
    a(f"s_lshr_b32 s{sBASE}, s{sBASE}, 5")
    a(f"s_lshr_b32 s{sNB}, s{sNB}, 5")
    a(f"s_sub_u32 s{sNB}, s{sNB}, s{sBASE}")
    a(f"s_sub_u32 s{sL0}, s{sNB}, {NL}")
    a(f"s_mov_b32 s{sJ0}, 0")
    a(f"s_mov_b32 s{sR}, {RMAX}")
    a(f"s_mov_b32 s{sROUND}, 0")

    def desc_addr():
        a("v_lshrrev_b32 v33, 1, v0")
        a("v_lshlrev_b32 v33, 10, v33")
        a(f"v_cmp_gt_u32 vcc, {2*G}, v0")
        a(f"v_cndmask_b32 v33, v{vOOB}, v33, vcc")
        a(f"s_lshl_b32 s{sT0}, s2, 2")
        a(f"s_add_u32 s{sT0}, s{sT0}, {WS_DESC}")

    def desc_load():
        a(f"buffer_load_dword v34, v33, s[{SRD_WS}:{SRD_WS+3}], s{sT0} offen")

    def zero_counters():
        a("v_lshlrev_b32 v36, 2, v0")
        a(f"v_add_u32 v36, {L_CNT}, v36")
        a("v_mov_b32 v37, 0")
        a(f"v_mov_b32 v38, {L_FLAG}")
        a("v_cmp_gt_u32 vcc, 0x80, v0")
        a(f"s_and_saveexec_b64 s[{sMK}:{sMK+1}], vcc")
        a("ds_write_b32 v36, v37")
        a("ds_write_b32 v38, v37")
        a("ds_write_b32 v38, v37 offset:8")
        a("s_mov_b64 exec, -1")

    desc_addr()
    a(f"s_sub_u32 s{sT1}, s{sWAVE}, 4")
    a(f"s_lshr_b32 s{tN0}, s2, 3")
    a(f"s_mul_i32 s{tN0}, s{tN0}, 3")
    a(f"s_mov_b32 s{sT2}, 0x0a3d70a4")
    a(f"s_mul_hi_u32 s{sT2}, s{tN0}, s{sT2}")
    a(f"s_mul_i32 s{sT2}, s{sT2}, 25")
    a(f"s_sub_u32 s{tN0}, s{tN0}, s{sT2}")
    a(f"s_lshl_b32 s{tN0}, s{tN0}, 2")
    a(f"s_add_u32 s{tN0}, s{tN0}, s{sT1}")
    a(f"s_lshl_b32 m0, s{tN0}, 10")
    a(f"s_lshl_b32 s{sDMA}, s{sT1}, 10")
    a("s_waitcnt lgkmcnt(0)")
    srd(a, SRD_WS, 8, WS_SIZE)

    def wdma(i0, i1):
        for i in range(i0, i1):
            a(f"buffer_load_dwordx4 v{vWB0}, s[{SRD_WS}:{SRD_WS+3}], m0 offen lds")
            a("s_add_u32 m0, m0, 0x1000")
            a(f"s_cmp_ge_u32 m0, {100*1024}")
            a(f"s_cselect_b32 m0, s{sDMA}, m0")

    a(f"s_cmp_ge_u32 s{sWAVE}, 4")
    a(f"s_cselect_b32 s{sSIG}, 1, 0")
    a("s_cbranch_scc1 K2_W0")
    desc_load()
    a("s_branch K2_INIT")
    a.label("K2_W0")
    wdma(0, w0)
    a.label("K2_INIT")
    zero_counters()
    srd(a, SRD_SV, 4, N * 1024)
    srd(a, SRD_OUT, 6, N * 1024)
    srd(a, SRD_OWN, 4, N * 1024)
    a(f"s_add_u32 s{SRD_H}, s8, {WS_H}")
    a(f"s_addc_u32 s{SRD_H+1}, s9, 0")
    a(f"s_mov_b32 s{SRD_H+2}, {N*256}")
    a(f"s_mov_b32 s{SRD_H+3}, 0x00020000")
    if nomem:
        for r in (SRD_H, SRD_SV, SRD_OUT, SRD_OWN):
            a(f"s_mov_b32 s{r+2}, 0")
    a(f"v_add_u32 v{vWB1}, 0x10000, v{vWB0}")
    a(f"v_and_b32 v{vE}, 15, v{vLANE}")
    a(f"v_lshrrev_b32 v35, 4, v{vLANE}")
    a(f"v_lshlrev_b32 v{vWR}, 3, v{vE}")
    a(f"v_add_u32 v{vWR}, {L_WR}, v{vWR}")
    a(f"v_lshlrev_b32 v{vQ4}, 2, v35")
    a(f"v_lshlrev_b32 v{vQ16}, 4, v35")
    a(f"v_lshlrev_b32 v{vN16}, 4, v{vE}")
    a(f"v_lshlrev_b32 v{vRECE}, 5, v{vE}")
    a(f"v_add_u32 v{vRECE}, {L_REC}, v{vRECE}")
    a(f"v_lshlrev_b32 v{vRECQ}, 7, v35")
    a(f"v_add_u32 v{vRECQ}, {L_REC}, v{vRECQ}")
    a("v_and_b32 v36, 1, v35")
    a(f"v_lshl_add_u32 v{vRB}, v36, 3, v{vRECE}")
    a(f"v_add_u32 v{vRB}, 16, v{vRB}")
    a(f"v_lshlrev_b32 v{v2Q}, 1, v35")
    a(f"v_lshl_add_u32 v{vOWN0}, v35, 11, v{vN16}")
    a(f"v_lshrrev_b32 v36, 2, v{vE}")
    a(f"v_and_b32 v37, 1, v{vE}")
    a("v_lshl_add_u32 v39, v36, 1, v37")
    a(f"v_and_b32 v40, 2, v{vE}")
    a("v_cmp_eq_u32 vcc, 0, v40")
    a(f"v_cndmask_b32 v{vTA}, -1, v39, vcc")
    a(f"v_cndmask_b32_e64 v{vTB}, v39, -1, vcc")
    a("v_lshlrev_b32 v37, 4, v37")
    a("v_mov_b32 v41, 0x3f80")
    a("v_lshlrev_b32 v41, v37, v41")
    if not M4:
        a(f"v_cmp_eq_u32_e64 s[{sMK}:{sMK+1}], v36, v35")
        a(f"v_cndmask_b32_e64 v41, 0, v41, s[{sMK}:{sMK+1}]")
    a(f"v_mov_b32 v{vMASK}, 0xffff0000")
    a(f"v_mov_b32 v{v16}, 16")
    a(f"v_cndmask_b32 v{vID}, 0, v41, vcc")
    a(f"v_cndmask_b32_e64 v{vID+1}, v41, 0, vcc")
    a(f"v_cmp_gt_u32_e64 s[{sQLT2}:{sQLT2+1}], 32, v{vLANE}")
    a(f"s_mov_b32 s{sM}, 0xffff0000")
    a(f"s_mov_b32 s{sLO}, 0xffff")
    a(f"s_mov_b32 s{sONE2}, 0x3f803f80")
    a(f"s_mov_b32 s{sSELL}, 0x05040100")
    a(f"s_mov_b32 s{sSELH}, 0x07060302")
    a(f"s_cmp_lt_u32 s{sWAVE}, 4")
    a("s_cbranch_scc1 K2_RECSIDE")
    a("s_barrier")
    wdma(w0, w1)
    if touch:
        a(f"s_lshl_b32 s{sT0}, s{sBASE}, 10")
        a(f"s_lshl_b32 s{sT2}, s{sDMA}, 3")
        a(f"s_add_u32 s{sT0}, s{sT0}, s{sT2}")
        a(f"v_lshlrev_b32 v200, 7, v{vLANE}")
        for i in range(touch):
            a(f"buffer_load_dword v204, v200, s[{SRD_SV}:{SRD_SV+3}], s{sT0} offen{' nt' if tnt else ''}")
            a(f"s_add_u32 s{sT0}, s{sT0}, 0x8000")
    a("s_barrier")
    wdma(w1, 25)
    a("s_branch K2_AFTER_B1")
    a.label("K2_ROUND")
    a(f"s_cmp_lt_u32 s{sWAVE}, 4")
    a("s_cbranch_scc1 K2_RECSIDE")
    a("s_barrier")
    a("s_branch K2_AFTER_REC")
    a.label("K2_RECSIDE")
    REC = 64
    RK = 40
    AD = 48
    a("v_and_b32 v37, 1, v0")
    a("v_lshrrev_b32 v39, 1, v0")
    a(f"v_mul_u32_u24 v39, {EPG}, v39")
    a(f"s_lshl_b32 s{sT0}, s{sJ0}, 1")
    a(f"v_add3_u32 v39, v39, v37, s{sT0}")
    a(f"s_mov_b32 s{sT0}, {WS_REC}")
    a("s_waitcnt vmcnt(0)")
    stamp()
    a("v_and_b32 v35, 0xffff, v34")
    a("v_lshrrev_b32 v36, 16, v34")
    a("v_add_lshl_u32 v39, v39, v35, 5")
    a("v_sub_u32 v36, v36, v37")
    a("v_add_u32 v36, 1, v36")
    a("v_lshrrev_b32 v36, 1, v36")
    a(f"v_subrev_u32 v36, s{sJ0}, v36")
    a("v_max_i32 v36, 0, v36")
    a(f"v_cmp_lt_u32_e64 s[{sMK}:{sMK+1}], s{sR}, v36")
    a(f"v_min_u32 v36, s{sR}, v36")
    for j in range(RMAX):
        a(f"v_cmp_lt_u32 vcc, {j}, v36")
        a("s_and_b64 exec, exec, vcc")
        a("s_cbranch_execz K2_REC_ISSUED")
        a(f"buffer_load_dwordx4 {q(REC+8*j)}, v39, s[{SRD_WS}:{SRD_WS+3}], s{sT0} offen offset:{64*j}")
        a(f"buffer_load_dwordx4 {q(REC+8*j+4)}, v39, s[{SRD_WS}:{SRD_WS+3}], s{sT0} offen offset:{64*j+16}")
    a.label("K2_REC_ISSUED")
    a("s_mov_b64 exec, -1")
    a("s_barrier")
    a("v_mov_b32 v37, 1")
    a(f"v_mov_b32 v38, {L_FLAG}")
    a(f"s_mov_b64 exec, s[{sMK}:{sMK+1}]")
    a("ds_write_b32 v38, v37")
    a("s_mov_b64 exec, -1")
    a(f"s_mov_b32 s{sT0}, {L_CNT}")
    a("s_waitcnt vmcnt(0) lgkmcnt(0)")
    stamp()
    for j in range(RMAX):
        a(f"v_cmp_lt_u32 vcc, {j}, v36")
        a("s_and_b64 exec, exec, vcc")
        a("s_cbranch_execz K2_AFTER_REC")
        a(f"v_lshl_add_u32 v{AD+j}, v{REC+8*j+1}, 2, s{sT0}")
        a(f"ds_add_rtn_u32 v{RK+j}, v{AD+j}, v37 ; NOWAIT")
    a.label("K2_AFTER_REC")
    a("s_mov_b64 exec, -1")
    a("s_waitcnt lgkmcnt(0)")
    a("s_barrier")
    a.label("K2_AFTER_B1")
    stamp()
    SC = 176
    a(f"v_lshlrev_b32 v{SC}, 3, v{vLANE}")
    a(f"v_add_u32 v{SC}, {L_CNT}, v{SC}")
    a(f"v_mov_b32 v{SC+1}, {L_FLAG}")
    a(f"ds_read_b32 v{SC+1}, v{SC+1}")
    a(f"ds_read_b64 v[{SC+2}:{SC+3}], v{SC}")
    a(f"v_add_u32 v{SC+4}, v{SC+2}, v{SC+3}")
    a(f"v_mov_b32 v{SC+5}, v{SC+4}")
    wave_scan(a, SC + 5)
    a(f"v_sub_u32 v{SC+6}, v{SC+5}, v{SC+4}")
    a(f"v_add_u32 v{SC+7}, v{SC+6}, v{SC+2}")
    a(f"ds_write_b64 v{SC}, v[{SC+6}:{SC+7}] offset:{L_P-L_CNT} ; NOWAIT")
    a(f"v_readlane_b32 s{sTOT}, v{SC+5}, 63")
    a(f"v_readfirstlane_b32 s{sMORE}, v{SC+1}")
    a(f"v_lshl_or_b32 v{vP}, v{SC+7}, 16, v{SC+6}")
    a(f"s_cmp_le_u32 s{sTOT}, {CAP}")
    a("s_cbranch_scc1 K2_FITS")
    a(f"s_mov_b32 s{sR}, {RSLOW}")
    a("s_waitcnt lgkmcnt(0)")
    a("s_barrier")
    zero_counters()
    a("s_branch K2_ROUND")
    a.label("K2_FITS")
    a(f"s_cmp_ge_u32 s{sWAVE}, 4")
    a("s_cbranch_scc1 K2_PREAD")
    for j in range(RMAX):
        a(f"v_cmp_lt_u32 vcc, {j}, v36")
        a("s_and_b64 exec, exec, vcc")
        a("s_cbranch_execz K2_PREAD")
        a(f"ds_read_b32 v{AD+j}, v{AD+j} offset:{L_P-L_CNT} ; NOWAIT")
    a.label("K2_PREAD")
    a("s_mov_b64 exec, -1")
    for i in range(1, 5):
        a(f"ds_read_b64 v[{SC+6+2*i}:{SC+7+2*i}], v{SC} offset:{L_P-L_CNT+8*i} ; NOWAIT")
    a("s_waitcnt lgkmcnt(0)")
    a(f"s_cmp_ge_u32 s{sWAVE}, 4")
    a("s_cbranch_scc1 K2_SCATTERED")
    for j in range(RMAX):
        a(f"v_cmp_lt_u32 vcc, {j}, v36")
        a("s_and_b64 exec, exec, vcc")
        a("s_cbranch_execz K2_SCATTERED")
        a(f"v_add_lshl_u32 v{AD+j}, v{AD+j}, v{RK+j}, 5")
        a(f"v_add_u32 v{AD+j}, {L_REC}, v{AD+j}")
        a(f"ds_write_b128 v{AD+j}, {q(REC+8*j)} ; NOWAIT")
        a(f"ds_write_b128 v{AD+j}, {q(REC+8*j+4)} offset:16 ; NOWAIT")
    a.label("K2_SCATTERED")
    a("s_mov_b64 exec, -1")
    PV = SC + 6
    for h in range(2):
        lim, cnt = SC + 20 + 2 * h, SC + 21 + 2 * h
        a(f"v_add_u32 v{lim}, 16, v{PV+h}")
        a(f"v_lshl_add_u32 v{cnt}, v{vLANE}, 1, {h+1}")
        for k in range(2, 9):
            a(f"v_cmp_le_u32_e64 s[{sMK+2*k}:{sMK+2*k+1}], v{PV+h+k}, v{lim}")
        for k in range(2, 9):
            a(f"v_addc_co_u32_e64 v{cnt}, vcc, 0, v{cnt}, s[{sMK+2*k}:{sMK+2*k+1}]")
        a(f"v_min_u32 v{cnt}, s{sNB}, v{cnt}")
    a(f"v_lshl_or_b32 v{vNEXT}, v{SC+23}, 8, v{SC+21}")
    a(f"s_mov_b32 s{sPOS}, 0")
    a(f"s_mov_b32 s{cN0}, s{sWAVE}")
    a.label("K2_WALK0")
    a(f"s_cmp_eq_u32 s{cN0}, 0")
    a("s_cbranch_scc1 K2_WALK0_DONE")
    advance(a)
    a(f"s_sub_u32 s{cN0}, s{cN0}, 1")
    a("s_branch K2_WALK0")
    a.label("K2_WALK0_DONE")
    next_item(a, 0, allow_cont=False)
    a(f"s_mov_b32 s{sFIRST}, 1")
    a(f"s_cmp_lg_u32 s{sWAVE}, 7")
    a("s_cbranch_scc1 K2_NOPUB")
    a(f"v_mov_b32 v{SC}, {L_FLAG+12}")
    a(f"v_mov_b32 v{SC+1}, s{sPOS}")
    a(f"ds_write_b32 v{SC}, v{SC+1}")
    a.label("K2_NOPUB")
    stamp()
    a("s_waitcnt lgkmcnt(0)")
    a("s_barrier")
    stamp()
    mk = MaskAlloc()
    emit_h_addr(a, mk, vHA)
    emit_h_loads(a)
    a(f"s_waitcnt vmcnt({4 + (touch if w1 == 25 else 0)})")
    a("s_barrier")
    a(f"s_cmp_eq_u32 s{sSIG}, 0")
    a("s_cbranch_scc1 K2_LOOP")
    a(f"s_add_u32 s{sT0}, s{sBASE}, s{sL0}")
    a(f"s_lshl_b32 s{sT0}, s{sT0}, 10")
    a(f"s_add_u32 s{sT0}, s{sT0}, s{sDMA}")
    a(f"s_add_u32 m0, s{sDMA}, {L_OWN}")
    for i in range(NL // 4):
        a(f"buffer_load_dwordx4 v{vWB0}, s[{SRD_SV}:{SRD_SV+3}], s{sT0} offen lds")
        a("s_add_u32 m0, m0, 0x1000")
        a(f"s_add_u32 s{sT0}, s{sT0}, 0x1000")
    a(f"s_mov_b32 s{sFIRST}, 0")
    a.label("K2_LOOP")
    stamp()
    for cs, ns in ((cN0, nN0), (cNN, nNN), (cEB, nEB), (cNE, nNE), (cE1, nE1), (cOFF, nOFF), (sCE32, sNE32),
                   (SRD_OWN, nSRC), (SRD_OWN + 1, nSRC + 1)):
        a(f"s_mov_b32 s{cs}, s{ns}")
    a(f"s_cmp_eq_u32 s{cNN}, 0")
    a("s_cbranch_scc1 K2_DONE")
    a(f"v_mov_b32 v{T[18]}, {L_FLAG+8}")
    a(f"v_add_u32 v{T[16]}, s{sCE32}, v{vRB}")
    a(f"v_add_u32 v{T[17]}, s{sCE32}, v{vRECQ}")
    a(f"ds_read_b64 v[{T[24]}:{T[25]}], v{T[18]}")
    for r in range(4):
        a(f"ds_read_b128 {q(T[4*r])}, v{T[17]} offset:{32*r}")
    a(f"ds_read_b64 {d(vRBOP)}, v{T[16]}")
    mk = MaskAlloc()
    m0_, m1_ = mk(), mk()
    a(f"v_cmp_gt_u32_e64 {m0_}, s{cNN}, v{v2Q}")
    a(f"v_add_u32 v{T[30]}, 1, v{v2Q}")
    a(f"v_add_u32 v{T[31]}, 0x400, v{vOWN0}")
    a(f"v_cmp_gt_u32_e64 {m1_}, s{cNN}, v{T[30]}")
    a(f"v_cndmask_b32_e64 v{vOA0}, v{vOOB}, v{vOWN0}, {m0_}")
    ms = []
    for r in range(4):
        m = mk()
        ms.append(m)
        a(f"v_add_u32 v{T[20+r]}, {r}, v{vQ4}")
        a(f"v_cmp_gt_u32_e64 {m}, s{cNE}, v{T[20+r]}")
    a(f"v_cndmask_b32_e64 v{vOA1}, v{vOOB}, v{T[31]}, {m1_}")
    a(f"s_sub_u32 s{sT0}, s{cN0}, s{sL0}")
    a(f"s_lshl_b32 s{sT0}, s{sT0}, 10")
    a(f"s_add_u32 s{sT0}, s{sT0}, {L_OWN}")
    a(f"v_add_u32 v{T[19]}, s{sT0}, v{vOWN0}")
    a(f"s_xor_b32 s{sHW}, s{sFIRST}, 1")
    a(f"s_mov_b32 s{sFIRST}, 0")
    a(f"v_readfirstlane_b32 s{sT0}, v{T[24]}")
    a(f"v_readfirstlane_b32 s{tPOS}, v{T[25]}")
    for r in range(4):
        a(f"v_add_u32 v{vVA+r}, v{T[4*r]}, v{vN16}")
        a(f"v_cndmask_b32_e64 v{vVA+r}, v{vOOB}, v{vVA+r}, {ms[r]}")
        a(f"v_subrev_u32 v{T[4*r+1]}, s{cN0}, v{T[4*r+1]}")
        a(f"v_cndmask_b32_e64 v{T[4*r+1]}, -2, v{T[4*r+1]}, {ms[r]}")
    a("s_waitcnt lgkmcnt(0)")
    if exp == 1:
        a("s_waitcnt vmcnt(0)")
    a(f"s_cmp_eq_u32 s{sT0}, {4 if usel else 77}")
    a(f"s_cselect_b32 s{sT0}, s{nLDS}, 0")
    if ownin:
        a("s_branch K2_OWN_DONE")
    a(f"s_cmp_eq_u32 s{sT0}, 0")
    a("s_cbranch_scc1 K2_OWN_GLOBAL")
    for c in range(4):
        for h in range(2):
            a(f"ds_read_b128 {q(Oq(c,h))}, v{T[19]} offset:{1024*h+256*c} ; NOWAIT")
    a("s_branch K2_OWN_DONE")
    a.label("K2_OWN_GLOBAL")
    for c in range(4):
        for h, va in ((0, vOA0), (1, vOA1)):
            a(f"buffer_load_dwordx4 {q(Oq(c,h))}, v{va}, s[{SRD_OWN}:{SRD_OWN+3}], s{cOFF} offen offset:{256*c}{NTO if c == 0 else ''}")
    a(f"s_add_u32 s{sHW}, s{sHW}, 1")
    a.label("K2_OWN_DONE")
    a(f"s_add_u32 s{nEB}, s{cEB}, 16")
    a(f"s_mov_b32 s{tCONT}, 1")
    a(f"s_cmp_lt_u32 s{nEB}, s{cE1}")
    a("s_cbranch_scc1 K2_CLAIMED")
    a(f"s_mov_b32 s{tCONT}, s{sROUND}")
    a(f"v_mov_b32 v{T[26]}, {L_FLAG+12}")
    a.label("K2_CLAIM")
    a(f"s_mov_b32 s{sPOS}, s{tPOS}")
    a(f"s_mov_b32 s{nN0}, s{tPOS}")
    a(f"v_mov_b32 v{T[27]}, s{tPOS}")
    advance(a)
    a(f"v_mov_b32 v{T[28]}, s{sPOS}")
    a("s_mov_b64 exec, 1")
    a(f"ds_cmpst_rtn_b32 v{T[29]}, v{T[26]}, v{T[27]}, v{T[28]} ; NOWAIT")
    a("s_mov_b64 exec, -1")
    lookup_p(a, nE1)
    a(f"s_mov_b32 s{tE1}, s{sPOS}")
    a(f"s_mov_b32 s{sPOS}, s{nN0}")
    lookup_p(a, nEB)
    a(f"s_mov_b32 s{sPOS}, s{tE1}")
    a("s_waitcnt lgkmcnt(0)")
    a(f"v_readfirstlane_b32 s{tPOS}, v{T[29]}")
    a(f"s_cmp_lg_u32 s{tPOS}, s{nN0}")
    a("s_cbranch_scc1 K2_CLAIM")
    a.label("K2_CLAIMED")
    stamp()
    a(f"s_cmp_eq_u32 s{sHW}, 1")
    a("s_cbranch_scc1 K2_HW1")
    a(f"s_cmp_eq_u32 s{sHW}, 2")
    a("s_cbranch_scc1 K2_HW2")
    a("s_waitcnt vmcnt(0)")
    a.label("K2_HW1")
    a("s_waitcnt vmcnt(8)")
    a.label("K2_HW2")
    a("s_waitcnt vmcnt(16) lgkmcnt(0)")
    stamp()
    a(f"s_cmp_eq_u32 s{cNE}, 0")
    a("s_cbranch_scc1 K2_COPY")
    if not memonly:
        blk = item_block().ins
        if do_sched:
            blk, t = schedule(blk, lds_lat=ldsl)
            print("item block: %d instructions, modelled %d cycles" % (len(blk), t))
        if prio:
            i1 = next(i for i, x in enumerate(blk) if ("vmcnt(22)" if ownin else "vmcnt(16)") in x.text)
            hi, lo = ("2", "0") if prio == 1 else ("0", "2")
            blk = [Ins(f"s_setprio {hi}")] + blk[:i1] + [Ins(f"s_setprio {lo}")] + blk[i1:]
        i1 = next(i for i, x in enumerate(blk) if "vmcnt(16)" in x.text)
        a.extend(blk[:i1 + 1])
        a(f"s_cmp_eq_u32 s{sSIG}, 0")
        a("s_cbranch_scc1 K2_NOSIG")
        a(f"v_mov_b32 v{PH0}, {L_FLAG+8}")
        a(f"v_mov_b32 v{PH0+1}, 1")
        a("s_mov_b64 exec, 1")
        a(f"ds_add_u32 v{PH0}, v{PH0+1}")
        a("s_mov_b64 exec, -1")
        a(f"s_mov_b32 s{sSIG}, 0")
        a.label("K2_NOSIG")
        a.extend(blk[i1 + 1:])
        a("s_branch K2_LOOP")
    a.label("K2_COPY")
    a.extend(item_block(memonly=True).ins)
    a("s_branch K2_LOOP")
    a.label("K2_DONE")
    if stamps:
        a("s_waitcnt vmcnt(0)")
        stamp()
        rstamp(31)
        a(f"v_lshlrev_b32 v252, 2, v{vLANE}")
        a(f"v_add_u32 v253, s{sST+1}, v252")
        a("ds_read_b32 v254, v253")
        a("s_lshl_b32 s10, s2, 3")
        a(f"s_add_u32 s10, s10, s{sWAVE}")
        a("s_lshl_b32 s10, s10, 7")
        a(f"s_add_u32 s10, s10, {WS_STAMP2}")
        a(f"s_mov_b64 exec, 0xffffffff")
        a(f"buffer_store_dword v254, v252, s[{SRD_WS}:{SRD_WS+3}], s10 offen")
        a("s_mov_b64 exec, -1")
    a(f"s_cmp_eq_u32 s{sMORE}, 0")
    a("s_cbranch_scc1 K2_END")
    a(f"s_add_u32 s{sJ0}, s{sJ0}, s{sR}")
    a(f"s_mov_b32 s{sROUND}, 1")
    a(f"s_mov_b32 s{sSIG}, 0")
    a("s_waitcnt vmcnt(0)")
    desc_addr()
    desc_load()
    a("s_waitcnt vmcnt(0)")
    a("s_barrier")
    zero_counters()
    a("s_branch K2_ROUND")
    a.label("K2_END")
    a("s_endpgm")
    return a
```

```python
from asmlib import Asm, schedule

N = 25000
E = 400000
G = 125
EPG = 3200
BIN_MAGIC = 43980480

WS_W2 = 0
WS_WR = 98304
WS_WEND = 101376
WS_DESC = 0x40000
WS_REC = 0x100000
WS_H = 0xE00000
WS_STAMP1 = 0x1500000
WS_STAMP2 = 0x1600000
WS_SIZE = 0x2000000

K1_CNT = 150528
K1_P = K1_CNT + 1024
K1_LDS = K1_P + 1024
K1_STAMP = K1_LDS


def srd(a, d, base, size):
    a(f"s_mov_b32 s{d}, s{base}")
    a(f"s_mov_b32 s{d+1}, s{base+1}")
    a(f"s_mov_b32 s{d+2}, {size}")
    a(f"s_mov_b32 s{d+3}, 0x00020000")


def wave_scan(a, v):
    for sh in (1, 2, 4, 8):
        a(f"v_add_u32_dpp v{v}, v{v}, v{v} row_shr:{sh} row_mask:0xf bank_mask:0xf bound_ctrl:0")
    a(f"v_add_u32_dpp v{v}, v{v}, v{v} row_bcast:15 row_mask:0xa bank_mask:0xf")
    a(f"v_add_u32_dpp v{v}, v{v}, v{v} row_bcast:31 row_mask:0xc bank_mask:0xf")


def q(b):
    return f"v[{b}:{b+3}]"


def gen_k1(stamps=False, pf=2, early_s=False, rot=True, nte=False, ntp=False, nts=False, ntw=False, st1="", sth="", pfv=0, scan1=False, te=False, th=False, ua=0):
    a = Asm()
    NTE = " nt" if nte else ""
    NTP = " nt" if ntp else ""
    NTS = " nt" if nts else ""
    NTW = " nt" if ntw else ""

    def touch():
        if not pf:
            return
        a("s_mul_i32 s92, s2, 3125")
        a("s_add_u32 s92, s92, 31")
        a("s_lshr_b32 s92, s92, 5")
        a("s_lshl_b32 s92, s92, 10")
        a("v_lshlrev_b32 v122, 7, v0")
        a("v_cmp_gt_u32 vcc, 784, v0")
        a("v_mov_b32 v123, 0x40000000")
        a("v_cndmask_b32 v122, v123, v122, vcc")
        a("buffer_load_dword v120, v122, s[84:87], s92 offen nt")

    def stamp():
        if not stamps:
            return
        a("s_mov_b64 s[76:77], exec")
        a("s_mov_b64 exec, -1")
        a("s_memtime s[74:75]")
        a("s_waitcnt lgkmcnt(0)")
        a("v_mov_b32 v124, s74")
        a("v_mov_b32 v125, s78")
        a("ds_write_b32 v125, v124")
        a("s_add_u32 s78, s78, 4")
        a("s_mov_b64 exec, s[76:77]")

    a.label("edge_bin_kernel")
    a("s_cmp_ge_u32 s2, 256")
    a("s_cbranch_scc1 K1_END")
    if stamps:
        a("v_lshrrev_b32 v124, 6, v0")
        a("v_readfirstlane_b32 s78, v124")
        a("s_lshl_b32 s78, s78, 6")
        a(f"s_add_u32 s78, s78, {K1_STAMP}")
        a("s_mov_b32 s79, s78")
        a("v_and_b32 v124, 15, v0")
        a("v_lshlrev_b32 v124, 2, v124")
        a("v_add_u32 v124, s78, v124")
        a("v_mov_b32 v125, 0")
        a("ds_write_b32 v124, v125")
        stamp()
    a("s_load_dwordx4 s[4:7], s[0:1], 8")
    a("s_load_dwordx4 s[8:11], s[0:1], 24")
    a("s_load_dwordx4 s[12:15], s[0:1], 40")
    a("s_load_dwordx2 s[16:17], s[0:1], 56")
    a("s_load_dwordx2 s[18:19], s[0:1], 80")
    a("s_load_dwordx2 s[80:81], s[0:1], 0")
    a("v_lshrrev_b32 v1, 6, v0")
    a("v_and_b32 v6, 63, v0")
    a("v_readfirstlane_b32 s3, v1")
    a("s_mov_b32 s52, 0xffff0000")
    a("s_lshr_b32 s53, s2, 4")
    a("s_lshl_b32 s53, s53, 3")
    a("s_and_b32 s54, s2, 7")
    a("s_or_b32 s73, s53, s54")
    a("v_lshlrev_b32 v9, 4, v6")
    a("s_waitcnt lgkmcnt(0)")
    srd(a, 20, 4, N * 6)
    srd(a, 24, 6, E * 4)
    srd(a, 28, 8, E * 4)
    srd(a, 32, 18, WS_SIZE)
    srd(a, 36, 12, 128 * 128 * 2)
    srd(a, 40, 14, 128 * 384 * 2)
    srd(a, 44, 16, 4 * 384 * 2)
    srd(a, 84, 80, N * 1024)
    a(f"s_add_u32 s88, s18, {WS_H}")
    a("s_addc_u32 s89, s19, 0")
    a(f"s_mov_b32 s90, {N*256}")
    a("s_mov_b32 s91, 0x00020000")
    a("s_bitcmp1_b32 s2, 3")
    a("s_cbranch_scc1 K1_HROLE")
    a(f"s_cmp_ge_u32 s73, {G}")
    a("s_cbranch_scc1 K1_WEIGHTS")
    stamp()
    a(f"s_mul_i32 s53, s73, {EPG*4}")
    a("v_lshlrev_b32 v7, 4, v0")
    a("v_cmp_gt_u32 vcc, 800, v0")
    a("v_mov_b32 v8, 0x40000000")
    a("s_mov_b64 s[50:51], vcc")
    a("v_cndmask_b32 v7, v8, v7, vcc")
    if te:
        a("s_cmp_ge_u32 s3, 4")
        a("s_cbranch_scc1 K1_NOTOUCH")
        a("v_and_b32 v10, 0x7f, v0")
        a("v_lshlrev_b32 v10, 7, v10")
        a(f"v_cmp_gt_u32 vcc, {EPG*4}, v10")
        a("v_cndmask_b32 v10, v8, v10, vcc")
        a("s_cmp_ge_u32 s3, 2")
        a("s_cbranch_scc1 K1_TOUCHD")
        a("buffer_load_dword v120, v10, s[24:27], s53 offen" + NTE)
        a("s_branch K1_NOTOUCH")
        a.label("K1_TOUCHD")
        a("buffer_load_dword v120, v10, s[28:31], s53 offen" + NTE)
        a.label("K1_NOTOUCH")
    a("buffer_load_dwordx4 v[56:59], v7, s[24:27], s53 offen" + NTE)
    a("buffer_load_dwordx4 v[60:63], v7, s[28:31], s53 offen" + NTE)
    a("s_lshr_b32 s54, s73, 3")
    a("s_mul_i32 s54, s54, 5")
    a("s_lshr_b32 s54, s54, 3")
    if not rot:
        a("s_mov_b32 s54, 0")
    a("s_lshl_b32 s54, s54, 4")
    a("s_add_u32 s54, s54, s3")
    a("s_lshl_b32 m0, s54, 10")
    for k in range(10):
        a(f"s_cmp_ge_u32 m0, {147*1024}")
        a(f"s_cbranch_scc1 K1_SKIP{k}")
        a(f"buffer_load_dwordx4 v9, s[20:23], m0 offen{NTP} lds")
        a.label(f"K1_SKIP{k}")
        if k < 9:
            a("s_add_u32 m0, m0, 0x4000")
            a(f"s_sub_u32 s54, m0, {160*1024}")
            a(f"s_cmp_ge_u32 m0, {160*1024}")
            a("s_cselect_b32 m0, s54, m0")
    a("s_load_dwordx2 s[48:49], s[10:11], 0")
    a("v_lshlrev_b32 v10, 2, v0")
    a(f"v_add_u32 v10, {K1_CNT}, v10")
    a("v_mov_b32 v11, 0")
    a("v_cmp_gt_u32 vcc, 256, v0")
    a("s_and_saveexec_b64 s[56:57], vcc")
    a("ds_write_b32 v10, v11")
    a("s_mov_b64 exec, s[56:57]")
    a(f"s_mov_b32 s55, {BIN_MAGIC}")
    a(f"s_mov_b32 s58, {K1_CNT}")
    a("s_movk_i32 s59, 0x200")
    a("v_mov_b32 v5, 1")
    for e in range(4):
        a(f"s_mov_b64 s[{60+2*e}:{61+2*e}], 0")
    SRC, DST = 56, 60
    AD = 64
    SH = 72
    CA = 80
    RK = 84
    PP = 88
    EN = 104
    a("s_waitcnt vmcnt(9)")
    for i in range(8):
        r = SRC + i
        a(f"v_mul_u32_u24 v{AD+i}, 6, v{r}")
        if ua != 2:
            a(f"v_and_b32 v{AD+i}, -4, v{AD+i}")
            a(f"v_and_b32 v{SH+i}, 1, v{r}")
            a(f"v_lshlrev_b32 v{SH+i}, 4, v{SH+i}")
    for e in range(4):
        a(f"v_mul_hi_u32 v{CA+e}, v{DST+e}, s55")
        a(f"v_lshl_add_u32 v{CA+e}, v{CA+e}, 2, s58")
        a(f"v_mov_b32 v{EN+4*e}, v{SRC+e}")
        a(f"v_mov_b32 v{EN+4*e+1}, v{DST+e}")
    stamp()
    a("s_waitcnt vmcnt(0) lgkmcnt(0)")
    stamp()
    a("s_barrier")
    stamp()
    touch()
    a("s_mov_b64 exec, s[50:51]")
    a("s_cbranch_execz K1_PHASE_B")
    for e in range(4):
        for i in (e, 4 + e):
            if ua:
                a(f"ds_read_b64 v[{PP+2*i}:{PP+2*i+1}], v{AD+i}")
            else:
                a(f"ds_read2_b32 v[{PP+2*i}:{PP+2*i+1}], v{AD+i} offset0:0 offset1:1")
    for e in range(4):
        s, d = PP + 2 * e, PP + 8 + 2 * e
        t = 12 + 8 * e
        if ua != 2:
            a(f"v_lshrrev_b64 v[{s}:{s+1}], v{SH+e}, v[{s}:{s+1}]")
            a(f"v_lshrrev_b64 v[{d}:{d+1}], v{SH+4+e}, v[{d}:{d+1}]")
        a(f"v_lshlrev_b32 v{t}, 16, v{s}")
        a(f"v_lshlrev_b32 v{t+1}, 16, v{d}")
        a(f"v_and_b32 v{t+2}, s52, v{s}")
        a(f"v_and_b32 v{t+3}, s52, v{d}")
        a(f"v_lshlrev_b32 v{t+4}, 16, v{s+1}")
        a(f"v_lshlrev_b32 v{t+5}, 16, v{d+1}")
        a(f"v_sub_f32 v{t}, v{t}, v{t+1}")
        a(f"v_sub_f32 v{t+2}, v{t+2}, v{t+3}")
        a(f"v_sub_f32 v{EN+4*e+3}, v{t+4}, v{t+5}")
        a(f"v_cvt_pk_bf16_f32 v{EN+4*e+2}, v{t}, v{t+2}")
        a(f"v_mul_f32 v{t+1}, v{t}, v{t}")
        a(f"v_fmac_f32 v{t+1}, v{t+2}, v{t+2}")
        a(f"v_fmac_f32 v{t+1}, v{EN+4*e+3}, v{EN+4*e+3}")
        a(f"v_cmp_nlt_f32 vcc, 0x41c20000, v{t+1}")
        a(f"v_cmp_class_f32_e64 s[{60+2*e}:{61+2*e}], v{t+1}, s59")
        a(f"s_or_b64 s[{60+2*e}:{61+2*e}], s[{60+2*e}:{61+2*e}], vcc")
        a(f"s_mov_b64 exec, s[{60+2*e}:{61+2*e}]")
        a(f"ds_add_rtn_u32 v{RK+e}, v{CA+e}, v5")
        a("s_mov_b64 exec, s[50:51]")
    a.label("K1_PHASE_B")
    a("s_mov_b64 exec, -1")
    stamp()
    a("s_barrier")
    stamp()
    if scan1:
        a("s_cmp_lg_u32 s3, 15")
        a("s_cbranch_scc1 K1_NODESC")
        a("s_setprio 3")
    a(f"v_add_u32 v10, {K1_CNT}, v9")
    a("ds_read_b128 v[12:15], v10")
    a("v_add_u32 v17, v12, v13")
    a("v_add_u32 v18, v17, v14")
    a("v_add_u32 v19, v18, v15")
    a("v_mov_b32 v20, v19")
    wave_scan(a, 20)
    a("v_sub_u32 v24, v20, v19")
    a("v_add_u32 v25, v24, v12")
    a("v_add_u32 v26, v24, v17")
    a("v_add_u32 v27, v24, v18")
    a("ds_write_b128 v10, v[24:27] offset:1024")
    if scan1:
        a("ds_write_b32 v10, v20")
        a("s_waitcnt lgkmcnt(0)")
        a("s_barrier")
    else:
        a("v_readlane_b32 s68, v20, 63")
        a("s_cmp_lg_u32 s3, 15")
        a("s_cbranch_scc1 K1_NODESC")
    for i in range(4):
        a(f"v_lshl_or_b32 v{28+i}, v{12+i}, 16, v{24+i}")
    a("s_lshl_b32 s69, s73, 10")
    a(f"s_add_u32 s69, s69, {WS_DESC}")
    a("buffer_store_dwordx4 v[28:31], v9, s[32:35], s69 offen")
    if scan1:
        a("s_branch K1_SCANNED")
    a.label("K1_NODESC")
    if scan1:
        a("s_barrier")
        a.label("K1_SCANNED")
        a(f"v_mov_b32 v20, {K1_CNT + 63*16}")
        a("ds_read_b32 v20, v20")
    for e in range(4):
        a(f"s_mov_b64 exec, s[{60+2*e}:{61+2*e}]")
        a(f"ds_read_b32 v{12+e}, v{CA+e} offset:1024")
    for e in range(4):
        a(f"s_mov_b64 exec, s[{60+2*e}:{61+2*e}]")
        a(f"v_add_lshl_u32 v{12+e}, v{12+e}, v{RK+e}, 4")
        a(f"ds_write_b128 v{12+e}, {q(EN+4*e)}")
    a("s_mov_b64 exec, -1")
    if scan1:
        a("v_readfirstlane_b32 s68, v20")
    a("s_lshl_b32 s60, s48, 16")
    a("s_and_b32 s61, s48, s52")
    a("s_lshl_b32 s62, s49, 16")
    a("s_and_b32 s63, s49, s52")
    a(f"s_mul_i32 s69, s73, {EPG*32}")
    a(f"s_add_u32 s69, s69, {WS_REC}")
    a("s_movk_i32 s70, 3125")
    a("s_mov_b32 s71, 0x40a00000")
    stamp()
    a("s_barrier")
    stamp()
    a("v_mov_b32 v8, v0")
    a("s_lshl_b32 s72, s3, 6")
    a.label("K1_DENSE")
    a("s_cmp_ge_u32 s72, s68")
    a("s_cbranch_scc1 K1_FIN")
    a("v_cmp_gt_u32 vcc, s68, v8")
    a("s_and_b64 exec, exec, vcc")
    b = Asm()
    b("v_lshlrev_b32 v10, 4, v8")
    b("ds_read_b128 v[12:15], v10")
    b("v_cvt_pk_bf16_f32 v15, v15, v15")
    b("v_and_b32 v15, s52, v15")
    b("v_lshlrev_b32 v16, 16, v14")
    b("v_and_b32 v17, s52, v14")
    b("v_mul_f32 v18, v16, v16")
    b("v_mul_f32 v19, v17, v17")
    b("v_mul_f32 v20, v15, v15")
    b("v_cvt_pk_bf16_f32 v18, v18, v19")
    b("v_cvt_pk_bf16_f32 v20, v20, v20")
    b("v_and_b32 v19, s52, v18")
    b("v_lshlrev_b32 v18, 16, v18")
    b("v_and_b32 v20, s52, v20")
    b("v_add_f32 v18, v18, v19")
    b("v_add_f32 v18, v18, v20")
    b("v_cvt_pk_bf16_f32 v18, v18, v18")
    b("v_and_b32 v18, s52, v18")
    b("v_add_f32 v18, 0x322bcc77, v18")
    b("v_cvt_pk_bf16_f32 v18, v18, v18")
    b("v_and_b32 v18, s52, v18")
    b("v_sqrt_f32 v18, v18")
    b("v_mul_hi_u32 v21, v13, s55")
    b("v_mul_u32_u24 v21, s70, v21")
    b("v_add_u32 v21, 31, v21")
    b("v_lshrrev_b32 v21, 5, v21")
    b("v_lshlrev_b32 v44, 10, v12")
    b("v_sub_u32 v45, v13, v21")
    b("v_cvt_pk_bf16_f32 v18, v18, v18")
    b("v_and_b32 v18, s52, v18")
    b("v_rcp_f32 v19, v18")
    for k in range(4):
        b(f"v_mul_f32 v{22+k}, s{60+k}, v18")
    b("v_mul_f32 v26, 0x40490fdb, v18")
    b("v_cvt_pk_bf16_f32 v22, v22, v23")
    b("v_cvt_pk_bf16_f32 v24, v24, v25")
    b("v_cvt_pk_bf16_f32 v26, v26, v26")
    b("v_and_b32 v23, s52, v22")
    b("v_lshlrev_b32 v22, 16, v22")
    b("v_and_b32 v25, s52, v24")
    b("v_lshlrev_b32 v24, 16, v24")
    b("v_and_b32 v26, s52, v26")
    b("v_mul_f32 v26, 0x3e4ccccd, v26")
    b("v_cvt_pk_bf16_f32 v26, v26, v26")
    b("v_and_b32 v26, s52, v26")
    for k in range(5):
        b(f"v_mul_f32 v{22+k}, 0.15915494, v{22+k}")
    for k in range(5):
        b(f"v_rndne_f32 v{28+k}, v{22+k}")
    for k in range(5):
        b(f"v_sub_f32 v{22+k}, v{22+k}, v{28+k}")
    for k in range(4):
        b(f"v_sin_f32 v{22+k}, v{22+k}")
    b("v_cos_f32 v26, v26")
    b("v_mul_f32 v16, v16, v19")
    b("v_mul_f32 v17, v17, v19")
    b("v_mul_f32 v15, v15, v19")
    b("v_cvt_pk_bf16_f32 v46, v16, v17")
    b("v_cvt_pk_bf16_f32 v47, v15, 0")
    b("v_cvt_pk_bf16_f32 v22, v22, v23")
    b("v_cvt_pk_bf16_f32 v24, v24, v25")
    b("v_cvt_pk_bf16_f32 v26, v26, v26")
    b("v_and_b32 v23, s52, v22")
    b("v_lshlrev_b32 v22, 16, v22")
    b("v_and_b32 v25, s52, v24")
    b("v_lshlrev_b32 v24, 16, v24")
    b("v_and_b32 v26, s52, v26")
    for k in range(4):
        b(f"v_mul_f32 v{22+k}, v{22+k}, v19")
    b("v_add_f32 v26, 1.0, v26")
    b("v_cvt_pk_bf16_f32 v22, v22, v23")
    b("v_cvt_pk_bf16_f32 v24, v24, v25")
    b("v_cvt_pk_bf16_f32 v26, v26, v26")
    b("v_and_b32 v23, s52, v22")
    b("v_lshlrev_b32 v22, 16, v22")
    b("v_and_b32 v25, s52, v24")
    b("v_lshlrev_b32 v24, 16, v24")
    b("v_and_b32 v26, s52, v26")
    b("v_mul_f32 v26, 0.5, v26")
    b("v_mul_f32 v27, 0, v18")
    b("v_cmp_gt_f32 vcc, s71, v18")
    b("v_cndmask_b32 v26, v27, v26, vcc")
    for k in range(4):
        b(f"v_mul_f32 v{22+k}, v{22+k}, v26")
    b("v_cvt_pk_bf16_f32 v48, v22, v23")
    b("v_cvt_pk_bf16_f32 v49, v24, v25")
    b("v_lshlrev_b32 v28, 16, v48")
    b("v_and_b32 v29, s52, v48")
    b("v_lshlrev_b32 v30, 16, v49")
    b("v_and_b32 v31, s52, v49")
    for k in range(4):
        b(f"v_sub_f32 v{22+k}, v{22+k}, v{28+k}")
    b("v_cvt_pk_bf16_f32 v50, v22, v23")
    b("v_cvt_pk_bf16_f32 v51, v24, v25")
    b("v_lshlrev_b32 v11, 5, v8")
    b("buffer_store_dwordx4 v[44:47], v11, s[32:35], s69 offen " + st1)
    b("buffer_store_dwordx4 v[48:51], v11, s[32:35], s69 offen offset:16 " + st1)
    a.extend(schedule(b.ins)[0])
    a("v_add_u32 v8, 0x400, v8")
    a("s_add_u32 s72, s72, 0x400")
    a("s_branch K1_DENSE")
    a.label("K1_WEIGHTS")
    touch()
    a(f"s_cmp_lg_u32 s73, {G}")
    a("s_cbranch_scc1 K1_END")
    a("s_mov_b32 s64, 0x05040100")
    a("s_mov_b32 s65, 0x07060302")
    a("v_and_b32 v7, 15, v0")
    a("v_bfe_u32 v8, v0, 4, 2")
    a("s_cmp_ge_u32 s3, 12")
    a("s_cbranch_scc1 K1_WRBF")
    a("v_mul_u32_u24 v10, 6144, v8")
    a("v_lshl_add_u32 v10, v7, 4, v10")
    a("v_add_u32 v11, 3072, v10")
    a("s_and_b32 s55, s3, 3")
    a("s_lshr_b32 s57, s3, 2")
    a("s_mul_i32 s59, s55, 24576")
    a("s_lshl_b32 s60, s57, 8")
    a("s_add_u32 s59, s59, s60")
    for j in range(8):
        a(f"buffer_load_dwordx4 {q(12+4*j)}, v{10 + j//4}, s[40:43], s59 offen offset:{768*(j%4)}{NTW}")
    a("s_lshl_b32 s62, s57, 15")
    a("s_lshl_b32 s60, s55, 10")
    a("s_add_u32 s62, s62, s60")
    a("s_waitcnt vmcnt(0)")
    for T in range(8):
        o = 48 + 4 * T
        for jj in range(4):
            a(f"v_perm_b32 v{o+jj}, v{12+4*(2*jj+1)+T//2}, v{12+4*(2*jj)+T//2}, s{64+T%2}")
        a(f"buffer_store_dwordx4 {q(o)}, v9, s[32:35], s62 offen")
        a("s_add_u32 s62, s62, 0x1000")
    a("s_branch K1_END")
    a.label("K1_WRBF")
    a("s_cmp_lg_u32 s3, 12")
    a("s_cbranch_scc1 K1_END")
    for j in range(4):
        a(f"buffer_load_dwordx4 {q(12+4*j)}, v9, s[44:47], 0 offen offset:{768*j}")
    a("v_lshlrev_b32 v10, 10, v8")
    a("v_lshl_add_u32 v10, v7, 3, v10")
    a(f"s_mov_b32 s62, {WS_WR}")
    a("s_mov_b32 exec_hi, 0xffff")
    a("s_waitcnt vmcnt(0)")
    for T in range(8):
        o = 48 + 2 * T
        a(f"v_perm_b32 v{o}, v{16+T//2}, v{12+T//2}, s{64+T%2}")
        a(f"v_perm_b32 v{o+1}, v{24+T//2}, v{20+T//2}, s{64+T%2}")
        a(f"buffer_store_dwordx2 v[{o}:{o+1}], v10, s[32:35], s62 offen offset:{128*T}")
    a("s_branch K1_END")
    a.label("K1_HROLE")
    stamp()
    a("v_and_b32 v7, 15, v0")
    a("v_bfe_u32 v8, v0, 4, 2")
    a("s_cmp_ge_u32 s3, 7")
    a("s_cselect_b32 s56, 0, 8")
    a("s_cselect_b32 s57, 7, 0")
    a("s_sub_u32 s56, s2, s56")
    a("s_sub_u32 s57, s3, s57")
    a("s_mul_i32 s56, s56, 3125")
    a("s_add_u32 s56, s56, 31")
    a("s_lshr_b32 s56, s56, 5")
    a("s_lshl_b32 s57, s57, 4")
    a("s_add_u32 s57, s57, s56")
    a("s_lshl_b32 s58, s57, 10")
    a("v_lshlrev_b32 v11, 10, v7")
    a("v_lshl_add_u32 v11, v8, 4, v11")
    SA = 40
    a("s_cmp_ge_u32 s3, 4")
    a("s_cbranch_scc1 K1_NOW1")
    a("s_mov_b32 s64, 0x05040100")
    a("s_mov_b32 s65, 0x07060302")
    a("v_lshlrev_b32 v10, 11, v8")
    a("v_lshl_add_u32 v10, v7, 4, v10")
    a("s_lshl_b32 s59, s3, 13")
    WR_ = 56
    for j in range(8):
        a(f"buffer_load_dwordx4 {q(WR_+4*j)}, v10, s[36:39], s59 offen offset:{256*j}{NTW}")
    if early_s:
        for t in range(4):
            a(f"buffer_load_dwordx4 {q(SA+4*t)}, v11, s[84:87], s58 offen offset:{64*t}{NTS}")
    a("s_lshl_b32 s59, s3, 10")
    a("v_add_u32 v28, s59, v9")
    a(f"s_waitcnt vmcnt({4 if early_s else 0})")
    for T in range(8):
        o = 88 + 4 * T
        for jj in range(4):
            a(f"v_perm_b32 v{o+jj}, v{WR_+4*(2*jj+1)+T//2}, v{WR_+4*(2*jj)+T//2}, s{64+T%2}")
        a(f"ds_write_b128 v28, {q(o)} offset:{4096*T}")
    a("s_branch K1_W1DONE")
    a.label("K1_NOW1")
    if th:
        a("s_cmp_ge_u32 s3, 11")
        a("s_cbranch_scc1 K1_W1DONE")
        a("s_sub_u32 s60, s3, 4")
        a("s_lshl_b32 s60, s60, 1")
        a("v_lshrrev_b32 v12, 5, v6")
        a("v_add_u32 v12, s60, v12")
        a("v_cmp_le_u32 vcc, 7, v12")
        a("v_subrev_u32 v13, 7, v12")
        a("v_cndmask_b32 v12, v12, v13, vcc")
        a("s_sub_u32 s61, s2, 8")
        a("s_mul_i32 s61, s61, 3125")
        a("s_add_u32 s61, s61, 31")
        a("s_lshr_b32 s61, s61, 5")
        a("s_mul_i32 s62, s2, 3125")
        a("s_add_u32 s62, s62, 31")
        a("s_lshr_b32 s62, s62, 5")
        a("v_mov_b32 v13, s61")
        a("v_mov_b32 v14, s62")
        a("v_cndmask_b32 v13, v13, v14, vcc")
        a("v_lshl_add_u32 v13, v12, 4, v13")
        a("v_bfe_u32 v14, v6, 1, 4")
        a("v_add_u32 v13, v13, v14")
        a("v_and_b32 v14, 1, v6")
        a("v_lshlrev_b32 v13, 10, v13")
        a("v_lshl_add_u32 v13, v14, 7, v13")
        a("buffer_load_dword v120, v13, s[84:87], 0 offen" + NTS)
    if early_s:
        a("s_cmp_ge_u32 s3, 14")
        a("s_cbranch_scc1 K1_W1DONE")
        for t in range(4):
            a(f"buffer_load_dwordx4 {q(SA+4*t)}, v11, s[84:87], s58 offen offset:{64*t}{NTS}")
    a.label("K1_W1DONE")
    stamp()
    a("s_barrier")
    stamp()
    a("s_cmp_ge_u32 s3, 14")
    a("s_cbranch_scc1 K1_FIN")
    if not early_s:
        for t in range(4):
            a(f"buffer_load_dwordx4 {q(SA+4*t)}, v11, s[84:87], s58 offen offset:{64*t}{NTS}")
    if pf:
        a("s_waitcnt vmcnt(0)")
    touch()
    if pfv:
        a("v_lshrrev_b32 v122, 2, v6")
        a("v_and_b32 v123, 3, v6")
        a("v_lshlrev_b32 v122, 10, v122")
        a("v_lshl_add_u32 v122, v123, 7, v122")
        a(f"v_cmp_gt_u32 vcc, {pfv % 10}, v123")
        a("v_mov_b32 v123, 0x40000000")
        a("v_cndmask_b32 v122, v123, v122, vcc")
        if pfv >= 10:
            a("s_waitcnt vmcnt(0)")
        a("buffer_load_dword v120, v122, s[84:87], s58 offen offset:256")
    b = Asm()
    RING = [56 + 4 * i for i in range(4)]
    D0 = 72
    TM = 12
    OUT = 104
    kf = [0]

    def pfw():
        if kf[0] < 32:
            b(f"ds_read_b128 {q(RING[kf[0] % 4])}, v9 offset:{1024*kf[0]}")
            kf[0] += 1
    for _ in range(4):
        pfw()
    b(f"s_waitcnt vmcnt({1 if (pf or pfv) else 0})", guards=[f"v{SA+i}" for i in range(16)])
    k = 0
    for T in range(8):
        D = D0 + 4 * T
        for t in range(4):
            c = "0" if t == 0 else q(D)
            b(f"v_mfma_f32_16x16x32_bf16 {q(D)}, {q(SA+4*t)}, {q(RING[k % 4])}, {c}")
            k += 1
            pfw()
        for r in range(4):
            t = TM + (4 * T + r) % 16
            b(f"v_mul_f32 v{t}, 0xbfb8aa3b, v{D+r}")
            b(f"v_exp_f32 v{t}, v{t}")
            b(f"v_add_f32 v{t}, 1.0, v{t}")
            b(f"v_rcp_f32 v{t}, v{t}")
            b(f"v_mul_f32 v{D+r}, v{D+r}, v{t}")
        if T % 2 == 1:
            for r in range(4):
                b(f"v_cvt_pk_bf16_f32 v{OUT+4*r+T//2}, v{D-4+r}, v{D+r}")
    b("v_lshlrev_b32 v30, 10, v8")
    b("v_lshl_add_u32 v30, v7, 4, v30")
    b("s_lshl_b32 s58, s57, 8")
    for r in range(4):
        b(f"buffer_store_dwordx4 {q(OUT+4*r)}, v30, s[88:91], s58 offen offset:{256*r} {sth}")
    sch, tt = schedule(b.ins)
    print("K1 H tile: %d instructions, modelled %d cycles" % (len(sch), tt))
    a.extend(sch)
    a.label("K1_FIN")
    if stamps:
        stamp()
        a("s_waitcnt vmcnt(0)")
        stamp()
        a("s_mov_b64 exec, 0xffff")
        a("v_lshlrev_b32 v124, 2, v6")
        a("v_add_u32 v125, s79, v124")
        a("ds_read_b32 v126, v125")
        a("s_lshl_b32 s74, s2, 4")
        a("s_add_u32 s74, s74, s3")
        a("s_lshl_b32 s74, s74, 6")
        a(f"s_add_u32 s74, s74, {WS_STAMP1}")
        a("buffer_store_dword v126, v124, s[32:35], s74 offen")
    a.label("K1_END")
    a("s_endpgm")
    return a
```

```python
import sys
from asmlib import finalize, render
from gen3_k1 import gen_k1, K1_LDS
from gen10_k2 import gen_k2, K2_LDS
from gen import HEADER, kd

def build(path, **kw):
    st = kw.get("stamps", False)
    pf = kw.pop("pf", 2)
    k1kw = {k: kw.pop(k) for k in ("early_s", "rot", "nte", "ntp", "nts", "ntw", "st1", "sth", "pfv", "scan1", "te", "th", "ua", "cpf", "cp0", "tlbw") if k in kw}
    k1 = render(finalize(gen_k1(stamps=st, pf=pf, **k1kw).ins))
    k2 = render(finalize(gen_k2(**kw).ins))
    out = HEADER
    out += "; Two launches: edge_bin_kernel (per-edge geometry, cutoff test, binning by destination; H = silu(s@W1) per node;\n"
    out += "; weight re-layout), then message_kernel (phi = H@W2 per edge on MFMA, messages, segment sum on MFMA, residual add).\n"
    out += f"; @launch kernel=edge_bin_kernel grid=(256,1,1) block=(1024,1,1) lds={K1_LDS + (1024 if st else 0)}\n"
    out += f"; @launch kernel=message_kernel grid=(256,1,1) block=(512,1,1) lds={K2_LDS}\n"
    out += '.amdgcn_target "amdgcn-amd-amdhsa--gfx950"\n.text\n'
    for name, body in (("edge_bin_kernel", k1), ("message_kernel", k2)):
        out += f".globl {name}\n.p2align 8\n.type {name},@function\n" + body
    out += '.section .rodata,"a"\n.p2align 6\n' + kd("edge_bin_kernel", 128, 96) + ".p2align 6\n" + kd("message_kernel", 256, 102)
    open(path, "w").write(out)

if __name__ == "__main__":
    kw = {}
    for x in sys.argv[2:]:
        k, v = x.split("=")
        kw[k] = eval(v)
    build(sys.argv[1], **kw)
```

```python
from asmlib import Asm, schedule

N = 25000
E = 400000
G = 125
EPG = 3200
BIN_MAGIC = 43980480

WS_W2 = 0
WS_WR = 98304
WS_WEND = 101376
WS_DESC = 0x40000
WS_REC = 0x100000
WS_H = 0xE00000
WS_STAMP1 = 0x1500000
WS_STAMP2 = 0x1600000
WS_SIZE = 0x2000000

K1_CNT = 150528
K1_P = K1_CNT + 1024
K1_LDS = K1_P + 1024
K1_STAMP = K1_LDS


def srd(a, d, base, size):
    a(f"s_mov_b32 s{d}, s{base}")
    a(f"s_mov_b32 s{d+1}, s{base+1}")
    a(f"s_mov_b32 s{d+2}, {size}")
    a(f"s_mov_b32 s{d+3}, 0x00020000")


def wave_scan(a, v):
    for sh in (1, 2, 4, 8):
        a(f"v_add_u32_dpp v{v}, v{v}, v{v} row_shr:{sh} row_mask:0xf bank_mask:0xf bound_ctrl:0")
    a(f"v_add_u32_dpp v{v}, v{v}, v{v} row_bcast:15 row_mask:0xa bank_mask:0xf")
    a(f"v_add_u32_dpp v{v}, v{v}, v{v} row_bcast:31 row_mask:0xc bank_mask:0xf")


def q(b):
    return f"v[{b}:{b+3}]"


def gen_k1(stamps=False, pf=2, early_s=False, rot=True, nte=False, ntp=False, nts=False, ntw=False, st1="", sth="", pfv=0, scan1=False, te=False, th=False, ua=0, cpf=0):
    a = Asm()
    NTE = " nt" if nte else ""
    NTP = " nt" if ntp else ""
    NTS = " nt" if nts else ""
    NTW = " nt" if ntw else ""

    def touch():
        if not pf:
            return
        a("s_mul_i32 s92, s2, 3125")
        a("s_add_u32 s92, s92, 31")
        a("s_lshr_b32 s92, s92, 5")
        a("s_lshl_b32 s92, s92, 10")
        a("v_lshlrev_b32 v122, 7, v0")
        a("v_cmp_gt_u32 vcc, 784, v0")
        a("v_mov_b32 v123, 0x40000000")
        a("v_cndmask_b32 v122, v123, v122, vcc")
        a("buffer_load_dword v120, v122, s[84:87], s92 offen nt")

    def stamp():
        if not stamps:
            return
        a("s_mov_b64 s[76:77], exec")
        a("s_mov_b64 exec, -1")
        a("s_memtime s[74:75]")
        a("s_waitcnt lgkmcnt(0)")
        a("v_mov_b32 v124, s74")
        a("v_mov_b32 v125, s78")
        a("ds_write_b32 v125, v124")
        a("s_add_u32 s78, s78, 4")
        a("s_mov_b64 exec, s[76:77]")

    a.label("edge_bin_kernel")
    a("s_cmp_ge_u32 s2, 256")
    a("s_cbranch_scc1 K1_END")
    if stamps:
        a("v_lshrrev_b32 v124, 6, v0")
        a("v_readfirstlane_b32 s78, v124")
        a("s_lshl_b32 s78, s78, 6")
        a(f"s_add_u32 s78, s78, {K1_STAMP}")
        a("s_mov_b32 s79, s78")
        a("v_and_b32 v124, 15, v0")
        a("v_lshlrev_b32 v124, 2, v124")
        a("v_add_u32 v124, s78, v124")
        a("v_mov_b32 v125, 0")
        a("ds_write_b32 v124, v125")
        stamp()
    a("s_load_dwordx4 s[4:7], s[0:1], 8")
    a("s_load_dwordx4 s[8:11], s[0:1], 24")
    a("s_load_dwordx4 s[12:15], s[0:1], 40")
    a("s_load_dwordx2 s[16:17], s[0:1], 56")
    a("s_load_dwordx2 s[18:19], s[0:1], 80")
    a("s_load_dwordx2 s[80:81], s[0:1], 0")
    a("v_lshrrev_b32 v1, 6, v0")
    a("v_and_b32 v6, 63, v0")
    a("v_readfirstlane_b32 s3, v1")
    a("s_mov_b32 s52, 0xffff0000")
    a("s_lshr_b32 s53, s2, 4")
    a("s_lshl_b32 s53, s53, 3")
    a("s_and_b32 s54, s2, 7")
    a("s_or_b32 s73, s53, s54")
    a("v_lshlrev_b32 v9, 4, v6")
    a("s_waitcnt lgkmcnt(0)")
    srd(a, 20, 4, N * 6)
    srd(a, 24, 6, E * 4)
    srd(a, 28, 8, E * 4)
    srd(a, 32, 18, WS_SIZE)
    srd(a, 36, 12, 128 * 128 * 2)
    srd(a, 40, 14, 128 * 384 * 2)
    srd(a, 44, 16, 4 * 384 * 2)
    srd(a, 84, 80, N * 1024)
    a(f"s_add_u32 s88, s18, {WS_H}")
    a("s_addc_u32 s89, s19, 0")
    a(f"s_mov_b32 s90, {N*256}")
    a("s_mov_b32 s91, 0x00020000")
    a("s_bitcmp1_b32 s2, 3")
    a("s_cbranch_scc1 K1_HROLE")
    a(f"s_cmp_ge_u32 s73, {G}")
    a("s_cbranch_scc1 K1_WEIGHTS")
    stamp()
    a(f"s_mul_i32 s53, s73, {EPG*4}")
    a("v_lshlrev_b32 v7, 4, v0")
    a("v_cmp_gt_u32 vcc, 800, v0")
    a("v_mov_b32 v8, 0x40000000")
    a("s_mov_b64 s[50:51], vcc")
    a("v_cndmask_b32 v7, v8, v7, vcc")
    if te:
        a("s_cmp_ge_u32 s3, 4")
        a("s_cbranch_scc1 K1_NOTOUCH")
        a("v_and_b32 v10, 0x7f, v0")
        a("v_lshlrev_b32 v10, 7, v10")
        a(f"v_cmp_gt_u32 vcc, {EPG*4}, v10")
        a("v_cndmask_b32 v10, v8, v10, vcc")
        a("s_cmp_ge_u32 s3, 2")
        a("s_cbranch_scc1 K1_TOUCHD")
        a("buffer_load_dword v120, v10, s[24:27], s53 offen" + NTE)
        a("s_branch K1_NOTOUCH")
        a.label("K1_TOUCHD")
        a("buffer_load_dword v120, v10, s[28:31], s53 offen" + NTE)
        a.label("K1_NOTOUCH")
    a("buffer_load_dwordx4 v[56:59], v7, s[24:27], s53 offen" + NTE)
    a("buffer_load_dwordx4 v[60:63], v7, s[28:31], s53 offen" + NTE)
    a("s_lshr_b32 s54, s73, 3")
    a("s_mul_i32 s54, s54, 5")
    a("s_lshr_b32 s54, s54, 3")
    if not rot:
        a("s_mov_b32 s54, 0")
    a("s_lshl_b32 s54, s54, 4")
    a("s_add_u32 s54, s54, s3")
    a("s_lshl_b32 m0, s54, 10")
    for k in range(10):
        a(f"s_cmp_ge_u32 m0, {147*1024}")
        a(f"s_cbranch_scc1 K1_SKIP{k}")
        a(f"buffer_load_dwordx4 v9, s[20:23], m0 offen{NTP} lds")
        a.label(f"K1_SKIP{k}")
        if k < 9:
            a("s_add_u32 m0, m0, 0x4000")
            a(f"s_sub_u32 s54, m0, {160*1024}")
            a(f"s_cmp_ge_u32 m0, {160*1024}")
            a("s_cselect_b32 m0, s54, m0")
    a("s_load_dwordx2 s[48:49], s[10:11], 0")
    a("v_lshlrev_b32 v10, 2, v0")
    a(f"v_add_u32 v10, {K1_CNT}, v10")
    a("v_mov_b32 v11, 0")
    a("v_cmp_gt_u32 vcc, 256, v0")
    a("s_and_saveexec_b64 s[56:57], vcc")
    a("ds_write_b32 v10, v11")
    a("s_mov_b64 exec, s[56:57]")
    a(f"s_mov_b32 s55, {BIN_MAGIC}")
    a(f"s_mov_b32 s58, {K1_CNT}")
    a("s_movk_i32 s59, 0x200")
    a("v_mov_b32 v5, 1")
    for e in range(4):
        a(f"s_mov_b64 s[{60+2*e}:{61+2*e}], 0")
    SRC, DST = 56, 60
    AD = 64
    SH = 72
    CA = 80
    RK = 84
    PP = 88
    EN = 104
    a("s_waitcnt vmcnt(9)")
    for i in range(8):
        r = SRC + i
        a(f"v_mul_u32_u24 v{AD+i}, 6, v{r}")
        if ua != 2:
            a(f"v_and_b32 v{AD+i}, -4, v{AD+i}")
            a(f"v_and_b32 v{SH+i}, 1, v{r}")
            a(f"v_lshlrev_b32 v{SH+i}, 4, v{SH+i}")
    for e in range(4):
        a(f"v_mul_hi_u32 v{CA+e}, v{DST+e}, s55")
        a(f"v_lshl_add_u32 v{CA+e}, v{CA+e}, 2, s58")
        a(f"v_mov_b32 v{EN+4*e}, v{SRC+e}")
        a(f"v_mov_b32 v{EN+4*e+1}, v{DST+e}")
    stamp()
    a("s_waitcnt vmcnt(0) lgkmcnt(0)")
    stamp()
    a("s_barrier")
    stamp()
    touch()
    a("s_mov_b64 exec, s[50:51]")
    a("s_cbranch_execz K1_PHASE_B")
    for e in range(4):
        for i in (e, 4 + e):
            if ua:
                a(f"ds_read_b64 v[{PP+2*i}:{PP+2*i+1}], v{AD+i}")
            else:
                a(f"ds_read2_b32 v[{PP+2*i}:{PP+2*i+1}], v{AD+i} offset0:0 offset1:1")
    for e in range(4):
        s, d = PP + 2 * e, PP + 8 + 2 * e
        t = 12 + 8 * e
        if ua != 2:
            a(f"v_lshrrev_b64 v[{s}:{s+1}], v{SH+e}, v[{s}:{s+1}]")
            a(f"v_lshrrev_b64 v[{d}:{d+1}], v{SH+4+e}, v[{d}:{d+1}]")
        a(f"v_lshlrev_b32 v{t}, 16, v{s}")
        a(f"v_lshlrev_b32 v{t+1}, 16, v{d}")
        a(f"v_and_b32 v{t+2}, s52, v{s}")
        a(f"v_and_b32 v{t+3}, s52, v{d}")
        a(f"v_lshlrev_b32 v{t+4}, 16, v{s+1}")
        a(f"v_lshlrev_b32 v{t+5}, 16, v{d+1}")
        a(f"v_sub_f32 v{t}, v{t}, v{t+1}")
        a(f"v_sub_f32 v{t+2}, v{t+2}, v{t+3}")
        a(f"v_sub_f32 v{EN+4*e+3}, v{t+4}, v{t+5}")
        a(f"v_cvt_pk_bf16_f32 v{EN+4*e+2}, v{t}, v{t+2}")
        a(f"v_mul_f32 v{t+1}, v{t}, v{t}")
        a(f"v_fmac_f32 v{t+1}, v{t+2}, v{t+2}")
        a(f"v_fmac_f32 v{t+1}, v{EN+4*e+3}, v{EN+4*e+3}")
        a(f"v_cmp_nlt_f32 vcc, 0x41c20000, v{t+1}")
        a(f"v_cmp_class_f32_e64 s[{60+2*e}:{61+2*e}], v{t+1}, s59")
        a(f"s_or_b64 s[{60+2*e}:{61+2*e}], s[{60+2*e}:{61+2*e}], vcc")
        a(f"s_mov_b64 exec, s[{60+2*e}:{61+2*e}]")
        a(f"ds_add_rtn_u32 v{RK+e}, v{CA+e}, v5")
        a("s_mov_b64 exec, s[50:51]")
    a.label("K1_PHASE_B")
    a("s_mov_b64 exec, -1")
    stamp()
    a("s_barrier")
    stamp()
    if scan1:
        a("s_cmp_lg_u32 s3, 15")
        a("s_cbranch_scc1 K1_NODESC")
        a("s_setprio 3")
    a(f"v_add_u32 v10, {K1_CNT}, v9")
    a("ds_read_b128 v[12:15], v10")
    a("v_add_u32 v17, v12, v13")
    a("v_add_u32 v18, v17, v14")
    a("v_add_u32 v19, v18, v15")
    a("v_mov_b32 v20, v19")
    wave_scan(a, 20)
    a("v_sub_u32 v24, v20, v19")
    a("v_add_u32 v25, v24, v12")
    a("v_add_u32 v26, v24, v17")
    a("v_add_u32 v27, v24, v18")
    a("ds_write_b128 v10, v[24:27] offset:1024")
    if scan1:
        a("ds_write_b32 v10, v20")
        a("s_waitcnt lgkmcnt(0)")
        a("s_barrier")
    else:
        a("v_readlane_b32 s68, v20, 63")
        a("s_cmp_lg_u32 s3, 15")
        a("s_cbranch_scc1 K1_NODESC")
    for i in range(4):
        a(f"v_lshl_or_b32 v{28+i}, v{12+i}, 16, v{24+i}")
    a("s_lshl_b32 s69, s73, 10")
    a(f"s_add_u32 s69, s69, {WS_DESC}")
    a("buffer_store_dwordx4 v[28:31], v9, s[32:35], s69 offen")
    if scan1:
        a("s_branch K1_SCANNED")
    a.label("K1_NODESC")
    if scan1:
        a("s_barrier")
        a.label("K1_SCANNED")
        a(f"v_mov_b32 v20, {K1_CNT + 63*16}")
        a("ds_read_b32 v20, v20")
    for e in range(4):
        a(f"s_mov_b64 exec, s[{60+2*e}:{61+2*e}]")
        a(f"ds_read_b32 v{12+e}, v{CA+e} offset:1024")
    for e in range(4):
        a(f"s_mov_b64 exec, s[{60+2*e}:{61+2*e}]")
        a(f"v_add_lshl_u32 v{12+e}, v{12+e}, v{RK+e}, 4")
        a(f"ds_write_b128 v{12+e}, {q(EN+4*e)}")
    a("s_mov_b64 exec, -1")
    if scan1:
        a("v_readfirstlane_b32 s68, v20")
    a("s_lshl_b32 s60, s48, 16")
    a("s_and_b32 s61, s48, s52")
    a("s_lshl_b32 s62, s49, 16")
    a("s_and_b32 s63, s49, s52")
    a(f"s_mul_i32 s69, s73, {EPG*32}")
    a(f"s_add_u32 s69, s69, {WS_REC}")
    a("s_movk_i32 s70, 3125")
    a("s_mov_b32 s71, 0x40a00000")
    stamp()
    a("s_barrier")
    stamp()
    a("v_mov_b32 v8, v0")
    a("s_lshl_b32 s72, s3, 6")
    a.label("K1_DENSE")
    a("s_cmp_ge_u32 s72, s68")
    a("s_cbranch_scc1 K1_FIN")
    a("v_cmp_gt_u32 vcc, s68, v8")
    a("s_and_b64 exec, exec, vcc")
    b = Asm()
    b("v_lshlrev_b32 v10, 4, v8")
    b("ds_read_b128 v[12:15], v10")
    b("v_cvt_pk_bf16_f32 v15, v15, v15")
    b("v_and_b32 v15, s52, v15")
    b("v_lshlrev_b32 v16, 16, v14")
    b("v_and_b32 v17, s52, v14")
    b("v_mul_f32 v18, v16, v16")
    b("v_mul_f32 v19, v17, v17")
    b("v_mul_f32 v20, v15, v15")
    b("v_cvt_pk_bf16_f32 v18, v18, v19")
    b("v_cvt_pk_bf16_f32 v20, v20, v20")
    b("v_and_b32 v19, s52, v18")
    b("v_lshlrev_b32 v18, 16, v18")
    b("v_and_b32 v20, s52, v20")
    b("v_add_f32 v18, v18, v19")
    b("v_add_f32 v18, v18, v20")
    b("v_cvt_pk_bf16_f32 v18, v18, v18")
    b("v_and_b32 v18, s52, v18")
    b("v_add_f32 v18, 0x322bcc77, v18")
    b("v_cvt_pk_bf16_f32 v18, v18, v18")
    b("v_and_b32 v18, s52, v18")
    b("v_sqrt_f32 v18, v18")
    b("v_mul_hi_u32 v21, v13, s55")
    b("v_mul_u32_u24 v21, s70, v21")
    b("v_add_u32 v21, 31, v21")
    b("v_lshrrev_b32 v21, 5, v21")
    b("v_lshlrev_b32 v44, 10, v12")
    b("v_sub_u32 v45, v13, v21")
    b("v_cvt_pk_bf16_f32 v18, v18, v18")
    b("v_and_b32 v18, s52, v18")
    b("v_rcp_f32 v19, v18")
    for k in range(4):
        b(f"v_mul_f32 v{22+k}, s{60+k}, v18")
    b("v_mul_f32 v26, 0x40490fdb, v18")
    b("v_cvt_pk_bf16_f32 v22, v22, v23")
    b("v_cvt_pk_bf16_f32 v24, v24, v25")
    b("v_cvt_pk_bf16_f32 v26, v26, v26")
    b("v_and_b32 v23, s52, v22")
    b("v_lshlrev_b32 v22, 16, v22")
    b("v_and_b32 v25, s52, v24")
    b("v_lshlrev_b32 v24, 16, v24")
    b("v_and_b32 v26, s52, v26")
    b("v_mul_f32 v26, 0x3e4ccccd, v26")
    b("v_cvt_pk_bf16_f32 v26, v26, v26")
    b("v_and_b32 v26, s52, v26")
    for k in range(5):
        b(f"v_mul_f32 v{22+k}, 0.15915494, v{22+k}")
    for k in range(5):
        b(f"v_rndne_f32 v{28+k}, v{22+k}")
    for k in range(5):
        b(f"v_sub_f32 v{22+k}, v{22+k}, v{28+k}")
    for k in range(4):
        b(f"v_sin_f32 v{22+k}, v{22+k}")
    b("v_cos_f32 v26, v26")
    b("v_mul_f32 v16, v16, v19")
    b("v_mul_f32 v17, v17, v19")
    b("v_mul_f32 v15, v15, v19")
    b("v_cvt_pk_bf16_f32 v46, v16, v17")
    b("v_cvt_pk_bf16_f32 v47, v15, 0")
    b("v_cvt_pk_bf16_f32 v22, v22, v23")
    b("v_cvt_pk_bf16_f32 v24, v24, v25")
    b("v_cvt_pk_bf16_f32 v26, v26, v26")
    b("v_and_b32 v23, s52, v22")
    b("v_lshlrev_b32 v22, 16, v22")
    b("v_and_b32 v25, s52, v24")
    b("v_lshlrev_b32 v24, 16, v24")
    b("v_and_b32 v26, s52, v26")
    for k in range(4):
        b(f"v_mul_f32 v{22+k}, v{22+k}, v19")
    b("v_add_f32 v26, 1.0, v26")
    b("v_cvt_pk_bf16_f32 v22, v22, v23")
    b("v_cvt_pk_bf16_f32 v24, v24, v25")
    b("v_cvt_pk_bf16_f32 v26, v26, v26")
    b("v_and_b32 v23, s52, v22")
    b("v_lshlrev_b32 v22, 16, v22")
    b("v_and_b32 v25, s52, v24")
    b("v_lshlrev_b32 v24, 16, v24")
    b("v_and_b32 v26, s52, v26")
    b("v_mul_f32 v26, 0.5, v26")
    b("v_mul_f32 v27, 0, v18")
    b("v_cmp_gt_f32 vcc, s71, v18")
    b("v_cndmask_b32 v26, v27, v26, vcc")
    for k in range(4):
        b(f"v_mul_f32 v{22+k}, v{22+k}, v26")
    b("v_cvt_pk_bf16_f32 v48, v22, v23")
    b("v_cvt_pk_bf16_f32 v49, v24, v25")
    b("v_lshlrev_b32 v28, 16, v48")
    b("v_and_b32 v29, s52, v48")
    b("v_lshlrev_b32 v30, 16, v49")
    b("v_and_b32 v31, s52, v49")
    for k in range(4):
        b(f"v_sub_f32 v{22+k}, v{22+k}, v{28+k}")
    b("v_cvt_pk_bf16_f32 v50, v22, v23")
    b("v_cvt_pk_bf16_f32 v51, v24, v25")
    b("v_lshlrev_b32 v11, 5, v8")
    b("buffer_store_dwordx4 v[44:47], v11, s[32:35], s69 offen " + st1)
    b("buffer_store_dwordx4 v[48:51], v11, s[32:35], s69 offen offset:16 " + st1)
    a.extend(schedule(b.ins)[0])
    a("v_add_u32 v8, 0x400, v8")
    a("s_add_u32 s72, s72, 0x400")
    a("s_branch K1_DENSE")
    a.label("K1_WEIGHTS")
    touch()
    a(f"s_cmp_lg_u32 s73, {G}")
    a("s_cbranch_scc1 K1_END")
    a("s_mov_b32 s64, 0x05040100")
    a("s_mov_b32 s65, 0x07060302")
    a("v_and_b32 v7, 15, v0")
    a("v_bfe_u32 v8, v0, 4, 2")
    a("s_cmp_ge_u32 s3, 12")
    a("s_cbranch_scc1 K1_WRBF")
    a("v_mul_u32_u24 v10, 6144, v8")
    a("v_lshl_add_u32 v10, v7, 4, v10")
    a("v_add_u32 v11, 3072, v10")
    a("s_and_b32 s55, s3, 3")
    a("s_lshr_b32 s57, s3, 2")
    a("s_mul_i32 s59, s55, 24576")
    a("s_lshl_b32 s60, s57, 8")
    a("s_add_u32 s59, s59, s60")
    for j in range(8):
        a(f"buffer_load_dwordx4 {q(12+4*j)}, v{10 + j//4}, s[40:43], s59 offen offset:{768*(j%4)}{NTW}")
    a("s_lshl_b32 s62, s57, 15")
    a("s_lshl_b32 s60, s55, 10")
    a("s_add_u32 s62, s62, s60")
    a("s_waitcnt vmcnt(0)")
    for T in range(8):
        o = 48 + 4 * T
        for jj in range(4):
            a(f"v_perm_b32 v{o+jj}, v{12+4*(2*jj+1)+T//2}, v{12+4*(2*jj)+T//2}, s{64+T%2}")
        a(f"buffer_store_dwordx4 {q(o)}, v9, s[32:35], s62 offen")
        a("s_add_u32 s62, s62, 0x1000")
    a("s_branch K1_END")
    a.label("K1_WRBF")
    a("s_cmp_lg_u32 s3, 12")
    a("s_cbranch_scc1 K1_END")
    for j in range(4):
        a(f"buffer_load_dwordx4 {q(12+4*j)}, v9, s[44:47], 0 offen offset:{768*j}")
    a("v_lshlrev_b32 v10, 10, v8")
    a("v_lshl_add_u32 v10, v7, 3, v10")
    a(f"s_mov_b32 s62, {WS_WR}")
    a("s_mov_b32 exec_hi, 0xffff")
    a("s_waitcnt vmcnt(0)")
    for T in range(8):
        o = 48 + 2 * T
        a(f"v_perm_b32 v{o}, v{16+T//2}, v{12+T//2}, s{64+T%2}")
        a(f"v_perm_b32 v{o+1}, v{24+T//2}, v{20+T//2}, s{64+T%2}")
        a(f"buffer_store_dwordx2 v[{o}:{o+1}], v10, s[32:35], s62 offen offset:{128*T}")
    a("s_branch K1_END")
    a.label("K1_HROLE")
    stamp()
    a("v_and_b32 v7, 15, v0")
    a("v_bfe_u32 v8, v0, 4, 2")
    a("s_cmp_ge_u32 s3, 7")
    a("s_cselect_b32 s56, 0, 8")
    a("s_cselect_b32 s57, 7, 0")
    a("s_sub_u32 s56, s2, s56")
    a("s_sub_u32 s57, s3, s57")
    a("s_mul_i32 s56, s56, 3125")
    a("s_add_u32 s56, s56, 31")
    a("s_lshr_b32 s56, s56, 5")
    a("s_lshl_b32 s57, s57, 4")
    a("s_add_u32 s57, s57, s56")
    a("s_lshl_b32 s58, s57, 10")
    a("v_lshlrev_b32 v11, 10, v7")
    a("v_lshl_add_u32 v11, v8, 4, v11")
    SA = 40
    a("s_cmp_ge_u32 s3, 4")
    a("s_cbranch_scc1 K1_NOW1")
    a("s_mov_b32 s64, 0x05040100")
    a("s_mov_b32 s65, 0x07060302")
    a("v_lshlrev_b32 v10, 11, v8")
    a("v_lshl_add_u32 v10, v7, 4, v10")
    a("s_lshl_b32 s59, s3, 13")
    WR_ = 56
    for j in range(8):
        a(f"buffer_load_dwordx4 {q(WR_+4*j)}, v10, s[36:39], s59 offen offset:{256*j}{NTW}")
    if early_s:
        for t in range(4):
            a(f"buffer_load_dwordx4 {q(SA+4*t)}, v11, s[84:87], s58 offen offset:{64*t}{NTS}")
    a("s_lshl_b32 s59, s3, 10")
    a("v_add_u32 v28, s59, v9")
    a(f"s_waitcnt vmcnt({4 if early_s else 0})")
    for T in range(8):
        o = 88 + 4 * T
        for jj in range(4):
            a(f"v_perm_b32 v{o+jj}, v{WR_+4*(2*jj+1)+T//2}, v{WR_+4*(2*jj)+T//2}, s{64+T%2}")
        a(f"ds_write_b128 v28, {q(o)} offset:{4096*T}")
    a("s_branch K1_W1DONE")
    a.label("K1_NOW1")
    if th:
        a("s_cmp_ge_u32 s3, 11")
        a("s_cbranch_scc1 K1_W1DONE")
        a("s_sub_u32 s60, s3, 4")
        a("s_lshl_b32 s60, s60, 1")
        a("v_lshrrev_b32 v12, 5, v6")
        a("v_add_u32 v12, s60, v12")
        a("v_cmp_le_u32 vcc, 7, v12")
        a("v_subrev_u32 v13, 7, v12")
        a("v_cndmask_b32 v12, v12, v13, vcc")
        a("s_sub_u32 s61, s2, 8")
        a("s_mul_i32 s61, s61, 3125")
        a("s_add_u32 s61, s61, 31")
        a("s_lshr_b32 s61, s61, 5")
        a("s_mul_i32 s62, s2, 3125")
        a("s_add_u32 s62, s62, 31")
        a("s_lshr_b32 s62, s62, 5")
        a("v_mov_b32 v13, s61")
        a("v_mov_b32 v14, s62")
        a("v_cndmask_b32 v13, v13, v14, vcc")
        a("v_lshl_add_u32 v13, v12, 4, v13")
        a("v_bfe_u32 v14, v6, 1, 4")
        a("v_add_u32 v13, v13, v14")
        a("v_and_b32 v14, 1, v6")
        a("v_lshlrev_b32 v13, 10, v13")
        a("v_lshl_add_u32 v13, v14, 7, v13")
        a("buffer_load_dword v120, v13, s[84:87], 0 offen" + NTS)
    if early_s:
        a("s_cmp_ge_u32 s3, 14")
        a("s_cbranch_scc1 K1_W1DONE")
        for t in range(4):
            a(f"buffer_load_dwordx4 {q(SA+4*t)}, v11, s[84:87], s58 offen offset:{64*t}{NTS}")
    a.label("K1_W1DONE")
    stamp()
    a("s_barrier")
    stamp()
    if cpf:
        a("s_cmp_lg_u32 s3, 15")
        a("s_cbranch_scc1 K1_NOCPF")
        a("s_getpc_b64 s[60:61]")
        a.label("K1_PC")
        a("s_add_u32 s60, s60, message_kernel-K1_PC")
        a("s_addc_u32 s61, s61, 0")
        a("v_lshlrev_b32 v12, 7, v6")
        for i in range(cpf):
            a("v_cmp_gt_u32 vcc, K2_END-message_kernel, v12")
            a("s_and_b64 exec, exec, vcc")
            a(f"global_load_dword v{13+i}, v12, s[60:61]")
            a("v_add_u32 v12, 0x2000, v12")
        a("s_mov_b64 exec, -1")
        a.label("K1_NOCPF")
    a("s_cmp_ge_u32 s3, 14")
    a("s_cbranch_scc1 K1_FIN")
    if not early_s:
        for t in range(4):
            a(f"buffer_load_dwordx4 {q(SA+4*t)}, v11, s[84:87], s58 offen offset:{64*t}{NTS}")
    if pf:
        a("s_waitcnt vmcnt(0)")
    touch()
    if pfv:
        a("v_lshrrev_b32 v122, 2, v6")
        a("v_and_b32 v123, 3, v6")
        a("v_lshlrev_b32 v122, 10, v122")
        a("v_lshl_add_u32 v122, v123, 7, v122")
        a(f"v_cmp_gt_u32 vcc, {pfv % 10}, v123")
        a("v_mov_b32 v123, 0x40000000")
        a("v_cndmask_b32 v122, v123, v122, vcc")
        if pfv >= 10:
            a("s_waitcnt vmcnt(0)")
        a("buffer_load_dword v120, v122, s[84:87], s58 offen offset:256")
    b = Asm()
    RING = [56 + 4 * i for i in range(4)]
    D0 = 72
    TM = 12
    OUT = 104
    kf = [0]

    def pfw():
        if kf[0] < 32:
            b(f"ds_read_b128 {q(RING[kf[0] % 4])}, v9 offset:{1024*kf[0]}")
            kf[0] += 1
    for _ in range(4):
        pfw()
    b(f"s_waitcnt vmcnt({1 if (pf or pfv) else 0})", guards=[f"v{SA+i}" for i in range(16)])
    k = 0
    for T in range(8):
        D = D0 + 4 * T
        for t in range(4):
            c = "0" if t == 0 else q(D)
            b(f"v_mfma_f32_16x16x32_bf16 {q(D)}, {q(SA+4*t)}, {q(RING[k % 4])}, {c}")
            k += 1
            pfw()
        for r in range(4):
            t = TM + (4 * T + r) % 16
            b(f"v_mul_f32 v{t}, 0xbfb8aa3b, v{D+r}")
            b(f"v_exp_f32 v{t}, v{t}")
            b(f"v_add_f32 v{t}, 1.0, v{t}")
            b(f"v_rcp_f32 v{t}, v{t}")
            b(f"v_mul_f32 v{D+r}, v{D+r}, v{t}")
        if T % 2 == 1:
            for r in range(4):
                b(f"v_cvt_pk_bf16_f32 v{OUT+4*r+T//2}, v{D-4+r}, v{D+r}")
    b("v_lshlrev_b32 v30, 10, v8")
    b("v_lshl_add_u32 v30, v7, 4, v30")
    b("s_lshl_b32 s58, s57, 8")
    for r in range(4):
        b(f"buffer_store_dwordx4 {q(OUT+4*r)}, v30, s[88:91], s58 offen offset:{256*r} {sth}")
    sch, tt = schedule(b.ins)
    print("K1 H tile: %d instructions, modelled %d cycles" % (len(sch), tt))
    a.extend(sch)
    a.label("K1_FIN")
    if stamps:
        stamp()
        a("s_waitcnt vmcnt(0)")
        stamp()
        a("s_mov_b64 exec, 0xffff")
        a("v_lshlrev_b32 v124, 2, v6")
        a("v_add_u32 v125, s79, v124")
        a("ds_read_b32 v126, v125")
        a("s_lshl_b32 s74, s2, 4")
        a("s_add_u32 s74, s74, s3")
        a("s_lshl_b32 s74, s74, 6")
        a(f"s_add_u32 s74, s74, {WS_STAMP1}")
        a("buffer_store_dword v126, v124, s[32:35], s74 offen")
    a.label("K1_END")
    a("s_endpgm")
    return a
```

```python
from asmlib import Asm, schedule

N = 25000
E = 400000
G = 125
EPG = 3200
BIN_MAGIC = 43980480

WS_W2 = 0
WS_WR = 98304
WS_WEND = 101376
WS_DESC = 0x40000
WS_REC = 0x100000
WS_H = 0xE00000
WS_STAMP1 = 0x1500000
WS_STAMP2 = 0x1600000
WS_SIZE = 0x2000000

K1_CNT = 150528
K1_P = K1_CNT + 1024
K1_LDS = K1_P + 1024
K1_STAMP = K1_LDS


def srd(a, d, base, size):
    a(f"s_mov_b32 s{d}, s{base}")
    a(f"s_mov_b32 s{d+1}, s{base+1}")
    a(f"s_mov_b32 s{d+2}, {size}")
    a(f"s_mov_b32 s{d+3}, 0x00020000")


def wave_scan(a, v):
    for sh in (1, 2, 4, 8):
        a(f"v_add_u32_dpp v{v}, v{v}, v{v} row_shr:{sh} row_mask:0xf bank_mask:0xf bound_ctrl:0")
    a(f"v_add_u32_dpp v{v}, v{v}, v{v} row_bcast:15 row_mask:0xa bank_mask:0xf")
    a(f"v_add_u32_dpp v{v}, v{v}, v{v} row_bcast:31 row_mask:0xc bank_mask:0xf")


def q(b):
    return f"v[{b}:{b+3}]"


def gen_k1(stamps=False, pf=2, early_s=False, rot=True, nte=False, ntp=False, nts=False, ntw=False, st1="", sth="", pfv=0, scan1=False, te=False, th=False, ua=0, cpf=0, cp0=0, tlbw=0):
    a = Asm()
    NTE = " nt" if nte else ""
    NTP = " nt" if ntp else ""
    NTS = " nt" if nts else ""
    NTW = " nt" if ntw else ""

    def touch():
        if not pf:
            return
        a("s_mul_i32 s92, s2, 3125")
        a("s_add_u32 s92, s92, 31")
        a("s_lshr_b32 s92, s92, 5")
        a("s_lshl_b32 s92, s92, 10")
        a("v_lshlrev_b32 v122, 7, v0")
        a("v_cmp_gt_u32 vcc, 784, v0")
        a("v_mov_b32 v123, 0x40000000")
        a("v_cndmask_b32 v122, v123, v122, vcc")
        a("buffer_load_dword v120, v122, s[84:87], s92 offen nt")

    def stamp():
        if not stamps:
            return
        a("s_mov_b64 s[76:77], exec")
        a("s_mov_b64 exec, -1")
        a("s_memtime s[74:75]")
        a("s_waitcnt lgkmcnt(0)")
        a("v_mov_b32 v124, s74")
        a("v_mov_b32 v125, s78")
        a("ds_write_b32 v125, v124")
        a("s_add_u32 s78, s78, 4")
        a("s_mov_b64 exec, s[76:77]")

    a.label("edge_bin_kernel")
    a("s_cmp_ge_u32 s2, 256")
    a("s_cbranch_scc1 K1_END")
    if stamps:
        a("v_lshrrev_b32 v124, 6, v0")
        a("v_readfirstlane_b32 s78, v124")
        a("s_lshl_b32 s78, s78, 6")
        a(f"s_add_u32 s78, s78, {K1_STAMP}")
        a("s_mov_b32 s79, s78")
        a("v_and_b32 v124, 15, v0")
        a("v_lshlrev_b32 v124, 2, v124")
        a("v_add_u32 v124, s78, v124")
        a("v_mov_b32 v125, 0")
        a("ds_write_b32 v124, v125")
        stamp()
    if cp0:
        a("s_getpc_b64 s[60:61]")
        a.label("K1_PC0")
        a("s_sub_u32 s60, s60, K1_PC0-edge_bin_kernel")
        a("s_subb_u32 s61, s61, 0")
        a("v_lshlrev_b32 v12, 7, v0")
        a(f"v_cmp_gt_u32 vcc, {'K2_END' if cp0 == 2 else 'K1_END'}-edge_bin_kernel, v12")
        a("s_and_saveexec_b64 s[62:63], vcc")
        a("s_cbranch_execz K1_NOCP0")
        a("global_load_dword v121, v12, s[60:61]")
        a.label("K1_NOCP0")
        a("s_mov_b64 exec, -1")
    a("s_load_dwordx4 s[4:7], s[0:1], 8")
    a("s_load_dwordx4 s[8:11], s[0:1], 24")
    a("s_load_dwordx4 s[12:15], s[0:1], 40")
    a("s_load_dwordx2 s[16:17], s[0:1], 56")
    a("s_load_dwordx2 s[18:19], s[0:1], 80")
    a("s_load_dwordx2 s[80:81], s[0:1], 0")
    a("v_lshrrev_b32 v1, 6, v0")
    a("v_and_b32 v6, 63, v0")
    a("v_readfirstlane_b32 s3, v1")
    a("s_mov_b32 s52, 0xffff0000")
    a("s_lshr_b32 s53, s2, 4")
    a("s_lshl_b32 s53, s53, 3")
    a("s_and_b32 s54, s2, 7")
    a("s_or_b32 s73, s53, s54")
    a("v_lshlrev_b32 v9, 4, v6")
    a("s_waitcnt lgkmcnt(0)")
    srd(a, 20, 4, N * 6)
    srd(a, 24, 6, E * 4)
    srd(a, 28, 8, E * 4)
    srd(a, 32, 18, WS_SIZE)
    srd(a, 36, 12, 128 * 128 * 2)
    srd(a, 40, 14, 128 * 384 * 2)
    srd(a, 44, 16, 4 * 384 * 2)
    srd(a, 84, 80, N * 1024)
    a(f"s_add_u32 s88, s18, {WS_H}")
    a("s_addc_u32 s89, s19, 0")
    a(f"s_mov_b32 s90, {N*256}")
    a("s_mov_b32 s91, 0x00020000")
    a("s_bitcmp1_b32 s2, 3")
    a("s_cbranch_scc1 K1_HROLE")
    a(f"s_cmp_ge_u32 s73, {G}")
    a("s_cbranch_scc1 K1_WEIGHTS")
    stamp()
    a(f"s_mul_i32 s53, s73, {EPG*4}")
    a("v_lshlrev_b32 v7, 4, v0")
    a("v_cmp_gt_u32 vcc, 800, v0")
    a("v_mov_b32 v8, 0x40000000")
    a("s_mov_b64 s[50:51], vcc")
    a("v_cndmask_b32 v7, v8, v7, vcc")
    if te:
        a("s_cmp_ge_u32 s3, 4")
        a("s_cbranch_scc1 K1_NOTOUCH")
        a("v_and_b32 v10, 0x7f, v0")
        a("v_lshlrev_b32 v10, 7, v10")
        a(f"v_cmp_gt_u32 vcc, {EPG*4}, v10")
        a("v_cndmask_b32 v10, v8, v10, vcc")
        a("s_cmp_ge_u32 s3, 2")
        a("s_cbranch_scc1 K1_TOUCHD")
        a("buffer_load_dword v120, v10, s[24:27], s53 offen" + NTE)
        a("s_branch K1_NOTOUCH")
        a.label("K1_TOUCHD")
        a("buffer_load_dword v120, v10, s[28:31], s53 offen" + NTE)
        a.label("K1_NOTOUCH")
    a("buffer_load_dwordx4 v[56:59], v7, s[24:27], s53 offen" + NTE)
    a("buffer_load_dwordx4 v[60:63], v7, s[28:31], s53 offen" + NTE)
    a("s_lshr_b32 s54, s73, 3")
    a("s_mul_i32 s54, s54, 5")
    a("s_lshr_b32 s54, s54, 3")
    if not rot:
        a("s_mov_b32 s54, 0")
    a("s_lshl_b32 s54, s54, 4")
    a("s_add_u32 s54, s54, s3")
    a("s_lshl_b32 m0, s54, 10")
    for k in range(10):
        a(f"s_cmp_ge_u32 m0, {147*1024}")
        a(f"s_cbranch_scc1 K1_SKIP{k}")
        a(f"buffer_load_dwordx4 v9, s[20:23], m0 offen{NTP} lds")
        a.label(f"K1_SKIP{k}")
        if k < 9:
            a("s_add_u32 m0, m0, 0x4000")
            a(f"s_sub_u32 s54, m0, {160*1024}")
            a(f"s_cmp_ge_u32 m0, {160*1024}")
            a("s_cselect_b32 m0, s54, m0")
    a("s_load_dwordx2 s[48:49], s[10:11], 0")
    a("v_lshlrev_b32 v10, 2, v0")
    a(f"v_add_u32 v10, {K1_CNT}, v10")
    a("v_mov_b32 v11, 0")
    a("v_cmp_gt_u32 vcc, 256, v0")
    a("s_and_saveexec_b64 s[56:57], vcc")
    a("ds_write_b32 v10, v11")
    a("s_mov_b64 exec, s[56:57]")
    a(f"s_mov_b32 s55, {BIN_MAGIC}")
    a(f"s_mov_b32 s58, {K1_CNT}")
    a("s_movk_i32 s59, 0x200")
    a("v_mov_b32 v5, 1")
    for e in range(4):
        a(f"s_mov_b64 s[{60+2*e}:{61+2*e}], 0")
    SRC, DST = 56, 60
    AD = 64
    SH = 72
    CA = 80
    RK = 84
    PP = 88
    EN = 104
    a("s_waitcnt vmcnt(9)")
    for i in range(8):
        r = SRC + i
        a(f"v_mul_u32_u24 v{AD+i}, 6, v{r}")
        if ua != 2:
            a(f"v_and_b32 v{AD+i}, -4, v{AD+i}")
            a(f"v_and_b32 v{SH+i}, 1, v{r}")
            a(f"v_lshlrev_b32 v{SH+i}, 4, v{SH+i}")
    for e in range(4):
        a(f"v_mul_hi_u32 v{CA+e}, v{DST+e}, s55")
        a(f"v_lshl_add_u32 v{CA+e}, v{CA+e}, 2, s58")
        a(f"v_mov_b32 v{EN+4*e}, v{SRC+e}")
        a(f"v_mov_b32 v{EN+4*e+1}, v{DST+e}")
    stamp()
    a("s_waitcnt vmcnt(0) lgkmcnt(0)")
    stamp()
    a("s_barrier")
    stamp()
    touch()
    a("s_mov_b64 exec, s[50:51]")
    a("s_cbranch_execz K1_PHASE_B")
    for e in range(4):
        for i in (e, 4 + e):
            if ua:
                a(f"ds_read_b64 v[{PP+2*i}:{PP+2*i+1}], v{AD+i}")
            else:
                a(f"ds_read2_b32 v[{PP+2*i}:{PP+2*i+1}], v{AD+i} offset0:0 offset1:1")
    for e in range(4):
        s, d = PP + 2 * e, PP + 8 + 2 * e
        t = 12 + 8 * e
        if ua != 2:
            a(f"v_lshrrev_b64 v[{s}:{s+1}], v{SH+e}, v[{s}:{s+1}]")
            a(f"v_lshrrev_b64 v[{d}:{d+1}], v{SH+4+e}, v[{d}:{d+1}]")
        a(f"v_lshlrev_b32 v{t}, 16, v{s}")
        a(f"v_lshlrev_b32 v{t+1}, 16, v{d}")
        a(f"v_and_b32 v{t+2}, s52, v{s}")
        a(f"v_and_b32 v{t+3}, s52, v{d}")
        a(f"v_lshlrev_b32 v{t+4}, 16, v{s+1}")
        a(f"v_lshlrev_b32 v{t+5}, 16, v{d+1}")
        a(f"v_sub_f32 v{t}, v{t}, v{t+1}")
        a(f"v_sub_f32 v{t+2}, v{t+2}, v{t+3}")
        a(f"v_sub_f32 v{EN+4*e+3}, v{t+4}, v{t+5}")
        a(f"v_cvt_pk_bf16_f32 v{EN+4*e+2}, v{t}, v{t+2}")
        a(f"v_mul_f32 v{t+1}, v{t}, v{t}")
        a(f"v_fmac_f32 v{t+1}, v{t+2}, v{t+2}")
        a(f"v_fmac_f32 v{t+1}, v{EN+4*e+3}, v{EN+4*e+3}")
        a(f"v_cmp_nlt_f32 vcc, 0x41c20000, v{t+1}")
        a(f"v_cmp_class_f32_e64 s[{60+2*e}:{61+2*e}], v{t+1}, s59")
        a(f"s_or_b64 s[{60+2*e}:{61+2*e}], s[{60+2*e}:{61+2*e}], vcc")
        a(f"s_mov_b64 exec, s[{60+2*e}:{61+2*e}]")
        a(f"ds_add_rtn_u32 v{RK+e}, v{CA+e}, v5")
        a("s_mov_b64 exec, s[50:51]")
    a.label("K1_PHASE_B")
    a("s_mov_b64 exec, -1")
    stamp()
    a("s_barrier")
    stamp()
    if scan1:
        a("s_cmp_lg_u32 s3, 15")
        a("s_cbranch_scc1 K1_NODESC")
        a("s_setprio 3")
    a(f"v_add_u32 v10, {K1_CNT}, v9")
    a("ds_read_b128 v[12:15], v10")
    a("v_add_u32 v17, v12, v13")
    a("v_add_u32 v18, v17, v14")
    a("v_add_u32 v19, v18, v15")
    a("v_mov_b32 v20, v19")
    wave_scan(a, 20)
    a("v_sub_u32 v24, v20, v19")
    a("v_add_u32 v25, v24, v12")
    a("v_add_u32 v26, v24, v17")
    a("v_add_u32 v27, v24, v18")
    a("ds_write_b128 v10, v[24:27] offset:1024")
    if scan1:
        a("ds_write_b32 v10, v20")
        a("s_waitcnt lgkmcnt(0)")
        a("s_barrier")
    else:
        a("v_readlane_b32 s68, v20, 63")
        a("s_cmp_lg_u32 s3, 15")
        a("s_cbranch_scc1 K1_NODESC")
    for i in range(4):
        a(f"v_lshl_or_b32 v{28+i}, v{12+i}, 16, v{24+i}")
    a("s_lshl_b32 s69, s73, 10")
    a(f"s_add_u32 s69, s69, {WS_DESC}")
    a("buffer_store_dwordx4 v[28:31], v9, s[32:35], s69 offen")
    if scan1:
        a("s_branch K1_SCANNED")
    a.label("K1_NODESC")
    if scan1:
        a("s_barrier")
        a.label("K1_SCANNED")
        a(f"v_mov_b32 v20, {K1_CNT + 63*16}")
        a("ds_read_b32 v20, v20")
    for e in range(4):
        a(f"s_mov_b64 exec, s[{60+2*e}:{61+2*e}]")
        a(f"ds_read_b32 v{12+e}, v{CA+e} offset:1024")
    for e in range(4):
        a(f"s_mov_b64 exec, s[{60+2*e}:{61+2*e}]")
        a(f"v_add_lshl_u32 v{12+e}, v{12+e}, v{RK+e}, 4")
        a(f"ds_write_b128 v{12+e}, {q(EN+4*e)}")
    a("s_mov_b64 exec, -1")
    if scan1:
        a("v_readfirstlane_b32 s68, v20")
    a("s_lshl_b32 s60, s48, 16")
    a("s_and_b32 s61, s48, s52")
    a("s_lshl_b32 s62, s49, 16")
    a("s_and_b32 s63, s49, s52")
    a(f"s_mul_i32 s69, s73, {EPG*32}")
    a(f"s_add_u32 s69, s69, {WS_REC}")
    a("s_movk_i32 s70, 3125")
    a("s_mov_b32 s71, 0x40a00000")
    stamp()
    a("s_barrier")
    stamp()
    a("v_mov_b32 v8, v0")
    a("s_lshl_b32 s72, s3, 6")
    a.label("K1_DENSE")
    a("s_cmp_ge_u32 s72, s68")
    a("s_cbranch_scc1 K1_FIN")
    a("v_cmp_gt_u32 vcc, s68, v8")
    a("s_and_b64 exec, exec, vcc")
    b = Asm()
    b("v_lshlrev_b32 v10, 4, v8")
    b("ds_read_b128 v[12:15], v10")
    b("v_cvt_pk_bf16_f32 v15, v15, v15")
    b("v_and_b32 v15, s52, v15")
    b("v_lshlrev_b32 v16, 16, v14")
    b("v_and_b32 v17, s52, v14")
    b("v_mul_f32 v18, v16, v16")
    b("v_mul_f32 v19, v17, v17")
    b("v_mul_f32 v20, v15, v15")
    b("v_cvt_pk_bf16_f32 v18, v18, v19")
    b("v_cvt_pk_bf16_f32 v20, v20, v20")
    b("v_and_b32 v19, s52, v18")
    b("v_lshlrev_b32 v18, 16, v18")
    b("v_and_b32 v20, s52, v20")
    b("v_add_f32 v18, v18, v19")
    b("v_add_f32 v18, v18, v20")
    b("v_cvt_pk_bf16_f32 v18, v18, v18")
    b("v_and_b32 v18, s52, v18")
    b("v_add_f32 v18, 0x322bcc77, v18")
    b("v_cvt_pk_bf16_f32 v18, v18, v18")
    b("v_and_b32 v18, s52, v18")
    b("v_sqrt_f32 v18, v18")
    b("v_mul_hi_u32 v21, v13, s55")
    b("v_mul_u32_u24 v21, s70, v21")
    b("v_add_u32 v21, 31, v21")
    b("v_lshrrev_b32 v21, 5, v21")
    b("v_lshlrev_b32 v44, 10, v12")
    b("v_sub_u32 v45, v13, v21")
    b("v_cvt_pk_bf16_f32 v18, v18, v18")
    b("v_and_b32 v18, s52, v18")
    b("v_rcp_f32 v19, v18")
    for k in range(4):
        b(f"v_mul_f32 v{22+k}, s{60+k}, v18")
    b("v_mul_f32 v26, 0x40490fdb, v18")
    b("v_cvt_pk_bf16_f32 v22, v22, v23")
    b("v_cvt_pk_bf16_f32 v24, v24, v25")
    b("v_cvt_pk_bf16_f32 v26, v26, v26")
    b("v_and_b32 v23, s52, v22")
    b("v_lshlrev_b32 v22, 16, v22")
    b("v_and_b32 v25, s52, v24")
    b("v_lshlrev_b32 v24, 16, v24")
    b("v_and_b32 v26, s52, v26")
    b("v_mul_f32 v26, 0x3e4ccccd, v26")
    b("v_cvt_pk_bf16_f32 v26, v26, v26")
    b("v_and_b32 v26, s52, v26")
    for k in range(5):
        b(f"v_mul_f32 v{22+k}, 0.15915494, v{22+k}")
    for k in range(5):
        b(f"v_rndne_f32 v{28+k}, v{22+k}")
    for k in range(5):
        b(f"v_sub_f32 v{22+k}, v{22+k}, v{28+k}")
    for k in range(4):
        b(f"v_sin_f32 v{22+k}, v{22+k}")
    b("v_cos_f32 v26, v26")
    b("v_mul_f32 v16, v16, v19")
    b("v_mul_f32 v17, v17, v19")
    b("v_mul_f32 v15, v15, v19")
    b("v_cvt_pk_bf16_f32 v46, v16, v17")
    b("v_cvt_pk_bf16_f32 v47, v15, 0")
    b("v_cvt_pk_bf16_f32 v22, v22, v23")
    b("v_cvt_pk_bf16_f32 v24, v24, v25")
    b("v_cvt_pk_bf16_f32 v26, v26, v26")
    b("v_and_b32 v23, s52, v22")
    b("v_lshlrev_b32 v22, 16, v22")
    b("v_and_b32 v25, s52, v24")
    b("v_lshlrev_b32 v24, 16, v24")
    b("v_and_b32 v26, s52, v26")
    for k in range(4):
        b(f"v_mul_f32 v{22+k}, v{22+k}, v19")
    b("v_add_f32 v26, 1.0, v26")
    b("v_cvt_pk_bf16_f32 v22, v22, v23")
    b("v_cvt_pk_bf16_f32 v24, v24, v25")
    b("v_cvt_pk_bf16_f32 v26, v26, v26")
    b("v_and_b32 v23, s52, v22")
    b("v_lshlrev_b32 v22, 16, v22")
    b("v_and_b32 v25, s52, v24")
    b("v_lshlrev_b32 v24, 16, v24")
    b("v_and_b32 v26, s52, v26")
    b("v_mul_f32 v26, 0.5, v26")
    b("v_mul_f32 v27, 0, v18")
    b("v_cmp_gt_f32 vcc, s71, v18")
    b("v_cndmask_b32 v26, v27, v26, vcc")
    for k in range(4):
        b(f"v_mul_f32 v{22+k}, v{22+k}, v26")
    b("v_cvt_pk_bf16_f32 v48, v22, v23")
    b("v_cvt_pk_bf16_f32 v49, v24, v25")
    b("v_lshlrev_b32 v28, 16, v48")
    b("v_and_b32 v29, s52, v48")
    b("v_lshlrev_b32 v30, 16, v49")
    b("v_and_b32 v31, s52, v49")
    for k in range(4):
        b(f"v_sub_f32 v{22+k}, v{22+k}, v{28+k}")
    b("v_cvt_pk_bf16_f32 v50, v22, v23")
    b("v_cvt_pk_bf16_f32 v51, v24, v25")
    b("v_lshlrev_b32 v11, 5, v8")
    b("buffer_store_dwordx4 v[44:47], v11, s[32:35], s69 offen " + st1)
    b("buffer_store_dwordx4 v[48:51], v11, s[32:35], s69 offen offset:16 " + st1)
    a.extend(schedule(b.ins)[0])
    a("v_add_u32 v8, 0x400, v8")
    a("s_add_u32 s72, s72, 0x400")
    a("s_branch K1_DENSE")
    a.label("K1_WEIGHTS")
    touch()
    a(f"s_cmp_lg_u32 s73, {G}")
    a("s_cbranch_scc1 K1_END")
    a("s_mov_b32 s64, 0x05040100")
    a("s_mov_b32 s65, 0x07060302")
    a("v_and_b32 v7, 15, v0")
    a("v_bfe_u32 v8, v0, 4, 2")
    a("s_cmp_ge_u32 s3, 12")
    a("s_cbranch_scc1 K1_WRBF")
    a("v_mul_u32_u24 v10, 6144, v8")
    a("v_lshl_add_u32 v10, v7, 4, v10")
    a("v_add_u32 v11, 3072, v10")
    a("s_and_b32 s55, s3, 3")
    a("s_lshr_b32 s57, s3, 2")
    a("s_mul_i32 s59, s55, 24576")
    a("s_lshl_b32 s60, s57, 8")
    a("s_add_u32 s59, s59, s60")
    for j in range(8):
        a(f"buffer_load_dwordx4 {q(12+4*j)}, v{10 + j//4}, s[40:43], s59 offen offset:{768*(j%4)}{NTW}")
    a("s_lshl_b32 s62, s57, 15")
    a("s_lshl_b32 s60, s55, 10")
    a("s_add_u32 s62, s62, s60")
    a("s_waitcnt vmcnt(0)")
    for T in range(8):
        o = 48 + 4 * T
        for jj in range(4):
            a(f"v_perm_b32 v{o+jj}, v{12+4*(2*jj+1)+T//2}, v{12+4*(2*jj)+T//2}, s{64+T%2}")
        a(f"buffer_store_dwordx4 {q(o)}, v9, s[32:35], s62 offen")
        a("s_add_u32 s62, s62, 0x1000")
    a("s_branch K1_END")
    a.label("K1_WRBF")
    a("s_cmp_lg_u32 s3, 12")
    a("s_cbranch_scc1 K1_END")
    for j in range(4):
        a(f"buffer_load_dwordx4 {q(12+4*j)}, v9, s[44:47], 0 offen offset:{768*j}")
    a("v_lshlrev_b32 v10, 10, v8")
    a("v_lshl_add_u32 v10, v7, 3, v10")
    a(f"s_mov_b32 s62, {WS_WR}")
    a("s_mov_b32 exec_hi, 0xffff")
    a("s_waitcnt vmcnt(0)")
    for T in range(8):
        o = 48 + 2 * T
        a(f"v_perm_b32 v{o}, v{16+T//2}, v{12+T//2}, s{64+T%2}")
        a(f"v_perm_b32 v{o+1}, v{24+T//2}, v{20+T//2}, s{64+T%2}")
        a(f"buffer_store_dwordx2 v[{o}:{o+1}], v10, s[32:35], s62 offen offset:{128*T}")
    a("s_branch K1_END")
    a.label("K1_HROLE")
    stamp()
    a("v_and_b32 v7, 15, v0")
    a("v_bfe_u32 v8, v0, 4, 2")
    a("s_cmp_ge_u32 s3, 7")
    a("s_cselect_b32 s56, 0, 8")
    a("s_cselect_b32 s57, 7, 0")
    a("s_sub_u32 s56, s2, s56")
    a("s_sub_u32 s57, s3, s57")
    a("s_mul_i32 s56, s56, 3125")
    a("s_add_u32 s56, s56, 31")
    a("s_lshr_b32 s56, s56, 5")
    a("s_lshl_b32 s57, s57, 4")
    a("s_add_u32 s57, s57, s56")
    a("s_lshl_b32 s58, s57, 10")
    a("v_lshlrev_b32 v11, 10, v7")
    a("v_lshl_add_u32 v11, v8, 4, v11")
    SA = 40
    a("s_cmp_ge_u32 s3, 4")
    a("s_cbranch_scc1 K1_NOW1")
    a("s_mov_b32 s64, 0x05040100")
    a("s_mov_b32 s65, 0x07060302")
    a("v_lshlrev_b32 v10, 11, v8")
    a("v_lshl_add_u32 v10, v7, 4, v10")
    a("s_lshl_b32 s59, s3, 13")
    WR_ = 56
    for j in range(8):
        a(f"buffer_load_dwordx4 {q(WR_+4*j)}, v10, s[36:39], s59 offen offset:{256*j}{NTW}")
    if early_s:
        for t in range(4):
            a(f"buffer_load_dwordx4 {q(SA+4*t)}, v11, s[84:87], s58 offen offset:{64*t}{NTS}")
    a("s_lshl_b32 s59, s3, 10")
    a("v_add_u32 v28, s59, v9")
    a(f"s_waitcnt vmcnt({4 if early_s else 0})")
    for T in range(8):
        o = 88 + 4 * T
        for jj in range(4):
            a(f"v_perm_b32 v{o+jj}, v{WR_+4*(2*jj+1)+T//2}, v{WR_+4*(2*jj)+T//2}, s{64+T%2}")
        a(f"ds_write_b128 v28, {q(o)} offset:{4096*T}")
    a("s_branch K1_W1DONE")
    a.label("K1_NOW1")
    if th:
        a("s_cmp_ge_u32 s3, 11")
        a("s_cbranch_scc1 K1_W1DONE")
        a("s_sub_u32 s60, s3, 4")
        a("s_lshl_b32 s60, s60, 1")
        a("v_lshrrev_b32 v12, 5, v6")
        a("v_add_u32 v12, s60, v12")
        a("v_cmp_le_u32 vcc, 7, v12")
        a("v_subrev_u32 v13, 7, v12")
        a("v_cndmask_b32 v12, v12, v13, vcc")
        a("s_sub_u32 s61, s2, 8")
        a("s_mul_i32 s61, s61, 3125")
        a("s_add_u32 s61, s61, 31")
        a("s_lshr_b32 s61, s61, 5")
        a("s_mul_i32 s62, s2, 3125")
        a("s_add_u32 s62, s62, 31")
        a("s_lshr_b32 s62, s62, 5")
        a("v_mov_b32 v13, s61")
        a("v_mov_b32 v14, s62")
        a("v_cndmask_b32 v13, v13, v14, vcc")
        a("v_lshl_add_u32 v13, v12, 4, v13")
        a("v_bfe_u32 v14, v6, 1, 4")
        a("v_add_u32 v13, v13, v14")
        a("v_and_b32 v14, 1, v6")
        a("v_lshlrev_b32 v13, 10, v13")
        a("v_lshl_add_u32 v13, v14, 7, v13")
        a("buffer_load_dword v120, v13, s[84:87], 0 offen" + NTS)
    if early_s:
        a("s_cmp_ge_u32 s3, 14")
        a("s_cbranch_scc1 K1_W1DONE")
        for t in range(4):
            a(f"buffer_load_dwordx4 {q(SA+4*t)}, v11, s[84:87], s58 offen offset:{64*t}{NTS}")
    a.label("K1_W1DONE")
    stamp()
    a("s_barrier")
    stamp()
    if cpf:
        a("s_cmp_lg_u32 s3, 15")
        a("s_cbranch_scc1 K1_NOCPF")
        a("s_getpc_b64 s[60:61]")
        a.label("K1_PC")
        a("s_add_u32 s60, s60, message_kernel-K1_PC")
        a("s_addc_u32 s61, s61, 0")
        a("v_lshlrev_b32 v12, 7, v6")
        for i in range(cpf):
            a("v_cmp_gt_u32 vcc, K2_END-message_kernel, v12")
            a("s_and_b64 exec, exec, vcc")
            a(f"global_load_dword v{13+i}, v12, s[60:61]")
            a("v_add_u32 v12, 0x2000, v12")
        a("s_mov_b64 exec, -1")
        a.label("K1_NOCPF")
    if tlbw:
        a("s_cmp_lg_u32 s3, 14")
        a("s_cbranch_scc1 K1_NOTLB")
        a("s_load_dwordx2 s[60:61], s[0:1], 64")
        a("v_lshlrev_b32 v12, 19, v6")
        a("buffer_load_dword v13, v12, s[84:87], 0 offen")
        a("s_waitcnt lgkmcnt(0)")
        a(f"s_mov_b32 s62, {N*1024}")
        a("s_mov_b32 s63, 0x00020000")
        a("buffer_load_dword v15, v12, s[60:63], 0 offen")
        a.label("K1_NOTLB")
    a("s_cmp_ge_u32 s3, 14")
    a("s_cbranch_scc1 K1_FIN")
    if not early_s:
        for t in range(4):
            a(f"buffer_load_dwordx4 {q(SA+4*t)}, v11, s[84:87], s58 offen offset:{64*t}{NTS}")
    if pf:
        a("s_waitcnt vmcnt(0)")
    touch()
    if pfv:
        a("v_lshrrev_b32 v122, 2, v6")
        a("v_and_b32 v123, 3, v6")
        a("v_lshlrev_b32 v122, 10, v122")
        a("v_lshl_add_u32 v122, v123, 7, v122")
        a(f"v_cmp_gt_u32 vcc, {pfv % 10}, v123")
        a("v_mov_b32 v123, 0x40000000")
        a("v_cndmask_b32 v122, v123, v122, vcc")
        if pfv >= 10:
            a("s_waitcnt vmcnt(0)")
        a("buffer_load_dword v120, v122, s[84:87], s58 offen offset:256")
    b = Asm()
    RING = [56 + 4 * i for i in range(4)]
    D0 = 72
    TM = 12
    OUT = 104
    kf = [0]

    def pfw():
        if kf[0] < 32:
            b(f"ds_read_b128 {q(RING[kf[0] % 4])}, v9 offset:{1024*kf[0]}")
            kf[0] += 1
    for _ in range(4):
        pfw()
    b(f"s_waitcnt vmcnt({1 if (pf or pfv) else 0})", guards=[f"v{SA+i}" for i in range(16)])
    k = 0
    for T in range(8):
        D = D0 + 4 * T
        for t in range(4):
            c = "0" if t == 0 else q(D)
            b(f"v_mfma_f32_16x16x32_bf16 {q(D)}, {q(SA+4*t)}, {q(RING[k % 4])}, {c}")
            k += 1
            pfw()
        for r in range(4):
            t = TM + (4 * T + r) % 16
            b(f"v_mul_f32 v{t}, 0xbfb8aa3b, v{D+r}")
            b(f"v_exp_f32 v{t}, v{t}")
            b(f"v_add_f32 v{t}, 1.0, v{t}")
            b(f"v_rcp_f32 v{t}, v{t}")
            b(f"v_mul_f32 v{D+r}, v{D+r}, v{t}")
        if T % 2 == 1:
            for r in range(4):
                b(f"v_cvt_pk_bf16_f32 v{OUT+4*r+T//2}, v{D-4+r}, v{D+r}")
    b("v_lshlrev_b32 v30, 10, v8")
    b("v_lshl_add_u32 v30, v7, 4, v30")
    b("s_lshl_b32 s58, s57, 8")
    for r in range(4):
        b(f"buffer_store_dwordx4 {q(OUT+4*r)}, v30, s[88:91], s58 offen offset:{256*r} {sth}")
    sch, tt = schedule(b.ins)
    print("K1 H tile: %d instructions, modelled %d cycles" % (len(sch), tt))
    a.extend(sch)
    a.label("K1_FIN")
    if stamps:
        stamp()
        a("s_waitcnt vmcnt(0)")
        stamp()
        a("s_mov_b64 exec, 0xffff")
        a("v_lshlrev_b32 v124, 2, v6")
        a("v_add_u32 v125, s79, v124")
        a("ds_read_b32 v126, v125")
        a("s_lshl_b32 s74, s2, 4")
        a("s_add_u32 s74, s74, s3")
        a("s_lshl_b32 s74, s74, 6")
        a(f"s_add_u32 s74, s74, {WS_STAMP1}")
        a("buffer_store_dword v126, v124, s[32:35], s74 offen")
    a.label("K1_END")
    a("s_endpgm")
    return a
```

```python
from asmlib import Asm, Ins, schedule

N = 25000
E = 400000
G = 125
EPG = 3200
BIN_MAGIC = 43980480

WS_W2 = 0
WS_WR = 98304
WS_WEND = 101376
WS_DESC = 0x40000
WS_REC = 0x100000
WS_H = 0xE00000
WS_STAMP1 = 0x1500000
WS_STAMP2 = 0x1600000
WS_SIZE = 0x2000000

K1_CNT = 150528
K1_P = K1_CNT + 1024
K1_LDS = K1_P + 1024
K1_STAMP = K1_LDS


def srd(a, d, base, size):
    a(f"s_mov_b32 s{d}, s{base}")
    a(f"s_mov_b32 s{d+1}, s{base+1}")
    a(f"s_mov_b32 s{d+2}, {size}")
    a(f"s_mov_b32 s{d+3}, 0x00020000")


def wave_scan(a, v):
    for sh in (1, 2, 4, 8):
        a(f"v_add_u32_dpp v{v}, v{v}, v{v} row_shr:{sh} row_mask:0xf bank_mask:0xf bound_ctrl:0")
    a(f"v_add_u32_dpp v{v}, v{v}, v{v} row_bcast:15 row_mask:0xa bank_mask:0xf")
    a(f"v_add_u32_dpp v{v}, v{v}, v{v} row_bcast:31 row_mask:0xc bank_mask:0xf")


def q(b):
    return f"v[{b}:{b+3}]"


def gen_k1(stamps=False, pf=2, early_s=False, rot=True, nte=False, ntp=False, nts=False, ntw=False, st1="", sth="", pfv=0, scan1=False, te=False, th=False, ua=0, cpf=0, cp0=0, tlbw=0):
    a = Asm()
    NTE = " nt" if nte else ""
    NTP = " nt" if ntp else ""
    NTS = " nt" if nts else ""
    NTW = " nt" if ntw else ""

    def touch():
        if not pf:
            return
        a("s_mul_i32 s92, s2, 3125")
        a("s_add_u32 s92, s92, 31")
        a("s_lshr_b32 s92, s92, 5")
        a("s_lshl_b32 s92, s92, 10")
        a("v_lshlrev_b32 v122, 7, v0")
        a("v_cmp_gt_u32 vcc, 784, v0")
        a("v_mov_b32 v123, 0x40000000")
        a("v_cndmask_b32 v122, v123, v122, vcc")
        a("buffer_load_dword v120, v122, s[84:87], s92 offen nt")

    def stamp():
        if not stamps:
            return
        a("s_mov_b64 s[76:77], exec")
        a("s_mov_b64 exec, -1")
        a("s_memtime s[74:75]")
        a("s_waitcnt lgkmcnt(0)")
        a("v_mov_b32 v124, s74")
        a("v_mov_b32 v125, s78")
        a("ds_write_b32 v125, v124")
        a("s_add_u32 s78, s78, 4")
        a("s_mov_b64 exec, s[76:77]")

    a.label("edge_bin_kernel")
    a("s_cmp_ge_u32 s2, 256")
    a("s_cbranch_scc1 K1_END")
    if stamps:
        a("v_lshrrev_b32 v124, 6, v0")
        a("v_readfirstlane_b32 s78, v124")
        a("s_lshl_b32 s78, s78, 6")
        a(f"s_add_u32 s78, s78, {K1_STAMP}")
        a("s_mov_b32 s79, s78")
        a("v_and_b32 v124, 15, v0")
        a("v_lshlrev_b32 v124, 2, v124")
        a("v_add_u32 v124, s78, v124")
        a("v_mov_b32 v125, 0")
        a("ds_write_b32 v124, v125")
        stamp()
    a("s_load_dwordx2 s[24:25], s[0:1], 16")
    a("s_load_dwordx2 s[28:29], s[0:1], 24")
    a("s_load_dwordx2 s[20:21], s[0:1], 8")
    a("s_load_dwordx2 s[36:37], s[0:1], 40")
    a("s_load_dwordx2 s[84:85], s[0:1], 0")
    a("s_load_dwordx2 s[32:33], s[0:1], 80")
    a("s_load_dwordx2 s[10:11], s[0:1], 32")
    a("s_load_dwordx2 s[40:41], s[0:1], 48")
    a("s_load_dwordx2 s[44:45], s[0:1], 56")
    if cp0:
        a("s_getpc_b64 s[60:61]")
        a.ins.append(Ins("K1_PC0: ; SOFT"))
        a("s_sub_u32 s60, s60, K1_PC0-edge_bin_kernel")
        a("s_subb_u32 s61, s61, 0")
        a("v_lshlrev_b32 v12, 7, v0")
        a(f"v_min_u32 v12, {'K2_END' if cp0 == 2 else 'K1_END'}-edge_bin_kernel, v12")
        a("v_cmp_gt_u32 vcc, 0xc0, v0")
        a("s_and_b64 exec, exec, vcc")
        a("global_load_dword v121, v12, s[60:61]")
        a("s_mov_b64 exec, -1")
    a("v_lshrrev_b32 v1, 6, v0")
    a("v_and_b32 v6, 63, v0")
    a("v_readfirstlane_b32 s3, v1")
    a("s_mov_b32 s52, 0xffff0000")
    a("s_lshr_b32 s53, s2, 4")
    a("s_lshl_b32 s53, s53, 3")
    a("s_and_b32 s54, s2, 7")
    a("s_or_b32 s73, s53, s54")
    a("v_lshlrev_b32 v9, 4, v6")
    for d_, size in ((24, E * 4), (28, E * 4), (20, N * 6), (36, 128 * 128 * 2), (84, N * 1024), (32, WS_SIZE),
                     (40, 128 * 384 * 2), (44, 4 * 384 * 2), (88, N * 256)):
        a(f"s_mov_b32 s{d_+2}, {size}")
        a(f"s_mov_b32 s{d_+3}, 0x00020000")
    a(f"s_mul_i32 s53, s73, {EPG*4}")
    a("v_lshlrev_b32 v7, 4, v0")
    a("v_cmp_gt_u32 vcc, 800, v0")
    a("v_mov_b32 v8, 0x40000000")
    a("s_mov_b64 s[50:51], vcc")
    a("v_cndmask_b32 v7, v8, v7, vcc")
    a("s_waitcnt lgkmcnt(0)")
    a(f"s_add_u32 s88, s32, {WS_H}")
    a("s_addc_u32 s89, s33, 0")
    a("s_bitcmp1_b32 s2, 3")
    a("s_cbranch_scc1 K1_HROLE")
    a(f"s_cmp_ge_u32 s73, {G}")
    a("s_cbranch_scc1 K1_WEIGHTS")
    stamp()
    if te:
        a("s_cmp_ge_u32 s3, 4")
        a("s_cbranch_scc1 K1_NOTOUCH")
        a("v_and_b32 v10, 0x7f, v0")
        a("v_lshlrev_b32 v10, 7, v10")
        a(f"v_cmp_gt_u32 vcc, {EPG*4}, v10")
        a("v_cndmask_b32 v10, v8, v10, vcc")
        a("s_cmp_ge_u32 s3, 2")
        a("s_cbranch_scc1 K1_TOUCHD")
        a("buffer_load_dword v120, v10, s[24:27], s53 offen" + NTE)
        a("s_branch K1_NOTOUCH")
        a.label("K1_TOUCHD")
        a("buffer_load_dword v120, v10, s[28:31], s53 offen" + NTE)
        a.label("K1_NOTOUCH")
    a("buffer_load_dwordx4 v[56:59], v7, s[24:27], s53 offen" + NTE)
    a("buffer_load_dwordx4 v[60:63], v7, s[28:31], s53 offen" + NTE)
    a("s_lshr_b32 s54, s73, 3")
    a("s_mul_i32 s54, s54, 5")
    a("s_lshr_b32 s54, s54, 3")
    if not rot:
        a("s_mov_b32 s54, 0")
    a("s_lshl_b32 s54, s54, 4")
    a("s_add_u32 s54, s54, s3")
    a("s_lshl_b32 m0, s54, 10")
    for k in range(10):
        a(f"s_cmp_ge_u32 m0, {147*1024}")
        a(f"s_cbranch_scc1 K1_SKIP{k}")
        a(f"buffer_load_dwordx4 v9, s[20:23], m0 offen{NTP} lds")
        a.label(f"K1_SKIP{k}")
        if k < 9:
            a("s_add_u32 m0, m0, 0x4000")
            a(f"s_sub_u32 s54, m0, {160*1024}")
            a(f"s_cmp_ge_u32 m0, {160*1024}")
            a("s_cselect_b32 m0, s54, m0")
    a("s_load_dwordx2 s[48:49], s[10:11], 0")
    a("v_lshlrev_b32 v10, 2, v0")
    a(f"v_add_u32 v10, {K1_CNT}, v10")
    a("v_mov_b32 v11, 0")
    a("v_cmp_gt_u32 vcc, 256, v0")
    a("s_and_saveexec_b64 s[56:57], vcc")
    a("ds_write_b32 v10, v11")
    a("s_mov_b64 exec, s[56:57]")
    a(f"s_mov_b32 s55, {BIN_MAGIC}")
    a(f"s_mov_b32 s58, {K1_CNT}")
    a("s_movk_i32 s59, 0x200")
    a("v_mov_b32 v5, 1")
    for e in range(4):
        a(f"s_mov_b64 s[{60+2*e}:{61+2*e}], 0")
    SRC, DST = 56, 60
    AD = 64
    SH = 72
    CA = 80
    RK = 84
    PP = 88
    EN = 104
    a("s_waitcnt vmcnt(9)")
    for i in range(8):
        r = SRC + i
        a(f"v_mul_u32_u24 v{AD+i}, 6, v{r}")
        if ua != 2:
            a(f"v_and_b32 v{AD+i}, -4, v{AD+i}")
            a(f"v_and_b32 v{SH+i}, 1, v{r}")
            a(f"v_lshlrev_b32 v{SH+i}, 4, v{SH+i}")
    for e in range(4):
        a(f"v_mul_hi_u32 v{CA+e}, v{DST+e}, s55")
        a(f"v_lshl_add_u32 v{CA+e}, v{CA+e}, 2, s58")
        a(f"v_mov_b32 v{EN+4*e}, v{SRC+e}")
        a(f"v_mov_b32 v{EN+4*e+1}, v{DST+e}")
    stamp()
    a("s_waitcnt vmcnt(0) lgkmcnt(0)")
    stamp()
    a("s_barrier")
    stamp()
    touch()
    a("s_mov_b64 exec, s[50:51]")
    a("s_cbranch_execz K1_PHASE_B")
    for e in range(4):
        for i in (e, 4 + e):
            if ua:
                a(f"ds_read_b64 v[{PP+2*i}:{PP+2*i+1}], v{AD+i}")
            else:
                a(f"ds_read2_b32 v[{PP+2*i}:{PP+2*i+1}], v{AD+i} offset0:0 offset1:1")
    for e in range(4):
        s, d = PP + 2 * e, PP + 8 + 2 * e
        t = 12 + 8 * e
        if ua != 2:
            a(f"v_lshrrev_b64 v[{s}:{s+1}], v{SH+e}, v[{s}:{s+1}]")
            a(f"v_lshrrev_b64 v[{d}:{d+1}], v{SH+4+e}, v[{d}:{d+1}]")
        a(f"v_lshlrev_b32 v{t}, 16, v{s}")
        a(f"v_lshlrev_b32 v{t+1}, 16, v{d}")
        a(f"v_and_b32 v{t+2}, s52, v{s}")
        a(f"v_and_b32 v{t+3}, s52, v{d}")
        a(f"v_lshlrev_b32 v{t+4}, 16, v{s+1}")
        a(f"v_lshlrev_b32 v{t+5}, 16, v{d+1}")
        a(f"v_sub_f32 v{t}, v{t}, v{t+1}")
        a(f"v_sub_f32 v{t+2}, v{t+2}, v{t+3}")
        a(f"v_sub_f32 v{EN+4*e+3}, v{t+4}, v{t+5}")
        a(f"v_cvt_pk_bf16_f32 v{EN+4*e+2}, v{t}, v{t+2}")
        a(f"v_mul_f32 v{t+1}, v{t}, v{t}")
        a(f"v_fmac_f32 v{t+1}, v{t+2}, v{t+2}")
        a(f"v_fmac_f32 v{t+1}, v{EN+4*e+3}, v{EN+4*e+3}")
        a(f"v_cmp_nlt_f32 vcc, 0x41c20000, v{t+1}")
        a(f"v_cmp_class_f32_e64 s[{60+2*e}:{61+2*e}], v{t+1}, s59")
        a(f"s_or_b64 s[{60+2*e}:{61+2*e}], s[{60+2*e}:{61+2*e}], vcc")
        a(f"s_mov_b64 exec, s[{60+2*e}:{61+2*e}]")
        a(f"ds_add_rtn_u32 v{RK+e}, v{CA+e}, v5")
        a("s_mov_b64 exec, s[50:51]")
    a.label("K1_PHASE_B")
    a("s_mov_b64 exec, -1")
    stamp()
    a("s_barrier")
    stamp()
    if scan1:
        a("s_cmp_lg_u32 s3, 15")
        a("s_cbranch_scc1 K1_NODESC")
        a("s_setprio 3")
    a(f"v_add_u32 v10, {K1_CNT}, v9")
    a("ds_read_b128 v[12:15], v10")
    a("v_add_u32 v17, v12, v13")
    a("v_add_u32 v18, v17, v14")
    a("v_add_u32 v19, v18, v15")
    a("v_mov_b32 v20, v19")
    wave_scan(a, 20)
    a("v_sub_u32 v24, v20, v19")
    a("v_add_u32 v25, v24, v12")
    a("v_add_u32 v26, v24, v17")
    a("v_add_u32 v27, v24, v18")
    a("ds_write_b128 v10, v[24:27] offset:1024")
    if scan1:
        a("ds_write_b32 v10, v20")
        a("s_waitcnt lgkmcnt(0)")
        a("s_barrier")
    else:
        a("v_readlane_b32 s68, v20, 63")
        a("s_cmp_lg_u32 s3, 15")
        a("s_cbranch_scc1 K1_NODESC")
    for i in range(4):
        a(f"v_lshl_or_b32 v{28+i}, v{12+i}, 16, v{24+i}")
    a("s_lshl_b32 s69, s73, 10")
    a(f"s_add_u32 s69, s69, {WS_DESC}")
    a("buffer_store_dwordx4 v[28:31], v9, s[32:35], s69 offen")
    if scan1:
        a("s_branch K1_SCANNED")
    a.label("K1_NODESC")
    if scan1:
        a("s_barrier")
        a.label("K1_SCANNED")
        a(f"v_mov_b32 v20, {K1_CNT + 63*16}")
        a("ds_read_b32 v20, v20")
    for e in range(4):
        a(f"s_mov_b64 exec, s[{60+2*e}:{61+2*e}]")
        a(f"ds_read_b32 v{12+e}, v{CA+e} offset:1024")
    for e in range(4):
        a(f"s_mov_b64 exec, s[{60+2*e}:{61+2*e}]")
        a(f"v_add_lshl_u32 v{12+e}, v{12+e}, v{RK+e}, 4")
        a(f"ds_write_b128 v{12+e}, {q(EN+4*e)}")
    a("s_mov_b64 exec, -1")
    if scan1:
        a("v_readfirstlane_b32 s68, v20")
    a("s_lshl_b32 s60, s48, 16")
    a("s_and_b32 s61, s48, s52")
    a("s_lshl_b32 s62, s49, 16")
    a("s_and_b32 s63, s49, s52")
    a(f"s_mul_i32 s69, s73, {EPG*32}")
    a(f"s_add_u32 s69, s69, {WS_REC}")
    a("s_movk_i32 s70, 3125")
    a("s_mov_b32 s71, 0x40a00000")
    stamp()
    a("s_barrier")
    stamp()
    a("v_mov_b32 v8, v0")
    a("s_lshl_b32 s72, s3, 6")
    a.label("K1_DENSE")
    a("s_cmp_ge_u32 s72, s68")
    a("s_cbranch_scc1 K1_FIN")
    a("v_cmp_gt_u32 vcc, s68, v8")
    a("s_and_b64 exec, exec, vcc")
    b = Asm()
    b("v_lshlrev_b32 v10, 4, v8")
    b("ds_read_b128 v[12:15], v10")
    b("v_cvt_pk_bf16_f32 v15, v15, v15")
    b("v_and_b32 v15, s52, v15")
    b("v_lshlrev_b32 v16, 16, v14")
    b("v_and_b32 v17, s52, v14")
    b("v_mul_f32 v18, v16, v16")
    b("v_mul_f32 v19, v17, v17")
    b("v_mul_f32 v20, v15, v15")
    b("v_cvt_pk_bf16_f32 v18, v18, v19")
    b("v_cvt_pk_bf16_f32 v20, v20, v20")
    b("v_and_b32 v19, s52, v18")
    b("v_lshlrev_b32 v18, 16, v18")
    b("v_and_b32 v20, s52, v20")
    b("v_add_f32 v18, v18, v19")
    b("v_add_f32 v18, v18, v20")
    b("v_cvt_pk_bf16_f32 v18, v18, v18")
    b("v_and_b32 v18, s52, v18")
    b("v_add_f32 v18, 0x322bcc77, v18")
    b("v_cvt_pk_bf16_f32 v18, v18, v18")
    b("v_and_b32 v18, s52, v18")
    b("v_sqrt_f32 v18, v18")
    b("v_mul_hi_u32 v21, v13, s55")
    b("v_mul_u32_u24 v21, s70, v21")
    b("v_add_u32 v21, 31, v21")
    b("v_lshrrev_b32 v21, 5, v21")
    b("v_lshlrev_b32 v44, 10, v12")
    b("v_sub_u32 v45, v13, v21")
    b("v_cvt_pk_bf16_f32 v18, v18, v18")
    b("v_and_b32 v18, s52, v18")
    b("v_rcp_f32 v19, v18")
    for k in range(4):
        b(f"v_mul_f32 v{22+k}, s{60+k}, v18")
    b("v_mul_f32 v26, 0x40490fdb, v18")
    b("v_cvt_pk_bf16_f32 v22, v22, v23")
    b("v_cvt_pk_bf16_f32 v24, v24, v25")
    b("v_cvt_pk_bf16_f32 v26, v26, v26")
    b("v_and_b32 v23, s52, v22")
    b("v_lshlrev_b32 v22, 16, v22")
    b("v_and_b32 v25, s52, v24")
    b("v_lshlrev_b32 v24, 16, v24")
    b("v_and_b32 v26, s52, v26")
    b("v_mul_f32 v26, 0x3e4ccccd, v26")
    b("v_cvt_pk_bf16_f32 v26, v26, v26")
    b("v_and_b32 v26, s52, v26")
    for k in range(5):
        b(f"v_mul_f32 v{22+k}, 0.15915494, v{22+k}")
    for k in range(5):
        b(f"v_rndne_f32 v{28+k}, v{22+k}")
    for k in range(5):
        b(f"v_sub_f32 v{22+k}, v{22+k}, v{28+k}")
    for k in range(4):
        b(f"v_sin_f32 v{22+k}, v{22+k}")
    b("v_cos_f32 v26, v26")
    b("v_mul_f32 v16, v16, v19")
    b("v_mul_f32 v17, v17, v19")
    b("v_mul_f32 v15, v15, v19")
    b("v_cvt_pk_bf16_f32 v46, v16, v17")
    b("v_cvt_pk_bf16_f32 v47, v15, 0")
    b("v_cvt_pk_bf16_f32 v22, v22, v23")
    b("v_cvt_pk_bf16_f32 v24, v24, v25")
    b("v_cvt_pk_bf16_f32 v26, v26, v26")
    b("v_and_b32 v23, s52, v22")
    b("v_lshlrev_b32 v22, 16, v22")
    b("v_and_b32 v25, s52, v24")
    b("v_lshlrev_b32 v24, 16, v24")
    b("v_and_b32 v26, s52, v26")
    for k in range(4):
        b(f"v_mul_f32 v{22+k}, v{22+k}, v19")
    b("v_add_f32 v26, 1.0, v26")
    b("v_cvt_pk_bf16_f32 v22, v22, v23")
    b("v_cvt_pk_bf16_f32 v24, v24, v25")
    b("v_cvt_pk_bf16_f32 v26, v26, v26")
    b("v_and_b32 v23, s52, v22")
    b("v_lshlrev_b32 v22, 16, v22")
    b("v_and_b32 v25, s52, v24")
    b("v_lshlrev_b32 v24, 16, v24")
    b("v_and_b32 v26, s52, v26")
    b("v_mul_f32 v26, 0.5, v26")
    b("v_mul_f32 v27, 0, v18")
    b("v_cmp_gt_f32 vcc, s71, v18")
    b("v_cndmask_b32 v26, v27, v26, vcc")
    for k in range(4):
        b(f"v_mul_f32 v{22+k}, v{22+k}, v26")
    b("v_cvt_pk_bf16_f32 v48, v22, v23")
    b("v_cvt_pk_bf16_f32 v49, v24, v25")
    b("v_lshlrev_b32 v28, 16, v48")
    b("v_and_b32 v29, s52, v48")
    b("v_lshlrev_b32 v30, 16, v49")
    b("v_and_b32 v31, s52, v49")
    for k in range(4):
        b(f"v_sub_f32 v{22+k}, v{22+k}, v{28+k}")
    b("v_cvt_pk_bf16_f32 v50, v22, v23")
    b("v_cvt_pk_bf16_f32 v51, v24, v25")
    b("v_lshlrev_b32 v11, 5, v8")
    b("buffer_store_dwordx4 v[44:47], v11, s[32:35], s69 offen " + st1)
    b("buffer_store_dwordx4 v[48:51], v11, s[32:35], s69 offen offset:16 " + st1)
    a.extend(schedule(b.ins)[0])
    a("v_add_u32 v8, 0x400, v8")
    a("s_add_u32 s72, s72, 0x400")
    a("s_branch K1_DENSE")
    a.label("K1_WEIGHTS")
    touch()
    a(f"s_cmp_lg_u32 s73, {G}")
    a("s_cbranch_scc1 K1_END")
    a("s_mov_b32 s64, 0x05040100")
    a("s_mov_b32 s65, 0x07060302")
    a("v_and_b32 v7, 15, v0")
    a("v_bfe_u32 v8, v0, 4, 2")
    a("s_cmp_ge_u32 s3, 12")
    a("s_cbranch_scc1 K1_WRBF")
    a("v_mul_u32_u24 v10, 6144, v8")
    a("v_lshl_add_u32 v10, v7, 4, v10")
    a("v_add_u32 v11, 3072, v10")
    a("s_and_b32 s55, s3, 3")
    a("s_lshr_b32 s57, s3, 2")
    a("s_mul_i32 s59, s55, 24576")
    a("s_lshl_b32 s60, s57, 8")
    a("s_add_u32 s59, s59, s60")
    for j in range(8):
        a(f"buffer_load_dwordx4 {q(12+4*j)}, v{10 + j//4}, s[40:43], s59 offen offset:{768*(j%4)}{NTW}")
    a("s_lshl_b32 s62, s57, 15")
    a("s_lshl_b32 s60, s55, 10")
    a("s_add_u32 s62, s62, s60")
    a("s_waitcnt vmcnt(0)")
    for T in range(8):
        o = 48 + 4 * T
        for jj in range(4):
            a(f"v_perm_b32 v{o+jj}, v{12+4*(2*jj+1)+T//2}, v{12+4*(2*jj)+T//2}, s{64+T%2}")
        a(f"buffer_store_dwordx4 {q(o)}, v9, s[32:35], s62 offen")
        a("s_add_u32 s62, s62, 0x1000")
    a("s_branch K1_END")
    a.label("K1_WRBF")
    a("s_cmp_lg_u32 s3, 12")
    a("s_cbranch_scc1 K1_END")
    for j in range(4):
        a(f"buffer_load_dwordx4 {q(12+4*j)}, v9, s[44:47], 0 offen offset:{768*j}")
    a("v_lshlrev_b32 v10, 10, v8")
    a("v_lshl_add_u32 v10, v7, 3, v10")
    a(f"s_mov_b32 s62, {WS_WR}")
    a("s_mov_b32 exec_hi, 0xffff")
    a("s_waitcnt vmcnt(0)")
    for T in range(8):
        o = 48 + 2 * T
        a(f"v_perm_b32 v{o}, v{16+T//2}, v{12+T//2}, s{64+T%2}")
        a(f"v_perm_b32 v{o+1}, v{24+T//2}, v{20+T//2}, s{64+T%2}")
        a(f"buffer_store_dwordx2 v[{o}:{o+1}], v10, s[32:35], s62 offen offset:{128*T}")
    a("s_branch K1_END")
    a.label("K1_HROLE")
    stamp()
    a("v_and_b32 v7, 15, v0")
    a("v_bfe_u32 v8, v0, 4, 2")
    a("s_cmp_ge_u32 s3, 7")
    a("s_cselect_b32 s56, 0, 8")
    a("s_cselect_b32 s57, 7, 0")
    a("s_sub_u32 s56, s2, s56")
    a("s_sub_u32 s57, s3, s57")
    a("s_mul_i32 s56, s56, 3125")
    a("s_add_u32 s56, s56, 31")
    a("s_lshr_b32 s56, s56, 5")
    a("s_lshl_b32 s57, s57, 4")
    a("s_add_u32 s57, s57, s56")
    a("s_lshl_b32 s58, s57, 10")
    a("v_lshlrev_b32 v11, 10, v7")
    a("v_lshl_add_u32 v11, v8, 4, v11")
    SA = 40
    a("s_cmp_ge_u32 s3, 4")
    a("s_cbranch_scc1 K1_NOW1")
    a("s_mov_b32 s64, 0x05040100")
    a("s_mov_b32 s65, 0x07060302")
    a("v_lshlrev_b32 v10, 11, v8")
    a("v_lshl_add_u32 v10, v7, 4, v10")
    a("s_lshl_b32 s59, s3, 13")
    WR_ = 56
    for j in range(8):
        a(f"buffer_load_dwordx4 {q(WR_+4*j)}, v10, s[36:39], s59 offen offset:{256*j}{NTW}")
    if early_s:
        for t in range(4):
            a(f"buffer_load_dwordx4 {q(SA+4*t)}, v11, s[84:87], s58 offen offset:{64*t}{NTS}")
    a("s_lshl_b32 s59, s3, 10")
    a("v_add_u32 v28, s59, v9")
    a(f"s_waitcnt vmcnt({4 if early_s else 0})")
    for T in range(8):
        o = 88 + 4 * T
        for jj in range(4):
            a(f"v_perm_b32 v{o+jj}, v{WR_+4*(2*jj+1)+T//2}, v{WR_+4*(2*jj)+T//2}, s{64+T%2}")
        a(f"ds_write_b128 v28, {q(o)} offset:{4096*T}")
    a("s_branch K1_W1DONE")
    a.label("K1_NOW1")
    if th:
        a("s_cmp_ge_u32 s3, 11")
        a("s_cbranch_scc1 K1_W1DONE")
        a("s_sub_u32 s60, s3, 4")
        a("s_lshl_b32 s60, s60, 1")
        a("v_lshrrev_b32 v12, 5, v6")
        a("v_add_u32 v12, s60, v12")
        a("v_cmp_le_u32 vcc, 7, v12")
        a("v_subrev_u32 v13, 7, v12")
        a("v_cndmask_b32 v12, v12, v13, vcc")
        a("s_sub_u32 s61, s2, 8")
        a("s_mul_i32 s61, s61, 3125")
        a("s_add_u32 s61, s61, 31")
        a("s_lshr_b32 s61, s61, 5")
        a("s_mul_i32 s62, s2, 3125")
        a("s_add_u32 s62, s62, 31")
        a("s_lshr_b32 s62, s62, 5")
        a("v_mov_b32 v13, s61")
        a("v_mov_b32 v14, s62")
        a("v_cndmask_b32 v13, v13, v14, vcc")
        a("v_lshl_add_u32 v13, v12, 4, v13")
        a("v_bfe_u32 v14, v6, 1, 4")
        a("v_add_u32 v13, v13, v14")
        a("v_and_b32 v14, 1, v6")
        a("v_lshlrev_b32 v13, 10, v13")
        a("v_lshl_add_u32 v13, v14, 7, v13")
        a("buffer_load_dword v120, v13, s[84:87], 0 offen" + NTS)
    if early_s:
        a("s_cmp_ge_u32 s3, 14")
        a("s_cbranch_scc1 K1_W1DONE")
        for t in range(4):
            a(f"buffer_load_dwordx4 {q(SA+4*t)}, v11, s[84:87], s58 offen offset:{64*t}{NTS}")
    a.label("K1_W1DONE")
    stamp()
    a("s_barrier")
    stamp()
    if cpf:
        a("s_cmp_lg_u32 s3, 15")
        a("s_cbranch_scc1 K1_NOCPF")
        a("s_getpc_b64 s[60:61]")
        a.label("K1_PC")
        a("s_add_u32 s60, s60, message_kernel-K1_PC")
        a("s_addc_u32 s61, s61, 0")
        a("v_lshlrev_b32 v12, 7, v6")
        for i in range(cpf):
            a("v_cmp_gt_u32 vcc, K2_END-message_kernel, v12")
            a("s_and_b64 exec, exec, vcc")
            a(f"global_load_dword v{13+i}, v12, s[60:61]")
            a("v_add_u32 v12, 0x2000, v12")
        a("s_mov_b64 exec, -1")
        a.label("K1_NOCPF")
    if tlbw:
        a("s_cmp_lg_u32 s3, 14")
        a("s_cbranch_scc1 K1_NOTLB")
        a("s_load_dwordx2 s[60:61], s[0:1], 64")
        a("v_lshlrev_b32 v12, 19, v6")
        a("buffer_load_dword v13, v12, s[84:87], 0 offen")
        a("s_waitcnt lgkmcnt(0)")
        a(f"s_mov_b32 s62, {N*1024}")
        a("s_mov_b32 s63, 0x00020000")
        a("buffer_load_dword v15, v12, s[60:63], 0 offen")
        a.label("K1_NOTLB")
    a("s_cmp_ge_u32 s3, 14")
    a("s_cbranch_scc1 K1_FIN")
    if not early_s:
        for t in range(4):
            a(f"buffer_load_dwordx4 {q(SA+4*t)}, v11, s[84:87], s58 offen offset:{64*t}{NTS}")
    if pf:
        a("s_waitcnt vmcnt(0)")
    touch()
    if pfv:
        a("v_lshrrev_b32 v122, 2, v6")
        a("v_and_b32 v123, 3, v6")
        a("v_lshlrev_b32 v122, 10, v122")
        a("v_lshl_add_u32 v122, v123, 7, v122")
        a(f"v_cmp_gt_u32 vcc, {pfv % 10}, v123")
        a("v_mov_b32 v123, 0x40000000")
        a("v_cndmask_b32 v122, v123, v122, vcc")
        if pfv >= 10:
            a("s_waitcnt vmcnt(0)")
        a("buffer_load_dword v120, v122, s[84:87], s58 offen offset:256")
    b = Asm()
    RING = [56 + 4 * i for i in range(4)]
    D0 = 72
    TM = 12
    OUT = 104
    kf = [0]

    def pfw():
        if kf[0] < 32:
            b(f"ds_read_b128 {q(RING[kf[0] % 4])}, v9 offset:{1024*kf[0]}")
            kf[0] += 1
    for _ in range(4):
        pfw()
    b(f"s_waitcnt vmcnt({1 if (pf or pfv) else 0})", guards=[f"v{SA+i}" for i in range(16)])
    k = 0
    for T in range(8):
        D = D0 + 4 * T
        for t in range(4):
            c = "0" if t == 0 else q(D)
            b(f"v_mfma_f32_16x16x32_bf16 {q(D)}, {q(SA+4*t)}, {q(RING[k % 4])}, {c}")
            k += 1
            pfw()
        for r in range(4):
            t = TM + (4 * T + r) % 16
            b(f"v_mul_f32 v{t}, 0xbfb8aa3b, v{D+r}")
            b(f"v_exp_f32 v{t}, v{t}")
            b(f"v_add_f32 v{t}, 1.0, v{t}")
            b(f"v_rcp_f32 v{t}, v{t}")
            b(f"v_mul_f32 v{D+r}, v{D+r}, v{t}")
        if T % 2 == 1:
            for r in range(4):
                b(f"v_cvt_pk_bf16_f32 v{OUT+4*r+T//2}, v{D-4+r}, v{D+r}")
    b("v_lshlrev_b32 v30, 10, v8")
    b("v_lshl_add_u32 v30, v7, 4, v30")
    b("s_lshl_b32 s58, s57, 8")
    for r in range(4):
        b(f"buffer_store_dwordx4 {q(OUT+4*r)}, v30, s[88:91], s58 offen offset:{256*r} {sth}")
    sch, tt = schedule(b.ins)
    print("K1 H tile: %d instructions, modelled %d cycles" % (len(sch), tt))
    a.extend(sch)
    a.label("K1_FIN")
    if stamps:
        stamp()
        a("s_waitcnt vmcnt(0)")
        stamp()
        a("s_mov_b64 exec, 0xffff")
        a("v_lshlrev_b32 v124, 2, v6")
        a("v_add_u32 v125, s79, v124")
        a("ds_read_b32 v126, v125")
        a("s_lshl_b32 s74, s2, 4")
        a("s_add_u32 s74, s74, s3")
        a("s_lshl_b32 s74, s74, 6")
        a(f"s_add_u32 s74, s74, {WS_STAMP1}")
        a("buffer_store_dword v126, v124, s[32:35], s74 offen")
    a.label("K1_END")
    a("s_endpgm")
    return a
```

```python
from asmlib import Asm, Ins, schedule
from gen3_k1 import N, G, EPG, WS_W2, WS_WR, WS_WEND, WS_DESC, WS_REC, WS_H, WS_SIZE, WS_STAMP2, srd, wave_scan

L_W2 = 0
L_WR = 98304
L_CNT = 102400
L_P = L_CNT + 512
L_FLAG = L_P + 576
L_REC = L_FLAG + 64
CAP = 400
RSLOW = 1
L_OWN = L_REC + (CAP + 16) * 32
NL = 44
L_STAMP = L_OWN + NL * 1024
K2_LDS = L_STAMP + 1024
assert K2_LDS <= 163840 and L_OWN % 16 == 0
RMAX = 8

sHW, sSIG = 0, 1
sWAVE = 3
SRD_SV, SRD_OUT, SRD_WS, SRD_OWN, SRD_H = 12, 16, 20, 24, 96
sM, sBASE, sNB, sJ0, sR, sTOT, sROUND, sMORE = 28, 29, 30, 31, 32, 33, 34, 35
cN0, cNN, cEB, cNE, cE1, cOFF = 36, 37, 38, 39, 40, 41
nN0, nNN, nEB, nNE, nE1, nOFF = 42, 43, 44, 45, 46, 47
sT0, sT1, sT2, sPOS = 48, 49, 50, 51
sLO, sONE2, sSELL, sSELH = 52, 53, 54, 55
sQLT2 = 56
sCE32, sNE32 = 58, 59
sMK = 60
NMK = 12
tN0, tEB, tE1, tPOS, tCONT, tLDS, sFIRST, sDMA = 84, 85, 86, 87, 88, 89, 90, 91
nSRC = 92
sST = 94
sL0 = 100
nLDS = 101

vLANE, vWB0, vWB1, vWR, vE, vQ4, vQ16, vN16, vRECE, vRECQ, vRB, vTA, vTB, vOWN0, v2Q, vNEXT, vP, vOOB = range(1, 19)
vOA0, vOA1 = 19, 20
vMASK, v16 = 21, 27
M4 = True
HQ = 0
SPLIT = 6
SPLITS = []
sB3 = 9
VC = True
vVA = 22
vHA = 26
vRBOP = 28
vID = 30
H0 = 32
V0 = 48
OWN0 = 96
SOP = 128
MS0 = 144
MVR0 = 160
MVV0 = 176
WRING = 208
NRING = 7
PH0 = 240
WF0 = 248
WRF0 = 236

NT = NTV = NTO = ""
ORDER = list(range(16, 24)) + list(range(0, 8)) + list(range(8, 16))


def q(base):
    return f"v[{base}:{base+3}]"


def d(base):
    return f"v[{base}:{base+1}]"


def Vq(x, r):
    return V0 + 16 * x + 4 * r


def Oq(c, h):
    return OWN0 + 8 * c + 4 * h


def advance(a):
    a(f"s_lshr_b32 s{sT0}, s{sPOS}, 1")
    a(f"v_readlane_b32 s{sT1}, v{vNEXT}, s{sT0}")
    a(f"s_and_b32 s{sT2}, s{sPOS}, 1")
    a(f"s_lshl_b32 s{sT2}, s{sT2}, 3")
    a(f"s_lshr_b32 s{sT1}, s{sT1}, s{sT2}")
    a(f"s_and_b32 s{sPOS}, s{sT1}, 0xff")


def lookup_p(a, dst):
    a(f"s_lshr_b32 s{sT0}, s{sPOS}, 1")
    a(f"v_readlane_b32 s{sT1}, v{vP}, s{sT0}")
    a(f"s_and_b32 s{sT2}, s{sPOS}, 1")
    a(f"s_lshl_b32 s{sT2}, s{sT2}, 4")
    a(f"s_lshr_b32 s{sT1}, s{sT1}, s{sT2}")
    a(f"s_and_b32 s{dst}, s{sT1}, 0xffff")


def finish_next(a):
    a(f"s_sub_u32 s{nNN}, s{sPOS}, s{nN0}")
    a(f"s_add_u32 s{nOFF}, s{nN0}, s{sBASE}")
    a(f"s_lshl_b32 s{nOFF}, s{nOFF}, 10")
    a(f"s_cmp_eq_u32 s{tCONT}, 0")
    a(f"s_cselect_b32 s{nSRC}, s4, s6")
    a(f"s_cselect_b32 s{nSRC+1}, s5, s7")
    a(f"s_cselect_b32 s{tLDS}, 1, 0")
    a(f"s_cmp_ge_u32 s{nN0}, s{sL0}")
    a(f"s_cselect_b32 s{nLDS}, s{tLDS}, 0")
    a(f"s_sub_u32 s{nNE}, s{nE1}, s{nEB}")
    a(f"s_min_u32 s{nNE}, s{nNE}, 16")
    a(f"s_lshl_b32 s{sNE32}, s{nEB}, 5")


def next_item(a, steps, allow_cont=True):
    if allow_cont:
        finish_next(a)
        return
    a(f"s_mov_b32 s{nN0}, s{sPOS}")
    lookup_p(a, nEB)
    advance(a)
    lookup_p(a, nE1)
    a(f"s_mov_b32 s{tCONT}, s{sROUND}")
    finish_next(a)


def claim(a, tag, t):
    a(f"v_mov_b32 v{t}, {L_FLAG+12}")
    a(f"ds_read_b32 v{t+3}, v{t}")
    a(f"s_add_u32 s{nEB}, s{cEB}, 16")
    a(f"s_mov_b32 s{tCONT}, 1")
    a(f"v_readfirstlane_b32 s{tPOS}, v{t+3}")
    a(f"s_cmp_lt_u32 s{nEB}, s{cE1}")
    a(f"s_cbranch_scc1 K2_CLAIMED{tag}")
    a(f"s_mov_b32 s{tCONT}, s{sROUND}")
    a.label(f"K2_CLAIM{tag}")
    a(f"s_mov_b32 s{sPOS}, s{tPOS}")
    a(f"s_mov_b32 s{nN0}, s{tPOS}")
    a(f"v_mov_b32 v{t+1}, s{tPOS}")
    advance(a)
    a(f"v_mov_b32 v{t+2}, s{sPOS}")
    a("s_mov_b64 exec, 1")
    a(f"ds_cmpst_rtn_b32 v{t+3}, v{t}, v{t+1}, v{t+2} ; NOWAIT")
    a("s_mov_b64 exec, -1")
    lookup_p(a, nE1)
    a(f"s_mov_b32 s{tE1}, s{sPOS}")
    a(f"s_mov_b32 s{sPOS}, s{nN0}")
    lookup_p(a, nEB)
    a(f"s_mov_b32 s{sPOS}, s{tE1}")
    a("s_waitcnt lgkmcnt(0)")
    a(f"v_readfirstlane_b32 s{tPOS}, v{t+3}")
    a(f"s_cmp_lg_u32 s{tPOS}, s{nN0}")
    a(f"s_cbranch_scc1 K2_CLAIM{tag}")
    a.label(f"K2_CLAIMED{tag}")


class MaskAlloc:
    def __init__(self, k=0):
        self.k = k

    def __call__(self):
        r = sMK + 2 * (self.k % NMK)
        self.k += 1
        return f"s[{r}:{r+1}]"


def emit_h_addr(a, mk, t):
    if HQ == 1:
        a(f"v_lshrrev_b32 v{t}, 2, v{vLANE}")
        m = mk()
        a(f"v_cmp_gt_u32_e64 {m}, s{nNE}, v{t}")
        a(f"v_lshlrev_b32 v{t}, 5, v{t}")
        a(f"v_add_u32 v{t}, {L_REC}, v{t}")
        a(f"v_add_u32 v{t}, s{sNE32}, v{t}")
        a(f"ds_read_b32 v{vHA}, v{t}")
        a(f"v_lshrrev_b32 v{vHA}, 2, v{vHA}")
        a(f"v_and_b32 v{vOOB}, 48, v{vWB0}")
        a(f"v_add_u32 v{vHA}, v{vHA}, v{vOOB}")
        a(f"v_mov_b32 v{vOOB}, 0x40000000")
        a(f"v_cndmask_b32_e64 v{vHA}, v{vOOB}, v{vHA}, {m}")
        return
    a(f"v_add_u32 v{t}, s{sNE32}, v{vRECE}")
    a(f"ds_read_b32 v{vHA}, v{t}")
    m = mk()
    a(f"v_cmp_gt_u32_e64 {m}, s{nNE}, v{vE}")
    a(f"v_lshrrev_b32 v{vHA}, 2, v{vHA}")
    if HQ == 2:
        a(f"v_and_b32 v{vHA}, 0x3fff, v{vHA}")
    a(f"v_add_u32 v{vHA}, v{vHA}, v{vQ16}")
    a(f"v_cndmask_b32_e64 v{vHA}, v{vOOB}, v{vHA}, {m}")


def emit_h_loads(a):
    for t in range(4):
        a(f"buffer_load_dwordx4 {q(H0+4*t)}, v{vHA}, s[{SRD_H}:{SRD_H+3}], 0 offen offset:{64*t}")


def emit_comp_stores(a, c):
    for h, va in ((0, vOA0), (1, vOA1)):
        a(f"buffer_store_dwordx4 {q(Oq(c,h))}, v{va}, s[{SRD_OUT}:{SRD_OUT+3}], s{cOFF} offen offset:{256*c}{NT}")


def comp_wait(a, c):
    regs = [f"v{Oq(c,h)+i}" for h in range(2) for i in range(4)]
    if c > 0:
        regs += [f"v{Vq(c-1,r)+i}" for r in range(4) for i in range(4)]
    a(f"s_waitcnt vmcnt({((22, 18, 14, 10) if OWNIN else (16, 14, 12, 10))[c]})", guards=regs)


def wfrag(a, k, ring):
    c = ORDER[k // 4]
    off = (4 * c + k % 4) * 1024
    base = vWB0 if off < 65536 else vWB1
    a(f"ds_read_b128 {q(ring)}, v{base} offset:{off % 65536}" + (f" ; GRP{k//GRPN}" if GRPN > 1 else ""))


T = list(range(MVV0, MVV0 + 32))


def own_load(a, c):
    for h, va in ((0, vOA0), (1, vOA1)):
        a(f"buffer_load_dwordx4 {q(Oq(c,h))}, v{va}, s[{SRD_OWN}:{SRD_OWN+3}], s{cOFF} offen offset:{256*c}{NTO}")


def v_load(a, i):
    c, r = 1 + i // 4, i % 4
    if OWNIN and i == 0:
        own_load(a, 0)
    a(f"buffer_load_dwordx4 {q(Vq(c-1,r))}, v{vVA+r}, s[{SRD_SV}:{SRD_SV+3}], 0 offen offset:{256*c}{NTV}")
    if OWNIN and r == 3:
        own_load(a, c)


VSPREAD = 1
OWNIN = False
GRPN = 4


def item_block(memonly=False):
    a = Asm()
    mk = MaskAlloc(6)
    if memonly:
        for i in range(12):
            v_load(a, i)
        claim(a, "C", PH0)
        next_item(a, 7)
        emit_h_addr(a, mk, vHA)
        emit_h_loads(a)
        for c in range(4):
            comp_wait(a, c)
            emit_comp_stores(a, c)
        return a
    MK = [MS0 + i for i in range(4)]
    PR = [MS0 + 4 + i for i in range(6)]
    ring = [WRING + 4 * i for i in range(NRING)]
    kf = [0]

    def prefetch():
        if kf[0] < 96:
            wfrag(a, kf[0], ring[kf[0] % NRING])
            kf[0] += 1

    for _ in range(NRING):
        prefetch()
    m = mk()
    a(f"v_cmp_gt_u32_e64 {m}, s{cNE}, v{vE}")
    a(f"s_and_b64 {m}, {m}, s[{sQLT2}:{sQLT2+1}]")
    a(f"v_cndmask_b32_e64 v{vRBOP}, 0, v{vRBOP}, {m}")
    a(f"v_cndmask_b32_e64 v{vRBOP+1}, 0, v{vRBOP+1}, {m}")
    for side, tgt in ((0, vTA), (1, vTB)):
        for pr in range(2):
            ts = []
            for r in (2 * pr, 2 * pr + 1):
                m = mk()
                t = T[22 + 4 * side + r]
                a(f"v_cmp_eq_u32_e64 {m}, v{T[4*r+1]}, v{tgt}")
                a(f"v_cndmask_b32_e64 v{t}, 0, -1, {m}")
                ts.append(t)
            a(f"v_bfi_b32 v{MK[2*side+pr]}, s{sLO}, v{ts[0]}, v{ts[1]}")
    for pr in range(2):
        r0, r1 = 2 * pr, 2 * pr + 1
        a(f"v_perm_b32 v{PR[0+pr]}, v{T[4*r1+2]}, v{T[4*r0+2]}, s{sSELL}")
        a(f"v_perm_b32 v{PR[2+pr]}, v{T[4*r1+2]}, v{T[4*r0+2]}, s{sSELH}")
        a(f"v_perm_b32 v{PR[4+pr]}, v{T[4*r1+3]}, v{T[4*r0+3]}, s{sSELL}")
    AS = SOP
    for i in range(4):
        a(f"v_and_b32 v{AS+i}, s{sONE2}, v{MK[i]}")
    for x in range(3):
        for i in range(4):
            a(f"v_and_b32 v{AS+4+4*x+i}, v{MK[i]}, v{PR[2*x+(i%2)]}")
    k = 0
    for ci, c in enumerate(ORDER):
        Gi, Ti = c // 8, c % 8
        PH = PH0 + 4 * (ci % 2)
        WF = WF0 + 4 * (ci % 2)
        WRF = WRF0 + 2 * (ci % 2)
        if ci == SPLIT:
            SPLITS.append(len(a.ins))
            next_item(a, 7)
        a(f"ds_read_b64 {d(WRF)}, v{vWR} offset:{128*c}")
        if ci == 16:
            emit_h_addr(a, mk, vHA)
        for t in range(4):
            cc = "0" if t == 0 else q(PH)
            a(f"v_mfma_f32_16x16x32_bf16 {q(PH)}, {q(H0+4*t)}, {q(ring[k % NRING])}, {cc}")
            k += 1
            prefetch()
        a(f"v_mfma_f32_16x16x16_bf16 {q(WF)}, {d(vRBOP)}, {d(WRF)}, 0")
        a.ins[-1].pw = f"tile{ci}"
        for i in range(12):
            if i * VSPREAD // 2 == ci:
                v_load(a, i)
                if ci:
                    a.ins[-1].pr = f"tile{ci-1}"
        if Gi == 1:
            for r in range(4):
                a(f"v_mul_f32 v{MVV0+4*Ti+r}, v{PH+r}, v{WF+r}")
        else:
            for r in range(4):
                a(f"v_mul_f32 v{WF+r}, v{PH+r}, v{WF+r}")
            dst = (MS0 if Gi == 0 else MVR0) + 2 * Ti
            a(f"v_cvt_pk_bf16_f32 v{dst}, v{WF}, v{WF+1}")
            a(f"v_cvt_pk_bf16_f32 v{dst+1}, v{WF+2}, v{WF+3}")
    emit_h_loads(a)
    U = [WRING, WRING + 16]
    BB = [240, 244]
    CD = [248, 252]
    it = 0
    ub = 0
    for c in range(4):
        comp_wait(a, c)
        for pp in range(2):
            if c > 0:
                x = c - 1
                u = U[ub % 2]
                ub += 1
                for r in range(4):
                    a(f"v_mfma_f32_{'4x4x4_16b' if M4 else '16x16x16'}_bf16 {q(u+4*r)}, {d(vID)}, {d(Vq(x,r)+2*pp)}, 0")
                for r in range(4):
                    for j in range(4):
                        a(f"v_mul_f32 v{u+4*r+j}, v{u+4*r+j}, v{MVV0+4*(4*pp+j)+r}")
            for p in (2 * pp, 2 * pp + 1):
                C = CD[it % 2] if c else WRING + 4 * p
                o0, o1 = Oq(c, 0) + p, Oq(c, 1) + p
                k16, kM = (f"v{v16}", f"v{vMASK}") if VC else ("16", f"s{sM}")
                a(f"v_lshlrev_b32 v{C}, {k16}, v{o0}")
                a(f"v_lshlrev_b32 v{C+1}, {k16}, v{o1}")
                a(f"v_and_b32 v{C+2}, {kM}, v{o0}")
                a(f"v_and_b32 v{C+3}, {kM}, v{o1}")
                if c == 0:
                    a(f"v_mfma_f32_16x16x32_bf16 {q(C)}, {q(AS)}, {q(MS0+4*p)}, {q(C)}")
                else:
                    B = BB[it % 2]
                    j0 = 2 * (p % 2)
                    a(f"v_cvt_pk_bf16_f32 v{B}, v{u+j0}, v{u+4+j0}")
                    a(f"v_cvt_pk_bf16_f32 v{B+1}, v{u+8+j0}, v{u+12+j0}")
                    a(f"v_cvt_pk_bf16_f32 v{B+2}, v{u+j0+1}, v{u+4+j0+1}")
                    a(f"v_cvt_pk_bf16_f32 v{B+3}, v{u+8+j0+1}, v{u+12+j0+1}")
                    a(f"v_mfma_f32_16x16x32_bf16 {q(C)}, {q(AS+4+4*x)}, {q(MVR0+4*p)}, {q(C)}")
                    a(f"v_mfma_f32_16x16x32_bf16 {q(C)}, {q(AS)}, {q(B)}, {q(C)}")
                a(f"v_cvt_pk_bf16_f32 v{o0}, v{C}, v{C+2}")
                a(f"v_cvt_pk_bf16_f32 v{o1}, v{C+1}, v{C+3}")
                it += 1
        emit_comp_stores(a, c)
    return a


def gen_k2(do_sched=True, stamps=False, memonly=False, w0=8, w1=16, nt=False, ntv=False, nto=False, nomem=False,
           prio=1, touch=0, vspread=1, ntst=False, usel=True, grpn=4, ldsl=110, stage=True, exp=0, ownin=False, fine=False, m4=True, vc=True, tnt=False, hq=0, b3in=True, split=6):
    a = Asm()
    global NT, NTV, NTO, VSPREAD, GRPN, OWNIN, M4, VC
    M4, VC = m4, vc
    global HQ, SPLIT
    HQ = hq
    SPLIT = split
    OWNIN = ownin
    GRPN = grpn
    VSPREAD = vspread
    NT = (" " + nt) if isinstance(nt, str) else (" nt" if nt else "")
    NTV = " nt" if ntv else ""
    NTO = " nt" if nto else ""

    def stamp():
        if not stamps:
            return
        a("s_memtime s[10:11]")
        a("s_waitcnt lgkmcnt(0)")
        a("v_mov_b32 v252, s10")
        a(f"v_mov_b32 v253, s{sST}")
        a("ds_write_b32 v253, v252")
        a(f"s_add_u32 s{sST}, s{sST}, 4")

    def rstamp(idx):
        if not stamps:
            return
        a("s_memrealtime s[10:11]")
        a("s_waitcnt lgkmcnt(0)")
        a("v_mov_b32 v252, s10")
        a(f"v_mov_b32 v253, s{sST+1}")
        a(f"ds_write_b32 v253, v252 offset:{4*idx}")

    a.label("message_kernel")
    a("s_cmp_ge_u32 s2, 256")
    a("s_cbranch_scc1 K2_END")
    if stamps:
        a("v_lshrrev_b32 v252, 6, v0")
        a(f"v_readfirstlane_b32 s{sST}, v252")
        a(f"s_lshl_b32 s{sST}, s{sST}, 7")
        a(f"s_add_u32 s{sST}, s{sST}, {L_STAMP}")
        a(f"s_mov_b32 s{sST+1}, s{sST}")
        a("v_and_b32 v252, 31, v0")
        a("v_lshlrev_b32 v252, 2, v252")
        a(f"v_add_u32 v252, s{sST}, v252")
        a("v_mov_b32 v253, 0")
        a("ds_write_b32 v252, v253")
        stamp()
        rstamp(30)
    a(f"s_load_dwordx2 s[{SRD_WS}:{SRD_WS+1}], s[0:1], 80")
    a("s_load_dwordx2 s[4:5], s[0:1], 0")
    a("s_load_dwordx2 s[6:7], s[0:1], 64")
    a("v_lshrrev_b32 v32, 6, v0")
    a(f"v_mov_b32 v{vOOB}, 0x40000000")
    a(f"v_readfirstlane_b32 s{sWAVE}, v32")
    a(f"s_mov_b32 s{SRD_WS+2}, {WS_SIZE}")
    a(f"s_mov_b32 s{SRD_WS+3}, 0x00020000")

    def late_setup():
        a(f"s_mul_i32 s{sBASE}, s2, 3125")
        a(f"s_add_u32 s{sNB}, s{sBASE}, {3125+31}")
        a(f"s_add_u32 s{sBASE}, s{sBASE}, 31")
        a(f"s_lshr_b32 s{sBASE}, s{sBASE}, 5")
        a(f"s_lshr_b32 s{sNB}, s{sNB}, 5")
        a(f"s_sub_u32 s{sNB}, s{sNB}, s{sBASE}")
        a(f"s_sub_u32 s{sL0}, s{sNB}, {NL}")
        a(f"s_mov_b32 s{sJ0}, 0")
        a(f"s_mov_b32 s{sR}, {RMAX}")
        a(f"s_mov_b32 s{sROUND}, 0")
        a(f"s_mov_b32 s8, s{SRD_WS}")
        a(f"s_mov_b32 s9, s{SRD_WS+1}")

    def desc_addr():
        a("v_lshrrev_b32 v33, 1, v0")
        a("v_lshlrev_b32 v33, 10, v33")
        a(f"v_cmp_gt_u32 vcc, {2*G}, v0")
        a(f"v_cndmask_b32 v33, v{vOOB}, v33, vcc")
        a(f"s_lshl_b32 s{sT0}, s2, 2")
        a(f"s_add_u32 s{sT0}, s{sT0}, {WS_DESC}")

    def desc_load():
        a(f"buffer_load_dword v34, v33, s[{SRD_WS}:{SRD_WS+3}], s{sT0} offen")

    def zero_counters():
        a("v_lshlrev_b32 v36, 2, v0")
        a(f"v_add_u32 v36, {L_CNT}, v36")
        a("v_mov_b32 v37, 0")
        a(f"v_mov_b32 v38, {L_FLAG}")
        a("v_cmp_gt_u32 vcc, 0x80, v0")
        a(f"s_and_saveexec_b64 s[{sMK}:{sMK+1}], vcc")
        a("ds_write_b32 v36, v37")
        a("ds_write_b32 v38, v37")
        a("ds_write_b32 v38, v37 offset:8")
        a("s_mov_b64 exec, -1")

    def wdma(i0, i1):
        for i in range(i0, i1):
            a(f"buffer_load_dwordx4 v{vWB0}, s[{SRD_WS}:{SRD_WS+3}], m0 offen lds")
            a("s_add_u32 m0, m0, 0x1000")
            a(f"s_cmp_ge_u32 m0, {100*1024}")
            a(f"s_cselect_b32 m0, s{sDMA}, m0")

    desc_addr()
    a(f"v_and_b32 v{vLANE}, 63, v0")
    a(f"v_lshlrev_b32 v{vWB0}, 4, v{vLANE}")
    a(f"s_sub_u32 s{sT1}, s{sWAVE}, 4")
    a(f"s_lshl_b32 s{sDMA}, s{sT1}, 10")
    a(f"s_cmp_ge_u32 s{sWAVE}, 4")
    a.ins.append(Ins("s_cbranch_scc1 K2_W0 ; NODRAIN"))
    a("s_waitcnt lgkmcnt(0)")
    desc_load()
    a(f"s_mov_b32 s{sSIG}, 0")
    a("s_branch K2_INIT")
    a.label("K2_W0")
    a(f"s_lshr_b32 s{tN0}, s2, 3")
    a(f"s_mul_i32 s{tN0}, s{tN0}, 25")
    a(f"s_lshr_b32 s{tN0}, s{tN0}, 5")
    a(f"s_lshl_b32 s{tN0}, s{tN0}, 2")
    a(f"s_add_u32 s{tN0}, s{tN0}, s{sT1}")
    a(f"s_lshl_b32 m0, s{tN0}, 10")
    a("s_waitcnt lgkmcnt(0)")
    wdma(0, w0)
    a(f"s_mov_b32 s{sSIG}, 1")
    a.label("K2_INIT")
    late_setup()
    zero_counters()
    srd(a, SRD_SV, 4, N * 1024)
    srd(a, SRD_OUT, 6, N * 1024)
    srd(a, SRD_OWN, 4, N * 1024)
    a(f"s_add_u32 s{SRD_H}, s8, {WS_H}")
    a(f"s_addc_u32 s{SRD_H+1}, s9, 0")
    a(f"s_mov_b32 s{SRD_H+2}, {N*256}")
    a(f"s_mov_b32 s{SRD_H+3}, 0x00020000")
    if nomem:
        for r in (SRD_H, SRD_SV, SRD_OUT, SRD_OWN):
            a(f"s_mov_b32 s{r+2}, 0")
    a(f"v_add_u32 v{vWB1}, 0x10000, v{vWB0}")
    a(f"v_and_b32 v{vE}, 15, v{vLANE}")
    a(f"v_lshrrev_b32 v35, 4, v{vLANE}")
    a(f"v_lshlrev_b32 v{vWR}, 3, v{vE}")
    a(f"v_add_u32 v{vWR}, {L_WR}, v{vWR}")
    a(f"v_lshlrev_b32 v{vQ4}, 2, v35")
    a(f"v_lshlrev_b32 v{vQ16}, 4, v35")
    a(f"v_lshlrev_b32 v{vN16}, 4, v{vE}")
    a(f"v_lshlrev_b32 v{vRECE}, 5, v{vE}")
    a(f"v_add_u32 v{vRECE}, {L_REC}, v{vRECE}")
    a(f"v_lshlrev_b32 v{vRECQ}, 7, v35")
    a(f"v_add_u32 v{vRECQ}, {L_REC}, v{vRECQ}")
    a("v_and_b32 v36, 1, v35")
    a(f"v_lshl_add_u32 v{vRB}, v36, 3, v{vRECE}")
    a(f"v_add_u32 v{vRB}, 16, v{vRB}")
    a(f"v_lshlrev_b32 v{v2Q}, 1, v35")
    a(f"v_lshl_add_u32 v{vOWN0}, v35, 11, v{vN16}")
    a(f"v_lshrrev_b32 v36, 2, v{vE}")
    a(f"v_and_b32 v37, 1, v{vE}")
    a("v_lshl_add_u32 v39, v36, 1, v37")
    a(f"v_and_b32 v40, 2, v{vE}")
    a("v_cmp_eq_u32 vcc, 0, v40")
    a(f"v_cndmask_b32 v{vTA}, -1, v39, vcc")
    a(f"v_cndmask_b32_e64 v{vTB}, v39, -1, vcc")
    a("v_lshlrev_b32 v37, 4, v37")
    a("v_mov_b32 v41, 0x3f80")
    a("v_lshlrev_b32 v41, v37, v41")
    if not M4:
        a(f"v_cmp_eq_u32_e64 s[{sMK}:{sMK+1}], v36, v35")
        a(f"v_cndmask_b32_e64 v41, 0, v41, s[{sMK}:{sMK+1}]")
    a(f"v_mov_b32 v{vMASK}, 0xffff0000")
    a(f"v_mov_b32 v{v16}, 16")
    a(f"v_cndmask_b32 v{vID}, 0, v41, vcc")
    a(f"v_cndmask_b32_e64 v{vID+1}, v41, 0, vcc")
    a(f"v_cmp_gt_u32_e64 s[{sQLT2}:{sQLT2+1}], 32, v{vLANE}")
    a(f"s_mov_b32 s{sM}, 0xffff0000")
    a(f"s_mov_b32 s{sLO}, 0xffff")
    a(f"s_mov_b32 s{sONE2}, 0x3f803f80")
    a(f"s_mov_b32 s{sSELL}, 0x05040100")
    a(f"s_mov_b32 s{sSELH}, 0x07060302")
    a(f"s_cmp_lt_u32 s{sWAVE}, 4")
    a("s_cbranch_scc1 K2_RECSIDE")
    a("s_barrier")
    wdma(w0, w1)
    if touch:
        a(f"s_lshl_b32 s{sT0}, s{sBASE}, 10")
        a(f"s_lshl_b32 s{sT2}, s{sDMA}, 3")
        a(f"s_add_u32 s{sT0}, s{sT0}, s{sT2}")
        a(f"v_lshlrev_b32 v200, 7, v{vLANE}")
        for i in range(touch):
            a(f"buffer_load_dword v204, v200, s[{SRD_SV}:{SRD_SV+3}], s{sT0} offen{' nt' if tnt else ''}")
            a(f"s_add_u32 s{sT0}, s{sT0}, 0x8000")
    a("s_barrier")
    wdma(w1, 25)
    a("s_branch K2_AFTER_B1")
    a.label("K2_ROUND")
    a(f"s_cmp_lt_u32 s{sWAVE}, 4")
    a("s_cbranch_scc1 K2_RECSIDE")
    a("s_barrier")
    a("s_branch K2_AFTER_REC")
    a.label("K2_RECSIDE")
    REC = 64
    RK = 40
    AD = 48
    a("v_and_b32 v37, 1, v0")
    a("v_lshrrev_b32 v39, 1, v0")
    a(f"v_mul_u32_u24 v39, {EPG}, v39")
    a(f"s_lshl_b32 s{sT0}, s{sJ0}, 1")
    a(f"v_add3_u32 v39, v39, v37, s{sT0}")
    a(f"s_mov_b32 s{sT0}, {WS_REC}")
    a("s_waitcnt vmcnt(0)")
    stamp()
    a("v_and_b32 v35, 0xffff, v34")
    a("v_lshrrev_b32 v36, 16, v34")
    a("v_add_lshl_u32 v39, v39, v35, 5")
    a("v_sub_u32 v36, v36, v37")
    a("v_add_u32 v36, 1, v36")
    a("v_lshrrev_b32 v36, 1, v36")
    a(f"v_subrev_u32 v36, s{sJ0}, v36")
    a("v_max_i32 v36, 0, v36")
    a(f"v_cmp_lt_u32_e64 s[{sMK}:{sMK+1}], s{sR}, v36")
    a(f"v_min_u32 v36, s{sR}, v36")
    for j in range(RMAX):
        a(f"v_cmp_lt_u32 vcc, {j}, v36")
        a("s_and_b64 exec, exec, vcc")
        a("s_cbranch_execz K2_REC_ISSUED")
        a(f"buffer_load_dwordx4 {q(REC+8*j)}, v39, s[{SRD_WS}:{SRD_WS+3}], s{sT0} offen offset:{64*j}")
        a(f"buffer_load_dwordx4 {q(REC+8*j+4)}, v39, s[{SRD_WS}:{SRD_WS+3}], s{sT0} offen offset:{64*j+16}")
    a.label("K2_REC_ISSUED")
    a("s_mov_b64 exec, -1")
    a("s_barrier")
    a("v_mov_b32 v37, 1")
    a(f"v_mov_b32 v38, {L_FLAG}")
    a(f"s_mov_b64 exec, s[{sMK}:{sMK+1}]")
    a("ds_write_b32 v38, v37")
    a("s_mov_b64 exec, -1")
    a(f"s_mov_b32 s{sT0}, {L_CNT}")
    a("s_waitcnt vmcnt(0) lgkmcnt(0)")
    stamp()
    for j in range(RMAX):
        a(f"v_cmp_lt_u32 vcc, {j}, v36")
        a("s_and_b64 exec, exec, vcc")
        a("s_cbranch_execz K2_AFTER_REC")
        a(f"v_lshl_add_u32 v{AD+j}, v{REC+8*j+1}, 2, s{sT0}")
        a(f"ds_add_rtn_u32 v{RK+j}, v{AD+j}, v37 ; NOWAIT")
    a.label("K2_AFTER_REC")
    a("s_mov_b64 exec, -1")
    a("s_waitcnt lgkmcnt(0)")
    a("s_barrier")
    a.label("K2_AFTER_B1")
    stamp()
    SC = 176
    a(f"v_lshlrev_b32 v{SC}, 3, v{vLANE}")
    a(f"v_add_u32 v{SC}, {L_CNT}, v{SC}")
    a(f"v_mov_b32 v{SC+1}, {L_FLAG}")
    a(f"ds_read_b32 v{SC+1}, v{SC+1}")
    a(f"ds_read_b64 v[{SC+2}:{SC+3}], v{SC}")
    a(f"v_add_u32 v{SC+4}, v{SC+2}, v{SC+3}")
    a(f"v_mov_b32 v{SC+5}, v{SC+4}")
    wave_scan(a, SC + 5)
    a(f"v_sub_u32 v{SC+6}, v{SC+5}, v{SC+4}")
    a(f"v_add_u32 v{SC+7}, v{SC+6}, v{SC+2}")
    a(f"ds_write_b64 v{SC}, v[{SC+6}:{SC+7}] offset:{L_P-L_CNT} ; NOWAIT")
    a(f"v_readlane_b32 s{sTOT}, v{SC+5}, 63")
    a(f"v_readfirstlane_b32 s{sMORE}, v{SC+1}")
    a(f"v_lshl_or_b32 v{vP}, v{SC+7}, 16, v{SC+6}")
    a(f"s_cmp_le_u32 s{sTOT}, {CAP}")
    a("s_cbranch_scc1 K2_FITS")
    a(f"s_mov_b32 s{sR}, {RSLOW}")
    a("s_waitcnt lgkmcnt(0)")
    a("s_barrier")
    zero_counters()
    a("s_branch K2_ROUND")
    a.label("K2_FITS")
    a(f"s_cmp_ge_u32 s{sWAVE}, 4")
    a("s_cbranch_scc1 K2_PREAD")
    for j in range(RMAX):
        a(f"v_cmp_lt_u32 vcc, {j}, v36")
        a("s_and_b64 exec, exec, vcc")
        a("s_cbranch_execz K2_PREAD")
        a(f"ds_read_b32 v{AD+j}, v{AD+j} offset:{L_P-L_CNT} ; NOWAIT")
    a.label("K2_PREAD")
    a("s_mov_b64 exec, -1")
    for i in range(1, 5):
        a(f"ds_read_b64 v[{SC+6+2*i}:{SC+7+2*i}], v{SC} offset:{L_P-L_CNT+8*i} ; NOWAIT")
    a("s_waitcnt lgkmcnt(0)")
    a(f"s_cmp_ge_u32 s{sWAVE}, 4")
    a("s_cbranch_scc1 K2_SCATTERED")
    for j in range(RMAX):
        a(f"v_cmp_lt_u32 vcc, {j}, v36")
        a("s_and_b64 exec, exec, vcc")
        a("s_cbranch_execz K2_SCATTERED")
        a(f"v_add_lshl_u32 v{AD+j}, v{AD+j}, v{RK+j}, 5")
        a(f"v_add_u32 v{AD+j}, {L_REC}, v{AD+j}")
        a(f"ds_write_b128 v{AD+j}, {q(REC+8*j)} ; NOWAIT")
        a(f"ds_write_b128 v{AD+j}, {q(REC+8*j+4)} offset:16 ; NOWAIT")
    a.label("K2_SCATTERED")
    a("s_mov_b64 exec, -1")
    PV = SC + 6
    for h in range(2):
        lim, cnt = SC + 20 + 2 * h, SC + 21 + 2 * h
        a(f"v_add_u32 v{lim}, 16, v{PV+h}")
        a(f"v_lshl_add_u32 v{cnt}, v{vLANE}, 1, {h+1}")
        for k in range(2, 9):
            a(f"v_cmp_le_u32_e64 s[{sMK+2*k}:{sMK+2*k+1}], v{PV+h+k}, v{lim}")
        for k in range(2, 9):
            a(f"v_addc_co_u32_e64 v{cnt}, vcc, 0, v{cnt}, s[{sMK+2*k}:{sMK+2*k+1}]")
        a(f"v_min_u32 v{cnt}, s{sNB}, v{cnt}")
    a(f"v_lshl_or_b32 v{vNEXT}, v{SC+23}, 8, v{SC+21}")
    a(f"s_mov_b32 s{sPOS}, 0")
    a(f"s_mov_b32 s{cN0}, s{sWAVE}")
    a.label("K2_WALK0")
    a(f"s_cmp_eq_u32 s{cN0}, 0")
    a("s_cbranch_scc1 K2_WALK0_DONE")
    advance(a)
    a(f"s_sub_u32 s{cN0}, s{cN0}, 1")
    a("s_branch K2_WALK0")
    a.label("K2_WALK0_DONE")
    next_item(a, 0, allow_cont=False)
    a(f"s_mov_b32 s{sFIRST}, 1")
    a(f"s_cmp_lg_u32 s{sWAVE}, 7")
    a("s_cbranch_scc1 K2_NOPUB")
    a(f"v_mov_b32 v{SC}, {L_FLAG+12}")
    a(f"v_mov_b32 v{SC+1}, s{sPOS}")
    a(f"ds_write_b32 v{SC}, v{SC+1}")
    a.label("K2_NOPUB")
    stamp()
    a("s_waitcnt lgkmcnt(0)")
    a("s_barrier")
    stamp()
    mk = MaskAlloc()
    emit_h_addr(a, mk, vHA)
    emit_h_loads(a)
    def b3_code(tag, younger=12):
        a(f"s_waitcnt vmcnt({younger + (touch if w1 == 25 else 0)})")
        a("s_barrier")
        a(f"s_mov_b32 s{sB3}, 0")
        a(f"s_cmp_eq_u32 s{sSIG}, 0")
        a(f"s_cbranch_scc1 K2_NOSTG{tag}")
        a(f"s_add_u32 s{sT0}, s{sBASE}, s{sL0}")
        a(f"s_lshl_b32 s{sT0}, s{sT0}, 10")
        a(f"s_add_u32 s{sT0}, s{sT0}, s{sDMA}")
        a(f"s_add_u32 m0, s{sDMA}, {L_OWN}")
        for i in range(NL // 4):
            a(f"buffer_load_dwordx4 v{vWB0}, s[{SRD_SV}:{SRD_SV+3}], s{sT0} offen lds")
            a("s_add_u32 m0, m0, 0x1000")
            a(f"s_add_u32 s{sT0}, s{sT0}, 0x1000")
        if tag == "A":
            a(f"s_add_u32 s{sHW}, s{sHW}, 1")
        else:
            a(f"s_mov_b32 s{sFIRST}, 0")
        a.label(f"K2_NOSTG{tag}")

    if b3in:
        a(f"s_mov_b32 s{sB3}, 1")
    else:
        b3_code("P", 4)
    a.label("K2_LOOP")
    stamp()
    for cs, ns in ((cN0, nN0), (cNN, nNN), (cEB, nEB), (cNE, nNE), (cE1, nE1), (cOFF, nOFF), (sCE32, sNE32),
                   (SRD_OWN, nSRC), (SRD_OWN + 1, nSRC + 1)):
        a(f"s_mov_b32 s{cs}, s{ns}")
    a(f"s_cmp_eq_u32 s{cNN}, 0")
    a("s_cbranch_scc1 K2_DONE")
    a(f"v_mov_b32 v{T[18]}, {L_FLAG+8}")
    a(f"v_add_u32 v{T[16]}, s{sCE32}, v{vRB}")
    a(f"v_add_u32 v{T[17]}, s{sCE32}, v{vRECQ}")
    a(f"ds_read_b64 v[{T[24]}:{T[25]}], v{T[18]}")
    for r in range(4):
        a(f"ds_read_b128 {q(T[4*r])}, v{T[17]} offset:{32*r}")
    a(f"ds_read_b64 {d(vRBOP)}, v{T[16]}")
    mk = MaskAlloc()
    m0_, m1_ = mk(), mk()
    a(f"v_cmp_gt_u32_e64 {m0_}, s{cNN}, v{v2Q}")
    a(f"v_add_u32 v{T[30]}, 1, v{v2Q}")
    a(f"v_add_u32 v{T[31]}, 0x400, v{vOWN0}")
    a(f"v_cmp_gt_u32_e64 {m1_}, s{cNN}, v{T[30]}")
    a(f"v_cndmask_b32_e64 v{vOA0}, v{vOOB}, v{vOWN0}, {m0_}")
    ms = []
    for r in range(4):
        m = mk()
        ms.append(m)
        a(f"v_add_u32 v{T[20+r]}, {r}, v{vQ4}")
        a(f"v_cmp_gt_u32_e64 {m}, s{cNE}, v{T[20+r]}")
    a(f"v_cndmask_b32_e64 v{vOA1}, v{vOOB}, v{T[31]}, {m1_}")
    a(f"s_sub_u32 s{sT0}, s{cN0}, s{sL0}")
    a(f"s_lshl_b32 s{sT0}, s{sT0}, 10")
    a(f"s_add_u32 s{sT0}, s{sT0}, {L_OWN}")
    a(f"v_add_u32 v{T[19]}, s{sT0}, v{vOWN0}")
    a(f"s_xor_b32 s{sHW}, s{sFIRST}, 1")
    a(f"s_mov_b32 s{sFIRST}, 0")
    a(f"v_readfirstlane_b32 s{sT0}, v{T[24]}")
    a(f"v_readfirstlane_b32 s{tPOS}, v{T[25]}")
    for r in range(4):
        a(f"v_add_u32 v{vVA+r}, v{T[4*r]}, v{vN16}")
        a(f"v_cndmask_b32_e64 v{vVA+r}, v{vOOB}, v{vVA+r}, {ms[r]}")
        a(f"v_subrev_u32 v{T[4*r+1]}, s{cN0}, v{T[4*r+1]}")
        a(f"v_cndmask_b32_e64 v{T[4*r+1]}, -2, v{T[4*r+1]}, {ms[r]}")
    a("s_waitcnt lgkmcnt(0)")
    if exp == 1:
        a("s_waitcnt vmcnt(0)")
    a(f"s_cmp_eq_u32 s{sT0}, {4 if usel else 77}")
    a(f"s_cselect_b32 s{sT0}, s{nLDS}, 0")
    if ownin:
        a("s_branch K2_OWN_DONE")
    a(f"s_cmp_eq_u32 s{sT0}, 0")
    a("s_cbranch_scc1 K2_OWN_GLOBAL")
    for c in range(4):
        for h in range(2):
            a(f"ds_read_b128 {q(Oq(c,h))}, v{T[19]} offset:{1024*h+256*c} ; NOWAIT")
    a("s_branch K2_OWN_DONE")
    a.label("K2_OWN_GLOBAL")
    for c in range(4):
        for h, va in ((0, vOA0), (1, vOA1)):
            a(f"buffer_load_dwordx4 {q(Oq(c,h))}, v{va}, s[{SRD_OWN}:{SRD_OWN+3}], s{cOFF} offen offset:{256*c}{NTO if c == 0 else ''}")
    a(f"s_add_u32 s{sHW}, s{sHW}, 1")
    a.label("K2_OWN_DONE")
    if b3in:
        a(f"s_cmp_eq_u32 s{sB3}, 0")
        a("s_cbranch_scc1 K2_NOB3")
        b3_code("A")
        a.label("K2_NOB3")
    stamp()
    a(f"s_cmp_eq_u32 s{sHW}, 1")
    a("s_cbranch_scc1 K2_HW1")
    a(f"s_cmp_eq_u32 s{sHW}, 2")
    a("s_cbranch_scc1 K2_HW2")
    a("s_waitcnt vmcnt(0)")
    a.label("K2_HW1")
    a("s_waitcnt vmcnt(8)")
    a.label("K2_HW2")
    a("s_waitcnt vmcnt(16) lgkmcnt(0)")
    stamp()
    a(f"s_cmp_eq_u32 s{cNE}, 0")
    a("s_cbranch_scc1 K2_COPY")
    if not memonly:
        SPLITS.clear()
        full = item_block().ins
        b0, t0 = schedule(full[:SPLITS[0]], lds_lat=ldsl)
        blk, t = schedule(full[SPLITS[0]:], lds_lat=ldsl)
        print("item block: %d + %d instructions, modelled %d + %d cycles" % (len(b0), len(blk), t0, t))
        i1 = next(i for i, x in enumerate(blk) if "vmcnt(16)" in x.text)
        blk = blk[:i1] + [Ins("s_setprio 0")] + blk[i1:]
        a("s_setprio 2")
        a.extend(b0)
        claim(a, "", MVV0)
        i1 = next(i for i, x in enumerate(blk) if "vmcnt(16)" in x.text)
        a.extend(blk[:i1 + 1])
        a(f"s_cmp_eq_u32 s{sSIG}, 0")
        a("s_cbranch_scc1 K2_NOSIG")
        a(f"v_mov_b32 v{PH0}, {L_FLAG+8}")
        a(f"v_mov_b32 v{PH0+1}, 1")
        a("s_mov_b64 exec, 1")
        a(f"ds_add_u32 v{PH0}, v{PH0+1}")
        a("s_mov_b64 exec, -1")
        a(f"s_mov_b32 s{sSIG}, 0")
        a.label("K2_NOSIG")
        a.extend(blk[i1 + 1:])
        a("s_branch K2_LOOP")
    a.label("K2_COPY")
    a.extend(item_block(memonly=True).ins)
    a("s_branch K2_LOOP")
    a.label("K2_DONE")
    if b3in:
        a(f"s_cmp_eq_u32 s{sB3}, 0")
        a("s_cbranch_scc1 K2_DONE2")
        a("s_waitcnt vmcnt(0)")
        a("s_barrier")
        a(f"s_mov_b32 s{sB3}, 0")
        a.label("K2_DONE2")
    if stamps:
        a("s_waitcnt vmcnt(0)")
        stamp()
        rstamp(31)
        a(f"v_lshlrev_b32 v252, 2, v{vLANE}")
        a(f"v_add_u32 v253, s{sST+1}, v252")
        a("ds_read_b32 v254, v253")
        a("s_lshl_b32 s10, s2, 3")
        a(f"s_add_u32 s10, s10, s{sWAVE}")
        a("s_lshl_b32 s10, s10, 7")
        a(f"s_add_u32 s10, s10, {WS_STAMP2}")
        a(f"s_mov_b64 exec, 0xffffffff")
        a(f"buffer_store_dword v254, v252, s[{SRD_WS}:{SRD_WS+3}], s10 offen")
        a("s_mov_b64 exec, -1")
    a(f"s_cmp_eq_u32 s{sMORE}, 0")
    a("s_cbranch_scc1 K2_END")
    a(f"s_add_u32 s{sJ0}, s{sJ0}, s{sR}")
    a(f"s_mov_b32 s{sROUND}, 1")
    a(f"s_mov_b32 s{sSIG}, 0")
    a("s_waitcnt vmcnt(0)")
    desc_addr()
    desc_load()
    a("s_waitcnt vmcnt(0)")
    a("s_barrier")
    zero_counters()
    a("s_branch K2_ROUND")
    a.label("K2_END")
    a("s_endpgm")
    return a
```

```python
from asmlib import Asm, Ins, schedule

N = 25000
E = 400000
G = 125
EPG = 3200
BIN_MAGIC = 43980480

WS_W2 = 0
WS_WR = 98304
WS_WEND = 101376
WS_DESC = 0x40000
WS_REC = 0x100000
WS_H = 0xE00000
WS_STAMP1 = 0x1500000
WS_STAMP2 = 0x1600000
WS_SIZE = 0x2000000

K1_CNT = 150528
K1_P = K1_CNT + 1024
K1_LDS = K1_P + 1024
K1_STAMP = K1_LDS


def srd(a, d, base, size):
    a(f"s_mov_b32 s{d}, s{base}")
    a(f"s_mov_b32 s{d+1}, s{base+1}")
    a(f"s_mov_b32 s{d+2}, {size}")
    a(f"s_mov_b32 s{d+3}, 0x00020000")


def wave_scan(a, v):
    for sh in (1, 2, 4, 8):
        a(f"v_add_u32_dpp v{v}, v{v}, v{v} row_shr:{sh} row_mask:0xf bank_mask:0xf bound_ctrl:0")
    a(f"v_add_u32_dpp v{v}, v{v}, v{v} row_bcast:15 row_mask:0xa bank_mask:0xf")
    a(f"v_add_u32_dpp v{v}, v{v}, v{v} row_bcast:31 row_mask:0xc bank_mask:0xf")


def q(b):
    return f"v[{b}:{b+3}]"


def gen_k1(stamps=False, pf=2, early_s=False, rot=True, nte=False, ntp=False, nts=False, ntw=False, st1="", sth="", pfv=0, scan1=False, te=False, th=False, ua=0, cpf=0, cp0=0, tlbw=0, pfrows=98):
    a = Asm()
    NTE = " nt" if nte else ""
    NTP = " nt" if ntp else ""
    NTS = " nt" if nts else ""
    NTW = " nt" if ntw else ""

    def touch():
        if not pf:
            return
        a("s_mul_i32 s92, s2, 3125")
        a("s_add_u32 s92, s92, 31")
        a("s_lshr_b32 s92, s92, 5")
        a("s_lshl_b32 s92, s92, 10")
        a("v_lshlrev_b32 v122, 7, v0")
        a(f"v_cmp_gt_u32 vcc, {8*pfrows}, v0")
        a("v_mov_b32 v123, 0x40000000")
        a("v_cndmask_b32 v122, v123, v122, vcc")
        a("buffer_load_dword v120, v122, s[84:87], s92 offen" + (" nt" if pf == 1 else ""))

    def stamp():
        if not stamps:
            return
        a("s_mov_b64 s[76:77], exec")
        a("s_mov_b64 exec, -1")
        a("s_memtime s[74:75]")
        a("s_waitcnt lgkmcnt(0)")
        a("v_mov_b32 v124, s74")
        a("v_mov_b32 v125, s78")
        a("ds_write_b32 v125, v124")
        a("s_add_u32 s78, s78, 4")
        a("s_mov_b64 exec, s[76:77]")

    a.label("edge_bin_kernel")
    a("s_cmp_ge_u32 s2, 256")
    a("s_cbranch_scc1 K1_END")
    if stamps:
        a("v_lshrrev_b32 v124, 6, v0")
        a("v_readfirstlane_b32 s78, v124")
        a("s_lshl_b32 s78, s78, 6")
        a(f"s_add_u32 s78, s78, {K1_STAMP}")
        a("s_mov_b32 s79, s78")
        a("v_and_b32 v124, 15, v0")
        a("v_lshlrev_b32 v124, 2, v124")
        a("v_add_u32 v124, s78, v124")
        a("v_mov_b32 v125, 0")
        a("ds_write_b32 v124, v125")
        stamp()
    a("s_load_dwordx2 s[24:25], s[0:1], 16")
    a("s_load_dwordx2 s[28:29], s[0:1], 24")
    a("s_load_dwordx2 s[20:21], s[0:1], 8")
    a("s_load_dwordx2 s[36:37], s[0:1], 40")
    a("s_load_dwordx2 s[84:85], s[0:1], 0")
    a("v_lshrrev_b32 v1, 6, v0")
    a("v_and_b32 v6, 63, v0")
    a("s_lshr_b32 s53, s2, 4")
    a("v_readfirstlane_b32 s3, v1")
    a("s_lshl_b32 s53, s53, 3")
    a("s_and_b32 s54, s2, 7")
    a("s_or_b32 s73, s53, s54")
    a("v_lshlrev_b32 v9, 4, v6")
    a("s_mov_b32 s27, 0x00020000")

    def rest_setup(tag):
        a("s_load_dwordx2 s[32:33], s[0:1], 80")
        a("s_load_dwordx2 s[10:11], s[0:1], 32")
        a("s_load_dwordx2 s[40:41], s[0:1], 48")
        a("s_load_dwordx2 s[44:45], s[0:1], 56")
        a("s_mov_b32 s52, 0xffff0000")
        for d_, size in ((84, N * 1024), (32, WS_SIZE), (40, 128 * 384 * 2), (44, 4 * 384 * 2), (88, N * 256)):
            a(f"s_mov_b32 s{d_+2}, {size}")
            a(f"s_mov_b32 s{d_+3}, s27")
        a("s_waitcnt lgkmcnt(0)")
        a(f"s_add_u32 s88, s32, {WS_H}")
        a("s_addc_u32 s89, s33, 0")

    def code_prefetch(tag):
        if not cp0:
            return
        a("s_getpc_b64 s[60:61]")
        a.ins.append(Ins(f"K1_PC{tag}: ; SOFT"))
        a(f"s_sub_u32 s60, s60, K1_PC{tag}-edge_bin_kernel")
        a("s_subb_u32 s61, s61, 0")
        a("v_lshlrev_b32 v12, 7, v0")
        a(f"v_min_u32 v12, K2_END-edge_bin_kernel, v12")
        a("v_cmp_gt_u32 vcc, 0xc0, v0")
        a("s_and_b64 exec, exec, vcc")
        a("global_load_dword v121, v12, s[60:61]")
        a("s_mov_b64 exec, -1")

    a("s_bitcmp1_b32 s2, 3 ; KEEP")
    a.ins.append(Ins("s_cbranch_scc1 K1_HROLE ; NODRAIN"))
    a(f"s_cmp_ge_u32 s73, {G}")
    a.ins.append(Ins("s_cbranch_scc1 K1_WEIGHTS ; NODRAIN"))
    a(f"s_mov_b32 s26, {E*4}")
    a("s_mov_b32 s30, s26")
    a("s_mov_b32 s31, s27")
    a(f"s_mul_i32 s53, s73, {EPG*4}")
    a("v_lshlrev_b32 v7, 4, v0")
    a("v_cmp_gt_u32 vcc, 800, v0")
    a("v_mov_b32 v8, 0x40000000")
    a("s_mov_b64 s[50:51], vcc")
    a("v_cndmask_b32 v7, v8, v7, vcc")
    a(f"s_mov_b32 s22, {N*6}")
    a("s_mov_b32 s23, s27")
    a("s_waitcnt lgkmcnt(0)")
    stamp()
    if te:
        a("s_cmp_ge_u32 s3, 4")
        a("s_cbranch_scc1 K1_NOTOUCH")
        a("v_and_b32 v10, 0x7f, v0")
        a("v_lshlrev_b32 v10, 7, v10")
        a(f"v_cmp_gt_u32 vcc, {EPG*4}, v10")
        a("v_cndmask_b32 v10, v8, v10, vcc")
        a("s_cmp_ge_u32 s3, 2")
        a("s_cbranch_scc1 K1_TOUCHD")
        a("buffer_load_dword v120, v10, s[24:27], s53 offen" + NTE)
        a("s_branch K1_NOTOUCH")
        a.label("K1_TOUCHD")
        a("buffer_load_dword v120, v10, s[28:31], s53 offen" + NTE)
        a.label("K1_NOTOUCH")
    a("buffer_load_dwordx4 v[56:59], v7, s[24:27], s53 offen" + NTE)
    a("buffer_load_dwordx4 v[60:63], v7, s[28:31], s53 offen" + NTE)
    a("s_lshr_b32 s54, s73, 3")
    a("s_mul_i32 s54, s54, 5")
    a("s_lshr_b32 s54, s54, 3")
    if not rot:
        a("s_mov_b32 s54, 0")
    a("s_lshl_b32 s54, s54, 4")
    a("s_add_u32 s54, s54, s3")
    a("s_lshl_b32 m0, s54, 10")
    for k in range(10):
        a(f"s_cmp_ge_u32 m0, {147*1024}")
        a(f"s_cbranch_scc1 K1_SKIP{k}")
        a(f"buffer_load_dwordx4 v9, s[20:23], m0 offen{NTP} lds")
        a.label(f"K1_SKIP{k}")
        if k < 9:
            a("s_add_u32 m0, m0, 0x4000")
            a(f"s_sub_u32 s54, m0, {160*1024}")
            a(f"s_cmp_ge_u32 m0, {160*1024}")
            a("s_cselect_b32 m0, s54, m0")
    rest_setup("E")
    a("s_load_dwordx2 s[48:49], s[10:11], 0")
    a("v_lshlrev_b32 v10, 2, v0")
    a(f"v_add_u32 v10, {K1_CNT}, v10")
    a("v_mov_b32 v11, 0")
    a("v_cmp_gt_u32 vcc, 256, v0")
    a("s_and_saveexec_b64 s[56:57], vcc")
    a("ds_write_b32 v10, v11")
    a("s_mov_b64 exec, s[56:57]")
    a(f"s_mov_b32 s55, {BIN_MAGIC}")
    a(f"s_mov_b32 s58, {K1_CNT}")
    a("s_movk_i32 s59, 0x200")
    a("v_mov_b32 v5, 1")
    for e in range(4):
        a(f"s_mov_b64 s[{60+2*e}:{61+2*e}], 0")
    SRC, DST = 56, 60
    AD = 64
    SH = 72
    CA = 80
    RK = 84
    PP = 88
    EN = 104
    a("s_waitcnt vmcnt(9)")
    for i in range(8):
        r = SRC + i
        a(f"v_mul_u32_u24 v{AD+i}, 6, v{r}")
        if ua != 2:
            a(f"v_and_b32 v{AD+i}, -4, v{AD+i}")
            a(f"v_and_b32 v{SH+i}, 1, v{r}")
            a(f"v_lshlrev_b32 v{SH+i}, 4, v{SH+i}")
    for e in range(4):
        a(f"v_mul_hi_u32 v{CA+e}, v{DST+e}, s55")
        a(f"v_lshl_add_u32 v{CA+e}, v{CA+e}, 2, s58")
        a(f"v_mov_b32 v{EN+4*e}, v{SRC+e}")
        a(f"v_mov_b32 v{EN+4*e+1}, v{DST+e}")
    stamp()
    a("s_waitcnt vmcnt(0) lgkmcnt(0)")
    stamp()
    a("s_barrier")
    stamp()
    touch()
    a("s_mov_b64 exec, s[50:51]")
    a("s_cbranch_execz K1_PHASE_B")
    for e in range(4):
        for i in (e, 4 + e):
            if ua:
                a(f"ds_read_b64 v[{PP+2*i}:{PP+2*i+1}], v{AD+i}")
            else:
                a(f"ds_read2_b32 v[{PP+2*i}:{PP+2*i+1}], v{AD+i} offset0:0 offset1:1")
    for e in range(4):
        s, d = PP + 2 * e, PP + 8 + 2 * e
        t = 12 + 8 * e
        if ua != 2:
            a(f"v_lshrrev_b64 v[{s}:{s+1}], v{SH+e}, v[{s}:{s+1}]")
            a(f"v_lshrrev_b64 v[{d}:{d+1}], v{SH+4+e}, v[{d}:{d+1}]")
        a(f"v_lshlrev_b32 v{t}, 16, v{s}")
        a(f"v_lshlrev_b32 v{t+1}, 16, v{d}")
        a(f"v_and_b32 v{t+2}, s52, v{s}")
        a(f"v_and_b32 v{t+3}, s52, v{d}")
        a(f"v_lshlrev_b32 v{t+4}, 16, v{s+1}")
        a(f"v_lshlrev_b32 v{t+5}, 16, v{d+1}")
        a(f"v_sub_f32 v{t}, v{t}, v{t+1}")
        a(f"v_sub_f32 v{t+2}, v{t+2}, v{t+3}")
        a(f"v_sub_f32 v{EN+4*e+3}, v{t+4}, v{t+5}")
        a(f"v_cvt_pk_bf16_f32 v{EN+4*e+2}, v{t}, v{t+2}")
        a(f"v_mul_f32 v{t+1}, v{t}, v{t}")
        a(f"v_fmac_f32 v{t+1}, v{t+2}, v{t+2}")
        a(f"v_fmac_f32 v{t+1}, v{EN+4*e+3}, v{EN+4*e+3}")
        a(f"v_cmp_nlt_f32 vcc, 0x41c20000, v{t+1}")
        a(f"v_cmp_class_f32_e64 s[{60+2*e}:{61+2*e}], v{t+1}, s59")
        a(f"s_or_b64 s[{60+2*e}:{61+2*e}], s[{60+2*e}:{61+2*e}], vcc")
        a(f"s_mov_b64 exec, s[{60+2*e}:{61+2*e}]")
        a(f"ds_add_rtn_u32 v{RK+e}, v{CA+e}, v5")
        a("s_mov_b64 exec, s[50:51]")
    a.label("K1_PHASE_B")
    a("s_mov_b64 exec, -1")
    stamp()
    a("s_barrier")
    stamp()
    if scan1:
        a("s_cmp_lg_u32 s3, 15")
        a("s_cbranch_scc1 K1_NODESC")
        a("s_setprio 3")
    a(f"v_add_u32 v10, {K1_CNT}, v9")
    a("ds_read_b128 v[12:15], v10")
    a("v_add_u32 v17, v12, v13")
    a("v_add_u32 v18, v17, v14")
    a("v_add_u32 v19, v18, v15")
    a("v_mov_b32 v20, v19")
    wave_scan(a, 20)
    a("v_sub_u32 v24, v20, v19")
    a("v_add_u32 v25, v24, v12")
    a("v_add_u32 v26, v24, v17")
    a("v_add_u32 v27, v24, v18")
    a("ds_write_b128 v10, v[24:27] offset:1024")
    if scan1:
        a("ds_write_b32 v10, v20")
        a("s_waitcnt lgkmcnt(0)")
        a("s_barrier")
    else:
        a("v_readlane_b32 s68, v20, 63")
        a("s_cmp_lg_u32 s3, 15")
        a("s_cbranch_scc1 K1_NODESC")
    for i in range(4):
        a(f"v_lshl_or_b32 v{28+i}, v{12+i}, 16, v{24+i}")
    a("s_lshl_b32 s69, s73, 10")
    a(f"s_add_u32 s69, s69, {WS_DESC}")
    a("buffer_store_dwordx4 v[28:31], v9, s[32:35], s69 offen")
    if scan1:
        a("s_branch K1_SCANNED")
    a.label("K1_NODESC")
    if scan1:
        a("s_barrier")
        a.label("K1_SCANNED")
        a(f"v_mov_b32 v20, {K1_CNT + 63*16}")
        a("ds_read_b32 v20, v20")
    for e in range(4):
        a(f"s_mov_b64 exec, s[{60+2*e}:{61+2*e}]")
        a(f"ds_read_b32 v{12+e}, v{CA+e} offset:1024")
    for e in range(4):
        a(f"s_mov_b64 exec, s[{60+2*e}:{61+2*e}]")
        a(f"v_add_lshl_u32 v{12+e}, v{12+e}, v{RK+e}, 4")
        a(f"ds_write_b128 v{12+e}, {q(EN+4*e)}")
    a("s_mov_b64 exec, -1")
    if scan1:
        a("v_readfirstlane_b32 s68, v20")
    a("s_lshl_b32 s60, s48, 16")
    a("s_and_b32 s61, s48, s52")
    a("s_lshl_b32 s62, s49, 16")
    a("s_and_b32 s63, s49, s52")
    a(f"s_mul_i32 s69, s73, {EPG*32}")
    a(f"s_add_u32 s69, s69, {WS_REC}")
    a("s_movk_i32 s70, 3125")
    a("s_mov_b32 s71, 0x40a00000")
    stamp()
    a("s_barrier")
    stamp()
    a("v_mov_b32 v8, v0")
    a("s_lshl_b32 s72, s3, 6")
    a.label("K1_DENSE")
    a("s_cmp_ge_u32 s72, s68")
    a("s_cbranch_scc1 K1_FIN")
    a("v_cmp_gt_u32 vcc, s68, v8")
    a("s_and_b64 exec, exec, vcc")
    b = Asm()
    b("v_lshlrev_b32 v10, 4, v8")
    b("ds_read_b128 v[12:15], v10")
    b("v_cvt_pk_bf16_f32 v15, v15, v15")
    b("v_and_b32 v15, s52, v15")
    b("v_lshlrev_b32 v16, 16, v14")
    b("v_and_b32 v17, s52, v14")
    b("v_mul_f32 v18, v16, v16")
    b("v_mul_f32 v19, v17, v17")
    b("v_mul_f32 v20, v15, v15")
    b("v_cvt_pk_bf16_f32 v18, v18, v19")
    b("v_cvt_pk_bf16_f32 v20, v20, v20")
    b("v_and_b32 v19, s52, v18")
    b("v_lshlrev_b32 v18, 16, v18")
    b("v_and_b32 v20, s52, v20")
    b("v_add_f32 v18, v18, v19")
    b("v_add_f32 v18, v18, v20")
    b("v_cvt_pk_bf16_f32 v18, v18, v18")
    b("v_and_b32 v18, s52, v18")
    b("v_add_f32 v18, 0x322bcc77, v18")
    b("v_cvt_pk_bf16_f32 v18, v18, v18")
    b("v_and_b32 v18, s52, v18")
    b("v_sqrt_f32 v18, v18")
    b("v_mul_hi_u32 v21, v13, s55")
    b("v_mul_u32_u24 v21, s70, v21")
    b("v_add_u32 v21, 31, v21")
    b("v_lshrrev_b32 v21, 5, v21")
    b("v_lshlrev_b32 v44, 10, v12")
    b("v_sub_u32 v45, v13, v21")
    b("v_cvt_pk_bf16_f32 v18, v18, v18")
    b("v_and_b32 v18, s52, v18")
    b("v_rcp_f32 v19, v18")
    for k in range(4):
        b(f"v_mul_f32 v{22+k}, s{60+k}, v18")
    b("v_mul_f32 v26, 0x40490fdb, v18")
    b("v_cvt_pk_bf16_f32 v22, v22, v23")
    b("v_cvt_pk_bf16_f32 v24, v24, v25")
    b("v_cvt_pk_bf16_f32 v26, v26, v26")
    b("v_and_b32 v23, s52, v22")
    b("v_lshlrev_b32 v22, 16, v22")
    b("v_and_b32 v25, s52, v24")
    b("v_lshlrev_b32 v24, 16, v24")
    b("v_and_b32 v26, s52, v26")
    b("v_mul_f32 v26, 0x3e4ccccd, v26")
    b("v_cvt_pk_bf16_f32 v26, v26, v26")
    b("v_and_b32 v26, s52, v26")
    for k in range(5):
        b(f"v_mul_f32 v{22+k}, 0.15915494, v{22+k}")
    for k in range(5):
        b(f"v_rndne_f32 v{28+k}, v{22+k}")
    for k in range(5):
        b(f"v_sub_f32 v{22+k}, v{22+k}, v{28+k}")
    for k in range(4):
        b(f"v_sin_f32 v{22+k}, v{22+k}")
    b("v_cos_f32 v26, v26")
    b("v_mul_f32 v16, v16, v19")
    b("v_mul_f32 v17, v17, v19")
    b("v_mul_f32 v15, v15, v19")
    b("v_cvt_pk_bf16_f32 v46, v16, v17")
    b("v_cvt_pk_bf16_f32 v47, v15, 0")
    b("v_cvt_pk_bf16_f32 v22, v22, v23")
    b("v_cvt_pk_bf16_f32 v24, v24, v25")
    b("v_cvt_pk_bf16_f32 v26, v26, v26")
    b("v_and_b32 v23, s52, v22")
    b("v_lshlrev_b32 v22, 16, v22")
    b("v_and_b32 v25, s52, v24")
    b("v_lshlrev_b32 v24, 16, v24")
    b("v_and_b32 v26, s52, v26")
    for k in range(4):
        b(f"v_mul_f32 v{22+k}, v{22+k}, v19")
    b("v_add_f32 v26, 1.0, v26")
    b("v_cvt_pk_bf16_f32 v22, v22, v23")
    b("v_cvt_pk_bf16_f32 v24, v24, v25")
    b("v_cvt_pk_bf16_f32 v26, v26, v26")
    b("v_and_b32 v23, s52, v22")
    b("v_lshlrev_b32 v22, 16, v22")
    b("v_and_b32 v25, s52, v24")
    b("v_lshlrev_b32 v24, 16, v24")
    b("v_and_b32 v26, s52, v26")
    b("v_mul_f32 v26, 0.5, v26")
    b("v_mul_f32 v27, 0, v18")
    b("v_cmp_gt_f32 vcc, s71, v18")
    b("v_cndmask_b32 v26, v27, v26, vcc")
    for k in range(4):
        b(f"v_mul_f32 v{22+k}, v{22+k}, v26")
    b("v_cvt_pk_bf16_f32 v48, v22, v23")
    b("v_cvt_pk_bf16_f32 v49, v24, v25")
    b("v_lshlrev_b32 v28, 16, v48")
    b("v_and_b32 v29, s52, v48")
    b("v_lshlrev_b32 v30, 16, v49")
    b("v_and_b32 v31, s52, v49")
    for k in range(4):
        b(f"v_sub_f32 v{22+k}, v{22+k}, v{28+k}")
    b("v_cvt_pk_bf16_f32 v50, v22, v23")
    b("v_cvt_pk_bf16_f32 v51, v24, v25")
    b("v_lshlrev_b32 v11, 5, v8")
    b("buffer_store_dwordx4 v[44:47], v11, s[32:35], s69 offen " + st1)
    b("buffer_store_dwordx4 v[48:51], v11, s[32:35], s69 offen offset:16 " + st1)
    a.extend(schedule(b.ins)[0])
    a("v_add_u32 v8, 0x400, v8")
    a("s_add_u32 s72, s72, 0x400")
    a("s_branch K1_DENSE")
    a.label("K1_WEIGHTS")
    rest_setup("W")
    touch()
    a(f"s_cmp_lg_u32 s73, {G}")
    a("s_cbranch_scc1 K1_END")
    a("s_mov_b32 s64, 0x05040100")
    a("s_mov_b32 s65, 0x07060302")
    a("v_and_b32 v7, 15, v0")
    a("v_bfe_u32 v8, v0, 4, 2")
    a("s_cmp_ge_u32 s3, 12")
    a("s_cbranch_scc1 K1_WRBF")
    a("v_mul_u32_u24 v10, 6144, v8")
    a("v_lshl_add_u32 v10, v7, 4, v10")
    a("v_add_u32 v11, 3072, v10")
    a("s_and_b32 s55, s3, 3")
    a("s_lshr_b32 s57, s3, 2")
    a("s_mul_i32 s59, s55, 24576")
    a("s_lshl_b32 s60, s57, 8")
    a("s_add_u32 s59, s59, s60")
    for j in range(8):
        a(f"buffer_load_dwordx4 {q(12+4*j)}, v{10 + j//4}, s[40:43], s59 offen offset:{768*(j%4)}{NTW}")
    a("s_lshl_b32 s62, s57, 15")
    a("s_lshl_b32 s60, s55, 10")
    a("s_add_u32 s62, s62, s60")
    a("s_waitcnt vmcnt(0)")
    for T in range(8):
        o = 48 + 4 * T
        for jj in range(4):
            a(f"v_perm_b32 v{o+jj}, v{12+4*(2*jj+1)+T//2}, v{12+4*(2*jj)+T//2}, s{64+T%2}")
        a(f"buffer_store_dwordx4 {q(o)}, v9, s[32:35], s62 offen")
        a("s_add_u32 s62, s62, 0x1000")
    a("s_branch K1_END")
    a.label("K1_WRBF")
    a("s_cmp_lg_u32 s3, 12")
    a("s_cbranch_scc1 K1_END")
    for j in range(4):
        a(f"buffer_load_dwordx4 {q(12+4*j)}, v9, s[44:47], 0 offen offset:{768*j}")
    a("v_lshlrev_b32 v10, 10, v8")
    a("v_lshl_add_u32 v10, v7, 3, v10")
    a(f"s_mov_b32 s62, {WS_WR}")
    a("s_mov_b32 exec_hi, 0xffff")
    a("s_waitcnt vmcnt(0)")
    for T in range(8):
        o = 48 + 2 * T
        a(f"v_perm_b32 v{o}, v{16+T//2}, v{12+T//2}, s{64+T%2}")
        a(f"v_perm_b32 v{o+1}, v{24+T//2}, v{20+T//2}, s{64+T%2}")
        a(f"buffer_store_dwordx2 v[{o}:{o+1}], v10, s[32:35], s62 offen offset:{128*T}")
    a("s_branch K1_END")
    a.label("K1_HROLE")
    a(f"s_mov_b32 s38, {128*128*2}")
    a("s_mov_b32 s39, s27")
    a(f"s_mov_b32 s86, {N*1024}")
    a("s_mov_b32 s87, s27")
    a("s_waitcnt lgkmcnt(0)")
    stamp()
    a("v_and_b32 v7, 15, v0")
    a("v_bfe_u32 v8, v0, 4, 2")
    a("s_cmp_ge_u32 s3, 7")
    a("s_cselect_b32 s56, 0, 8")
    a("s_cselect_b32 s57, 7, 0")
    a("s_sub_u32 s56, s2, s56")
    a("s_sub_u32 s57, s3, s57")
    a("s_mul_i32 s56, s56, 3125")
    a("s_add_u32 s56, s56, 31")
    a("s_lshr_b32 s56, s56, 5")
    a("s_lshl_b32 s57, s57, 4")
    a("s_add_u32 s57, s57, s56")
    a("s_lshl_b32 s58, s57, 10")
    a("v_lshlrev_b32 v11, 10, v7")
    a("v_lshl_add_u32 v11, v8, 4, v11")
    SA = 40
    a("s_cmp_ge_u32 s3, 4")
    a("s_cbranch_scc1 K1_NOW1")
    a("s_mov_b32 s64, 0x05040100")
    a("s_mov_b32 s65, 0x07060302")
    a("v_lshlrev_b32 v10, 11, v8")
    a("v_lshl_add_u32 v10, v7, 4, v10")
    a("s_lshl_b32 s59, s3, 13")
    WR_ = 56
    for j in range(8):
        a(f"buffer_load_dwordx4 {q(WR_+4*j)}, v10, s[36:39], s59 offen offset:{256*j}{NTW}")
    if early_s:
        for t in range(4):
            a(f"buffer_load_dwordx4 {q(SA+4*t)}, v11, s[84:87], s58 offen offset:{64*t}{NTS}")
    a("s_lshl_b32 s59, s3, 10")
    a("v_add_u32 v28, s59, v9")
    a(f"s_waitcnt vmcnt({4 if early_s else 0})")
    for T in range(8):
        o = 88 + 4 * T
        for jj in range(4):
            a(f"v_perm_b32 v{o+jj}, v{WR_+4*(2*jj+1)+T//2}, v{WR_+4*(2*jj)+T//2}, s{64+T%2}")
        a(f"ds_write_b128 v28, {q(o)} offset:{4096*T}")
    a("s_branch K1_W1DONE")
    a.label("K1_NOW1")
    if cp0:
        a("s_cmp_lt_u32 s3, 14")
        a("s_cbranch_scc1 K1_NOCP")
        a("s_getpc_b64 s[60:61]")
        a.ins.append(Ins("K1_PCH: ; SOFT"))
        a("s_sub_u32 s60, s60, K1_PCH-edge_bin_kernel")
        a("s_subb_u32 s61, s61, 0")
        a("v_and_b32 v12, 0x7f, v0")
        a("v_lshlrev_b32 v12, 7, v12")
        a("v_min_u32 v13, K2_END-edge_bin_kernel, v12")
        a("global_load_dword v121, v13, s[60:61]")
        a("v_add_u32 v12, 0x4000, v12")
        a("v_min_u32 v13, K2_END-edge_bin_kernel, v12")
        a("global_load_dword v122, v13, s[60:61]")
        a.label("K1_NOCP")
    if th:
        a("s_cmp_ge_u32 s3, 11")
        a("s_cbranch_scc1 K1_W1DONE")
        a("s_sub_u32 s60, s3, 4")
        a("s_lshl_b32 s60, s60, 1")
        a("v_lshrrev_b32 v12, 5, v6")
        a("v_add_u32 v12, s60, v12")
        a("v_cmp_le_u32 vcc, 7, v12")
        a("v_subrev_u32 v13, 7, v12")
        a("v_cndmask_b32 v12, v12, v13, vcc")
        a("s_sub_u32 s61, s2, 8")
        a("s_mul_i32 s61, s61, 3125")
        a("s_add_u32 s61, s61, 31")
        a("s_lshr_b32 s61, s61, 5")
        a("s_mul_i32 s62, s2, 3125")
        a("s_add_u32 s62, s62, 31")
        a("s_lshr_b32 s62, s62, 5")
        a("v_mov_b32 v13, s61")
        a("v_mov_b32 v14, s62")
        a("v_cndmask_b32 v13, v13, v14, vcc")
        a("v_lshl_add_u32 v13, v12, 4, v13")
        a("v_bfe_u32 v14, v6, 1, 4")
        a("v_add_u32 v13, v13, v14")
        a("v_and_b32 v14, 1, v6")
        a("v_lshlrev_b32 v13, 10, v13")
        a("v_lshl_add_u32 v13, v14, 7, v13")
        a("buffer_load_dword v120, v13, s[84:87], 0 offen" + NTS)
    if early_s:
        a("s_cmp_ge_u32 s3, 14")
        a("s_cbranch_scc1 K1_W1DONE")
        for t in range(4):
            a(f"buffer_load_dwordx4 {q(SA+4*t)}, v11, s[84:87], s58 offen offset:{64*t}{NTS}")
    a.label("K1_W1DONE")
    rest_setup("H")
    stamp()
    a("s_barrier")
    stamp()
    if cpf:
        a("s_cmp_lg_u32 s3, 15")
        a("s_cbranch_scc1 K1_NOCPF")
        a("s_getpc_b64 s[60:61]")
        a.label("K1_PC")
        a("s_add_u32 s60, s60, message_kernel-K1_PC")
        a("s_addc_u32 s61, s61, 0")
        a("v_lshlrev_b32 v12, 7, v6")
        for i in range(cpf):
            a("v_cmp_gt_u32 vcc, K2_END-message_kernel, v12")
            a("s_and_b64 exec, exec, vcc")
            a(f"global_load_dword v{13+i}, v12, s[60:61]")
            a("v_add_u32 v12, 0x2000, v12")
        a("s_mov_b64 exec, -1")
        a.label("K1_NOCPF")
    if tlbw:
        a("s_cmp_lg_u32 s3, 14")
        a("s_cbranch_scc1 K1_NOTLB")
        a("s_load_dwordx2 s[60:61], s[0:1], 64")
        a("v_lshlrev_b32 v12, 19, v6")
        a("buffer_load_dword v13, v12, s[84:87], 0 offen")
        a("s_waitcnt lgkmcnt(0)")
        a(f"s_mov_b32 s62, {N*1024}")
        a("s_mov_b32 s63, 0x00020000")
        a("buffer_load_dword v15, v12, s[60:63], 0 offen")
        a.label("K1_NOTLB")
    a("s_cmp_ge_u32 s3, 14")
    a("s_cbranch_scc1 K1_FIN")
    if not early_s:
        for t in range(4):
            a(f"buffer_load_dwordx4 {q(SA+4*t)}, v11, s[84:87], s58 offen offset:{64*t}{NTS}")
    if pf:
        a("s_waitcnt vmcnt(0)")
    touch()
    if pfv:
        a("v_lshrrev_b32 v122, 2, v6")
        a("v_and_b32 v123, 3, v6")
        a("v_lshlrev_b32 v122, 10, v122")
        a("v_lshl_add_u32 v122, v123, 7, v122")
        a(f"v_cmp_gt_u32 vcc, {pfv % 10}, v123")
        a("v_mov_b32 v123, 0x40000000")
        a("v_cndmask_b32 v122, v123, v122, vcc")
        if pfv >= 10:
            a("s_waitcnt vmcnt(0)")
        a("buffer_load_dword v120, v122, s[84:87], s58 offen offset:256")
    b = Asm()
    RING = [56 + 4 * i for i in range(4)]
    D0 = 72
    TM = 12
    OUT = 104
    kf = [0]

    def pfw():
        if kf[0] < 32:
            b(f"ds_read_b128 {q(RING[kf[0] % 4])}, v9 offset:{1024*kf[0]}")
            kf[0] += 1
    for _ in range(4):
        pfw()
    b(f"s_waitcnt vmcnt({1 if (pf or pfv) else 0})", guards=[f"v{SA+i}" for i in range(16)])
    k = 0
    for T in range(8):
        D = D0 + 4 * T
        for t in range(4):
            c = "0" if t == 0 else q(D)
            b(f"v_mfma_f32_16x16x32_bf16 {q(D)}, {q(SA+4*t)}, {q(RING[k % 4])}, {c}")
            k += 1
            pfw()
        for r in range(4):
            t = TM + (4 * T + r) % 16
            b(f"v_mul_f32 v{t}, 0xbfb8aa3b, v{D+r}")
            b(f"v_exp_f32 v{t}, v{t}")
            b(f"v_add_f32 v{t}, 1.0, v{t}")
            b(f"v_rcp_f32 v{t}, v{t}")
            b(f"v_mul_f32 v{D+r}, v{D+r}, v{t}")
        if T % 2 == 1:
            for r in range(4):
                b(f"v_cvt_pk_bf16_f32 v{OUT+4*r+T//2}, v{D-4+r}, v{D+r}")
    b("v_lshlrev_b32 v30, 10, v8")
    b("v_lshl_add_u32 v30, v7, 4, v30")
    b("s_lshl_b32 s58, s57, 8")
    for r in range(4):
        b(f"buffer_store_dwordx4 {q(OUT+4*r)}, v30, s[88:91], s58 offen offset:{256*r} {sth}")
    sch, tt = schedule(b.ins)
    print("K1 H tile: %d instructions, modelled %d cycles" % (len(sch), tt))
    a.extend(sch)
    a.label("K1_FIN")
    if stamps:
        stamp()
        a("s_waitcnt vmcnt(0)")
        stamp()
        a("s_mov_b64 exec, 0xffff")
        a("v_lshlrev_b32 v124, 2, v6")
        a("v_add_u32 v125, s79, v124")
        a("ds_read_b32 v126, v125")
        a("s_lshl_b32 s74, s2, 4")
        a("s_add_u32 s74, s74, s3")
        a("s_lshl_b32 s74, s74, 6")
        a(f"s_add_u32 s74, s74, {WS_STAMP1}")
        a("buffer_store_dword v126, v124, s[32:35], s74 offen")
    a.label("K1_END")
    a("s_endpgm")
    return a
```

```python
import sys
from asmlib import finalize, render
from gen3_k1 import gen_k1, K1_LDS
from gen13_k2 import gen_k2, K2_LDS
from gen import HEADER, kd

def build(path, **kw):
    st = kw.get("stamps", False)
    pf = kw.pop("pf", 2)
    k1kw = {k: kw.pop(k) for k in ("early_s", "rot", "nte", "ntp", "nts", "ntw", "st1", "sth", "pfv", "scan1", "te", "th", "ua", "cpf", "cp0", "tlbw", "pfrows") if k in kw}
    k1 = render(finalize(gen_k1(stamps=st, pf=pf, **k1kw).ins))
    k2 = render(finalize(gen_k2(**kw).ins))
    out = HEADER
    out += "; Two launches: edge_bin_kernel (per-edge geometry, cutoff test, binning by destination; H = silu(s@W1) per node;\n"
    out += "; weight re-layout), then message_kernel (phi = H@W2 per edge on MFMA, messages, segment sum on MFMA, residual add).\n"
    out += f"; @launch kernel=edge_bin_kernel grid=(256,1,1) block=(1024,1,1) lds={K1_LDS + (1024 if st else 0)}\n"
    out += f"; @launch kernel=message_kernel grid=(256,1,1) block=(512,1,1) lds={K2_LDS}\n"
    out += '.amdgcn_target "amdgcn-amd-amdhsa--gfx950"\n.text\n'
    for name, body in (("edge_bin_kernel", k1), ("message_kernel", k2)):
        out += f".globl {name}\n.p2align 8\n.type {name},@function\n" + body
    out += '.section .rodata,"a"\n.p2align 6\n' + kd("edge_bin_kernel", 128, 96) + ".p2align 6\n" + kd("message_kernel", 256, 102)
    open(path, "w").write(out)

if __name__ == "__main__":
    kw = {}
    for x in sys.argv[2:]:
        k, v = x.split("=")
        kw[k] = eval(v)
    build(sys.argv[1], **kw)
```

```python
from asmlib import Asm, Ins, schedule
from gen3_k1 import N, G, EPG, WS_W2, WS_WR, WS_WEND, WS_DESC, WS_REC, WS_H, WS_SIZE, WS_STAMP2, srd, wave_scan

L_W2 = 0
L_WR = 98304
L_CNT = 102400
L_P = L_CNT + 512
L_FLAG = L_P + 576
L_REC = L_FLAG + 64
CAP = 400
RSLOW = 1
L_OWN = L_REC + (CAP + 16) * 32
NL = 44
L_STAMP = L_OWN + NL * 1024
K2_LDS = L_STAMP + 1024
assert K2_LDS <= 163840 and L_OWN % 16 == 0
RMAX = 8

sHW, sSIG = 0, 1
sWAVE = 3
SRD_SV, SRD_OUT, SRD_WS, SRD_OWN, SRD_H = 12, 16, 20, 24, 96
sM, sBASE, sNB, sJ0, sR, sTOT, sROUND, sMORE = 28, 29, 30, 31, 32, 33, 34, 35
cN0, cNN, cEB, cNE, cE1, cOFF = 36, 37, 38, 39, 40, 41
nN0, nNN, nEB, nNE, nE1, nOFF = 42, 43, 44, 45, 46, 47
sT0, sT1, sT2, sPOS = 48, 49, 50, 51
sLO, sONE2, sSELL, sSELH = 52, 53, 54, 55
sQLT2 = 56
sCE32, sNE32 = 58, 59
sMK = 60
NMK = 12
tN0, tEB, tE1, tPOS, tCONT, tLDS, sFIRST, sDMA = 84, 85, 86, 87, 88, 89, 90, 91
nSRC = 92
sST = 94
sL0 = 100
nLDS = 101

vLANE, vWB0, vWB1, vWR, vE, vQ4, vQ16, vN16, vRECE, vRECQ, vRB, vTA, vTB, vOWN0, v2Q, vNEXT, vP, vOOB = range(1, 19)
vOA0, vOA1 = 19, 20
vMASK, v16 = 21, 27
M4 = True
HQ = 0
SPLIT = 6
SPLITS = []
sB3 = 9
VC = True
vVA = 22
vHA = 26
vRBOP = 28
vID = 30
H0 = 32
V0 = 48
OWN0 = 96
SOP = 128
MS0 = 144
MVR0 = 160
MVV0 = 176
WRING = 208
NRING = 7
PH0 = 240
WF0 = 248
WRF0 = 236

NT = NTV = NTO = ""
ORDER = list(range(16, 24)) + list(range(0, 8)) + list(range(8, 16))


def q(base):
    return f"v[{base}:{base+3}]"


def d(base):
    return f"v[{base}:{base+1}]"


def Vq(x, r):
    return V0 + 16 * x + 4 * r


def Oq(c, h):
    return OWN0 + 8 * c + 4 * h


def advance(a):
    a(f"s_lshr_b32 s{sT0}, s{sPOS}, 1")
    a(f"v_readlane_b32 s{sT1}, v{vNEXT}, s{sT0}")
    a(f"s_and_b32 s{sT2}, s{sPOS}, 1")
    a(f"s_lshl_b32 s{sT2}, s{sT2}, 3")
    a(f"s_lshr_b32 s{sT1}, s{sT1}, s{sT2}")
    a(f"s_and_b32 s{sPOS}, s{sT1}, 0xff")


def lookup_p(a, dst):
    a(f"s_lshr_b32 s{sT0}, s{sPOS}, 1")
    a(f"v_readlane_b32 s{sT1}, v{vP}, s{sT0}")
    a(f"s_and_b32 s{sT2}, s{sPOS}, 1")
    a(f"s_lshl_b32 s{sT2}, s{sT2}, 4")
    a(f"s_lshr_b32 s{sT1}, s{sT1}, s{sT2}")
    a(f"s_and_b32 s{dst}, s{sT1}, 0xffff")


def finish_next(a):
    a(f"s_sub_u32 s{nNN}, s{sPOS}, s{nN0}")
    a(f"s_add_u32 s{nOFF}, s{nN0}, s{sBASE}")
    a(f"s_lshl_b32 s{nOFF}, s{nOFF}, 10")
    a(f"s_cmp_eq_u32 s{tCONT}, 0")
    a(f"s_cselect_b32 s{nSRC}, s4, s6")
    a(f"s_cselect_b32 s{nSRC+1}, s5, s7")
    a(f"s_cselect_b32 s{tLDS}, 1, 0")
    a(f"s_cmp_ge_u32 s{nN0}, s{sL0}")
    a(f"s_cselect_b32 s{nLDS}, s{tLDS}, 0")
    a(f"s_sub_u32 s{nNE}, s{nE1}, s{nEB}")
    a(f"s_min_u32 s{nNE}, s{nNE}, 16")
    a(f"s_lshl_b32 s{sNE32}, s{nEB}, 5")


def next_item(a, steps, allow_cont=True):
    if allow_cont:
        finish_next(a)
        return
    a(f"s_mov_b32 s{nN0}, s{sPOS}")
    lookup_p(a, nEB)
    advance(a)
    lookup_p(a, nE1)
    a(f"s_mov_b32 s{tCONT}, s{sROUND}")
    finish_next(a)


def claim(a, tag, t):
    a(f"v_mov_b32 v{t}, {L_FLAG+12}")
    a(f"ds_read_b32 v{t+3}, v{t}")
    a(f"s_add_u32 s{nEB}, s{cEB}, 16")
    a(f"s_mov_b32 s{tCONT}, 1")
    a(f"v_readfirstlane_b32 s{tPOS}, v{t+3}")
    a(f"s_cmp_lt_u32 s{nEB}, s{cE1}")
    a(f"s_cbranch_scc1 K2_CLAIMED{tag}")
    a(f"s_mov_b32 s{tCONT}, s{sROUND}")
    a.label(f"K2_CLAIM{tag}")
    a(f"s_mov_b32 s{sPOS}, s{tPOS}")
    a(f"s_mov_b32 s{nN0}, s{tPOS}")
    a(f"v_mov_b32 v{t+1}, s{tPOS}")
    advance(a)
    a(f"v_mov_b32 v{t+2}, s{sPOS}")
    a("s_mov_b64 exec, 1")
    a(f"ds_cmpst_rtn_b32 v{t+3}, v{t}, v{t+1}, v{t+2} ; NOWAIT")
    a("s_mov_b64 exec, -1")
    lookup_p(a, nE1)
    a(f"s_mov_b32 s{tE1}, s{sPOS}")
    a(f"s_mov_b32 s{sPOS}, s{nN0}")
    lookup_p(a, nEB)
    a(f"s_mov_b32 s{sPOS}, s{tE1}")
    a("s_waitcnt lgkmcnt(0)")
    a(f"v_readfirstlane_b32 s{tPOS}, v{t+3}")
    a(f"s_cmp_lg_u32 s{tPOS}, s{nN0}")
    a(f"s_cbranch_scc1 K2_CLAIM{tag}")
    a.label(f"K2_CLAIMED{tag}")


class MaskAlloc:
    def __init__(self, k=0):
        self.k = k

    def __call__(self):
        r = sMK + 2 * (self.k % NMK)
        self.k += 1
        return f"s[{r}:{r+1}]"


def emit_h_addr(a, mk, t):
    if HQ == 1:
        a(f"v_lshrrev_b32 v{t}, 2, v{vLANE}")
        m = mk()
        a(f"v_cmp_gt_u32_e64 {m}, s{nNE}, v{t}")
        a(f"v_lshlrev_b32 v{t}, 5, v{t}")
        a(f"v_add_u32 v{t}, {L_REC}, v{t}")
        a(f"v_add_u32 v{t}, s{sNE32}, v{t}")
        a(f"ds_read_b32 v{vHA}, v{t}")
        a(f"v_lshrrev_b32 v{vHA}, 2, v{vHA}")
        a(f"v_and_b32 v{vOOB}, 48, v{vWB0}")
        a(f"v_add_u32 v{vHA}, v{vHA}, v{vOOB}")
        a(f"v_mov_b32 v{vOOB}, 0x40000000")
        a(f"v_cndmask_b32_e64 v{vHA}, v{vOOB}, v{vHA}, {m}")
        return
    a(f"v_add_u32 v{t}, s{sNE32}, v{vRECE}")
    a(f"ds_read_b32 v{vHA}, v{t}")
    m = mk()
    a(f"v_cmp_gt_u32_e64 {m}, s{nNE}, v{vE}")
    a(f"v_lshrrev_b32 v{vHA}, 2, v{vHA}")
    if HQ == 2:
        a(f"v_and_b32 v{vHA}, 0x3fff, v{vHA}")
    a(f"v_add_u32 v{vHA}, v{vHA}, v{vQ16}")
    a(f"v_cndmask_b32_e64 v{vHA}, v{vOOB}, v{vHA}, {m}")


def emit_h_loads(a):
    for t in range(4):
        a(f"buffer_load_dwordx4 {q(H0+4*t)}, v{vHA}, s[{SRD_H}:{SRD_H+3}], 0 offen offset:{64*t}")


def emit_comp_stores(a, c):
    for h, va in ((0, vOA0), (1, vOA1)):
        a(f"buffer_store_dwordx4 {q(Oq(c,h))}, v{va}, s[{SRD_OUT}:{SRD_OUT+3}], s{cOFF} offen offset:{256*c}{NT}")


def comp_wait(a, c):
    regs = [f"v{Oq(c,h)+i}" for h in range(2) for i in range(4)]
    if c > 0:
        regs += [f"v{Vq(c-1,r)+i}" for r in range(4) for i in range(4)]
    a(f"s_waitcnt vmcnt({((22, 18, 14, 10) if OWNIN else (16, 14, 12, 10))[c]})", guards=regs)


def wfrag(a, k, ring):
    c = ORDER[k // 4]
    off = (4 * c + k % 4) * 1024
    base = vWB0 if off < 65536 else vWB1
    a(f"ds_read_b128 {q(ring)}, v{base} offset:{off % 65536}" + (f" ; GRP{k//GRPN}" if GRPN > 1 else ""))


T = list(range(MVV0, MVV0 + 32))


def own_load(a, c):
    for h, va in ((0, vOA0), (1, vOA1)):
        a(f"buffer_load_dwordx4 {q(Oq(c,h))}, v{va}, s[{SRD_OWN}:{SRD_OWN+3}], s{cOFF} offen offset:{256*c}{NTO}")


def v_load(a, i):
    c, r = 1 + i // 4, i % 4
    if OWNIN and i == 0:
        own_load(a, 0)
    a(f"buffer_load_dwordx4 {q(Vq(c-1,r))}, v{vVA+r}, s[{SRD_SV}:{SRD_SV+3}], 0 offen offset:{256*c}{NTV}")
    if OWNIN and r == 3:
        own_load(a, c)


VSPREAD = 1
OWNIN = False
GRPN = 4


def item_block(memonly=False):
    a = Asm()
    mk = MaskAlloc(6)
    if memonly:
        for i in range(12):
            v_load(a, i)
        claim(a, "C", PH0)
        next_item(a, 7)
        emit_h_addr(a, mk, vHA)
        emit_h_loads(a)
        for c in range(4):
            comp_wait(a, c)
            emit_comp_stores(a, c)
        return a
    MK = [MS0 + i for i in range(4)]
    PR = [MS0 + 4 + i for i in range(6)]
    ring = [WRING + 4 * i for i in range(NRING)]
    kf = [0]

    def prefetch():
        if kf[0] < 96:
            wfrag(a, kf[0], ring[kf[0] % NRING])
            kf[0] += 1

    for _ in range(NRING):
        prefetch()
    m = mk()
    a(f"v_cmp_gt_u32_e64 {m}, s{cNE}, v{vE}")
    a(f"s_and_b64 {m}, {m}, s[{sQLT2}:{sQLT2+1}]")
    a(f"v_cndmask_b32_e64 v{vRBOP}, 0, v{vRBOP}, {m}")
    a(f"v_cndmask_b32_e64 v{vRBOP+1}, 0, v{vRBOP+1}, {m}")
    for side, tgt in ((0, vTA), (1, vTB)):
        for pr in range(2):
            ts = []
            for r in (2 * pr, 2 * pr + 1):
                m = mk()
                t = T[22 + 4 * side + r]
                a(f"v_cmp_eq_u32_e64 {m}, v{T[4*r+1]}, v{tgt}")
                a(f"v_cndmask_b32_e64 v{t}, 0, -1, {m}")
                ts.append(t)
            a(f"v_bfi_b32 v{MK[2*side+pr]}, s{sLO}, v{ts[0]}, v{ts[1]}")
    for pr in range(2):
        r0, r1 = 2 * pr, 2 * pr + 1
        a(f"v_perm_b32 v{PR[0+pr]}, v{T[4*r1+2]}, v{T[4*r0+2]}, s{sSELL}")
        a(f"v_perm_b32 v{PR[2+pr]}, v{T[4*r1+2]}, v{T[4*r0+2]}, s{sSELH}")
        a(f"v_perm_b32 v{PR[4+pr]}, v{T[4*r1+3]}, v{T[4*r0+3]}, s{sSELL}")
    AS = SOP
    for i in range(4):
        a(f"v_and_b32 v{AS+i}, s{sONE2}, v{MK[i]}")
    for x in range(3):
        for i in range(4):
            a(f"v_and_b32 v{AS+4+4*x+i}, v{MK[i]}, v{PR[2*x+(i%2)]}")
    k = 0
    for ci, c in enumerate(ORDER):
        Gi, Ti = c // 8, c % 8
        PH = PH0 + 4 * (ci % 2)
        WF = WF0 + 4 * (ci % 2)
        WRF = WRF0 + 2 * (ci % 2)
        if ci == SPLIT:
            SPLITS.append(len(a.ins))
            next_item(a, 7)
        a(f"ds_read_b64 {d(WRF)}, v{vWR} offset:{128*c}")
        if ci == 16:
            emit_h_addr(a, mk, vHA)
        for t in range(4):
            cc = "0" if t == 0 else q(PH)
            a(f"v_mfma_f32_16x16x32_bf16 {q(PH)}, {q(H0+4*t)}, {q(ring[k % NRING])}, {cc}")
            k += 1
            prefetch()
        a(f"v_mfma_f32_16x16x16_bf16 {q(WF)}, {d(vRBOP)}, {d(WRF)}, 0")
        a.ins[-1].pw = f"tile{ci}"
        for i in range(12):
            if i * VSPREAD // 2 == ci:
                v_load(a, i)
                if ci:
                    a.ins[-1].pr = f"tile{ci-1}"
        if Gi == 1:
            for r in range(4):
                a(f"v_mul_f32 v{MVV0+4*Ti+r}, v{PH+r}, v{WF+r}")
        else:
            for r in range(4):
                a(f"v_mul_f32 v{WF+r}, v{PH+r}, v{WF+r}")
            dst = (MS0 if Gi == 0 else MVR0) + 2 * Ti
            a(f"v_cvt_pk_bf16_f32 v{dst}, v{WF}, v{WF+1}")
            a(f"v_cvt_pk_bf16_f32 v{dst+1}, v{WF+2}, v{WF+3}")
    emit_h_loads(a)
    U = [WRING, WRING + 16]
    BB = [240, 244]
    CD = [248, 252]
    it = 0
    ub = 0
    for c in range(4):
        comp_wait(a, c)
        for pp in range(2):
            if c > 0:
                x = c - 1
                u = U[ub % 2]
                ub += 1
                for r in range(4):
                    a(f"v_mfma_f32_{'4x4x4_16b' if M4 else '16x16x16'}_bf16 {q(u+4*r)}, {d(vID)}, {d(Vq(x,r)+2*pp)}, 0")
                for r in range(4):
                    for j in range(4):
                        a(f"v_mul_f32 v{u+4*r+j}, v{u+4*r+j}, v{MVV0+4*(4*pp+j)+r}")
            for p in (2 * pp, 2 * pp + 1):
                C = CD[it % 2] if c else WRING + 4 * p
                o0, o1 = Oq(c, 0) + p, Oq(c, 1) + p
                k16, kM = (f"v{v16}", f"v{vMASK}") if VC else ("16", f"s{sM}")
                a(f"v_lshlrev_b32 v{C}, {k16}, v{o0}")
                a(f"v_lshlrev_b32 v{C+1}, {k16}, v{o1}")
                a(f"v_and_b32 v{C+2}, {kM}, v{o0}")
                a(f"v_and_b32 v{C+3}, {kM}, v{o1}")
                if c == 0:
                    a(f"v_mfma_f32_16x16x32_bf16 {q(C)}, {q(AS)}, {q(MS0+4*p)}, {q(C)}")
                else:
                    B = BB[it % 2]
                    j0 = 2 * (p % 2)
                    a(f"v_cvt_pk_bf16_f32 v{B}, v{u+j0}, v{u+4+j0}")
                    a(f"v_cvt_pk_bf16_f32 v{B+1}, v{u+8+j0}, v{u+12+j0}")
                    a(f"v_cvt_pk_bf16_f32 v{B+2}, v{u+j0+1}, v{u+4+j0+1}")
                    a(f"v_cvt_pk_bf16_f32 v{B+3}, v{u+8+j0+1}, v{u+12+j0+1}")
                    a(f"v_mfma_f32_16x16x32_bf16 {q(C)}, {q(AS+4+4*x)}, {q(MVR0+4*p)}, {q(C)}")
                    a(f"v_mfma_f32_16x16x32_bf16 {q(C)}, {q(AS)}, {q(B)}, {q(C)}")
                a(f"v_cvt_pk_bf16_f32 v{o0}, v{C}, v{C+2}")
                a(f"v_cvt_pk_bf16_f32 v{o1}, v{C+1}, v{C+3}")
                it += 1
        emit_comp_stores(a, c)
    return a


def gen_k2(do_sched=True, stamps=False, memonly=False, w0=8, w1=16, nt=False, ntv=False, nto=False, nomem=False,
           prio=1, touch=0, vspread=1, ntst=False, usel=True, grpn=4, ldsl=110, stage=True, exp=0, ownin=False, fine=False, m4=True, vc=True, tnt=False, hq=0, b3in=True, split=6, vt=0):
    a = Asm()
    global NT, NTV, NTO, VSPREAD, GRPN, OWNIN, M4, VC
    M4, VC = m4, vc
    global HQ, SPLIT
    HQ = hq
    SPLIT = split
    OWNIN = ownin
    GRPN = grpn
    VSPREAD = vspread
    NT = (" " + nt) if isinstance(nt, str) else (" nt" if nt else "")
    NTV = " nt" if ntv else ""
    NTO = " nt" if nto else ""

    def stamp():
        if not stamps:
            return
        a("s_memtime s[10:11]")
        a("s_waitcnt lgkmcnt(0)")
        a("v_mov_b32 v252, s10")
        a(f"v_mov_b32 v253, s{sST}")
        a("ds_write_b32 v253, v252")
        a(f"s_add_u32 s{sST}, s{sST}, 4")

    def rstamp(idx):
        if not stamps:
            return
        a("s_memrealtime s[10:11]")
        a("s_waitcnt lgkmcnt(0)")
        a("v_mov_b32 v252, s10")
        a(f"v_mov_b32 v253, s{sST+1}")
        a(f"ds_write_b32 v253, v252 offset:{4*idx}")

    a.label("message_kernel")
    a("s_cmp_ge_u32 s2, 256")
    a("s_cbranch_scc1 K2_END")
    if stamps:
        a("v_lshrrev_b32 v252, 6, v0")
        a(f"v_readfirstlane_b32 s{sST}, v252")
        a(f"s_lshl_b32 s{sST}, s{sST}, 7")
        a(f"s_add_u32 s{sST}, s{sST}, {L_STAMP}")
        a(f"s_mov_b32 s{sST+1}, s{sST}")
        a("v_and_b32 v252, 31, v0")
        a("v_lshlrev_b32 v252, 2, v252")
        a(f"v_add_u32 v252, s{sST}, v252")
        a("v_mov_b32 v253, 0")
        a("ds_write_b32 v252, v253")
        stamp()
        rstamp(30)
    a(f"s_load_dwordx2 s[{SRD_WS}:{SRD_WS+1}], s[0:1], 80")
    a("s_load_dwordx2 s[4:5], s[0:1], 0")
    a("s_load_dwordx2 s[6:7], s[0:1], 64")
    a("v_lshrrev_b32 v32, 6, v0")
    a(f"v_mov_b32 v{vOOB}, 0x40000000")
    a(f"v_readfirstlane_b32 s{sWAVE}, v32")
    a(f"s_mov_b32 s{SRD_WS+2}, {WS_SIZE}")
    a(f"s_mov_b32 s{SRD_WS+3}, 0x00020000")

    def late_setup():
        a(f"s_mul_i32 s{sBASE}, s2, 3125")
        a(f"s_add_u32 s{sNB}, s{sBASE}, {3125+31}")
        a(f"s_add_u32 s{sBASE}, s{sBASE}, 31")
        a(f"s_lshr_b32 s{sBASE}, s{sBASE}, 5")
        a(f"s_lshr_b32 s{sNB}, s{sNB}, 5")
        a(f"s_sub_u32 s{sNB}, s{sNB}, s{sBASE}")
        a(f"s_sub_u32 s{sL0}, s{sNB}, {NL}")
        a(f"s_mov_b32 s{sJ0}, 0")
        a(f"s_mov_b32 s{sR}, {RMAX}")
        a(f"s_mov_b32 s{sROUND}, 0")
        a(f"s_mov_b32 s8, s{SRD_WS}")
        a(f"s_mov_b32 s9, s{SRD_WS+1}")

    def desc_addr():
        a("v_lshrrev_b32 v33, 1, v0")
        a("v_lshlrev_b32 v33, 10, v33")
        a(f"v_cmp_gt_u32 vcc, {2*G}, v0")
        a(f"v_cndmask_b32 v33, v{vOOB}, v33, vcc")
        a(f"s_lshl_b32 s{sT0}, s2, 2")
        a(f"s_add_u32 s{sT0}, s{sT0}, {WS_DESC}")

    def desc_load():
        a(f"buffer_load_dword v34, v33, s[{SRD_WS}:{SRD_WS+3}], s{sT0} offen")

    def zero_counters():
        a("v_lshlrev_b32 v36, 2, v0")
        a(f"v_add_u32 v36, {L_CNT}, v36")
        a("v_mov_b32 v37, 0")
        a(f"v_mov_b32 v38, {L_FLAG}")
        a("v_cmp_gt_u32 vcc, 0x80, v0")
        a(f"s_and_saveexec_b64 s[{sMK}:{sMK+1}], vcc")
        a("ds_write_b32 v36, v37")
        a("ds_write_b32 v38, v37")
        a("ds_write_b32 v38, v37 offset:8")
        a("s_mov_b64 exec, -1")

    def wdma(i0, i1):
        for i in range(i0, i1):
            a(f"buffer_load_dwordx4 v{vWB0}, s[{SRD_WS}:{SRD_WS+3}], m0 offen lds")
            a("s_add_u32 m0, m0, 0x1000")
            a(f"s_cmp_ge_u32 m0, {100*1024}")
            a(f"s_cselect_b32 m0, s{sDMA}, m0")

    desc_addr()
    a(f"v_and_b32 v{vLANE}, 63, v0")
    a(f"v_lshlrev_b32 v{vWB0}, 4, v{vLANE}")
    a(f"s_sub_u32 s{sT1}, s{sWAVE}, 4")
    a(f"s_lshl_b32 s{sDMA}, s{sT1}, 10")
    a(f"s_cmp_ge_u32 s{sWAVE}, 4")
    a.ins.append(Ins("s_cbranch_scc1 K2_W0 ; NODRAIN"))
    a("s_waitcnt lgkmcnt(0)")
    desc_load()
    a(f"s_mov_b32 s{sSIG}, 0")
    a("s_branch K2_INIT")
    a.label("K2_W0")
    a(f"s_lshr_b32 s{tN0}, s2, 3")
    a(f"s_mul_i32 s{tN0}, s{tN0}, 25")
    a(f"s_lshr_b32 s{tN0}, s{tN0}, 5")
    a(f"s_lshl_b32 s{tN0}, s{tN0}, 2")
    a(f"s_add_u32 s{tN0}, s{tN0}, s{sT1}")
    a(f"s_lshl_b32 m0, s{tN0}, 10")
    a("s_waitcnt lgkmcnt(0)")
    wdma(0, w0)
    a(f"s_mov_b32 s{sSIG}, 1")
    a.label("K2_INIT")
    late_setup()
    zero_counters()
    srd(a, SRD_SV, 4, N * 1024)
    srd(a, SRD_OUT, 6, N * 1024)
    srd(a, SRD_OWN, 4, N * 1024)
    a(f"s_add_u32 s{SRD_H}, s8, {WS_H}")
    a(f"s_addc_u32 s{SRD_H+1}, s9, 0")
    a(f"s_mov_b32 s{SRD_H+2}, {N*256}")
    a(f"s_mov_b32 s{SRD_H+3}, 0x00020000")
    if nomem:
        for r in (SRD_H, SRD_SV, SRD_OUT, SRD_OWN):
            a(f"s_mov_b32 s{r+2}, 0")
    a(f"v_add_u32 v{vWB1}, 0x10000, v{vWB0}")
    a(f"v_and_b32 v{vE}, 15, v{vLANE}")
    a(f"v_lshrrev_b32 v35, 4, v{vLANE}")
    a(f"v_lshlrev_b32 v{vWR}, 3, v{vE}")
    a(f"v_add_u32 v{vWR}, {L_WR}, v{vWR}")
    a(f"v_lshlrev_b32 v{vQ4}, 2, v35")
    a(f"v_lshlrev_b32 v{vQ16}, 4, v35")
    a(f"v_lshlrev_b32 v{vN16}, 4, v{vE}")
    a(f"v_lshlrev_b32 v{vRECE}, 5, v{vE}")
    a(f"v_add_u32 v{vRECE}, {L_REC}, v{vRECE}")
    a(f"v_lshlrev_b32 v{vRECQ}, 7, v35")
    a(f"v_add_u32 v{vRECQ}, {L_REC}, v{vRECQ}")
    a("v_and_b32 v36, 1, v35")
    a(f"v_lshl_add_u32 v{vRB}, v36, 3, v{vRECE}")
    a(f"v_add_u32 v{vRB}, 16, v{vRB}")
    a(f"v_lshlrev_b32 v{v2Q}, 1, v35")
    a(f"v_lshl_add_u32 v{vOWN0}, v35, 11, v{vN16}")
    a(f"v_lshrrev_b32 v36, 2, v{vE}")
    a(f"v_and_b32 v37, 1, v{vE}")
    a("v_lshl_add_u32 v39, v36, 1, v37")
    a(f"v_and_b32 v40, 2, v{vE}")
    a("v_cmp_eq_u32 vcc, 0, v40")
    a(f"v_cndmask_b32 v{vTA}, -1, v39, vcc")
    a(f"v_cndmask_b32_e64 v{vTB}, v39, -1, vcc")
    a("v_lshlrev_b32 v37, 4, v37")
    a("v_mov_b32 v41, 0x3f80")
    a("v_lshlrev_b32 v41, v37, v41")
    if not M4:
        a(f"v_cmp_eq_u32_e64 s[{sMK}:{sMK+1}], v36, v35")
        a(f"v_cndmask_b32_e64 v41, 0, v41, s[{sMK}:{sMK+1}]")
    a(f"v_mov_b32 v{vMASK}, 0xffff0000")
    a(f"v_mov_b32 v{v16}, 16")
    a(f"v_cndmask_b32 v{vID}, 0, v41, vcc")
    a(f"v_cndmask_b32_e64 v{vID+1}, v41, 0, vcc")
    a(f"v_cmp_gt_u32_e64 s[{sQLT2}:{sQLT2+1}], 32, v{vLANE}")
    a(f"s_mov_b32 s{sM}, 0xffff0000")
    a(f"s_mov_b32 s{sLO}, 0xffff")
    a(f"s_mov_b32 s{sONE2}, 0x3f803f80")
    a(f"s_mov_b32 s{sSELL}, 0x05040100")
    a(f"s_mov_b32 s{sSELH}, 0x07060302")
    a(f"s_cmp_lt_u32 s{sWAVE}, 4")
    a("s_cbranch_scc1 K2_RECSIDE")
    a("s_barrier")
    wdma(w0, w1)
    if touch:
        a(f"s_lshl_b32 s{sT0}, s{sBASE}, 10")
        a(f"s_lshl_b32 s{sT2}, s{sDMA}, 3")
        a(f"s_add_u32 s{sT0}, s{sT0}, s{sT2}")
        a(f"v_lshlrev_b32 v200, 7, v{vLANE}")
        for i in range(touch):
            a(f"buffer_load_dword v204, v200, s[{SRD_SV}:{SRD_SV+3}], s{sT0} offen{' nt' if tnt else ''}")
            a(f"s_add_u32 s{sT0}, s{sT0}, 0x8000")
    a("s_barrier")
    wdma(w1, 25)
    a("s_branch K2_AFTER_B1")
    a.label("K2_ROUND")
    a(f"s_cmp_lt_u32 s{sWAVE}, 4")
    a("s_cbranch_scc1 K2_RECSIDE")
    a("s_barrier")
    a("s_branch K2_AFTER_REC")
    a.label("K2_RECSIDE")
    REC = 64
    RK = 40
    AD = 48
    a("v_and_b32 v37, 1, v0")
    a("v_lshrrev_b32 v39, 1, v0")
    a(f"v_mul_u32_u24 v39, {EPG}, v39")
    a(f"s_lshl_b32 s{sT0}, s{sJ0}, 1")
    a(f"v_add3_u32 v39, v39, v37, s{sT0}")
    a(f"s_mov_b32 s{sT0}, {WS_REC}")
    a("s_waitcnt vmcnt(0)")
    stamp()
    a("v_and_b32 v35, 0xffff, v34")
    a("v_lshrrev_b32 v36, 16, v34")
    a("v_add_lshl_u32 v39, v39, v35, 5")
    a("v_sub_u32 v36, v36, v37")
    a("v_add_u32 v36, 1, v36")
    a("v_lshrrev_b32 v36, 1, v36")
    a(f"v_subrev_u32 v36, s{sJ0}, v36")
    a("v_max_i32 v36, 0, v36")
    a(f"v_cmp_lt_u32_e64 s[{sMK}:{sMK+1}], s{sR}, v36")
    a(f"v_min_u32 v36, s{sR}, v36")
    for j in range(RMAX):
        a(f"v_cmp_lt_u32 vcc, {j}, v36")
        a("s_and_b64 exec, exec, vcc")
        a("s_cbranch_execz K2_REC_ISSUED")
        a(f"buffer_load_dwordx4 {q(REC+8*j)}, v39, s[{SRD_WS}:{SRD_WS+3}], s{sT0} offen offset:{64*j}")
        a(f"buffer_load_dwordx4 {q(REC+8*j+4)}, v39, s[{SRD_WS}:{SRD_WS+3}], s{sT0} offen offset:{64*j+16}")
    a.label("K2_REC_ISSUED")
    a("s_mov_b64 exec, -1")
    a("s_barrier")
    a("v_mov_b32 v37, 1")
    a(f"v_mov_b32 v38, {L_FLAG}")
    a(f"s_mov_b64 exec, s[{sMK}:{sMK+1}]")
    a("ds_write_b32 v38, v37")
    a("s_mov_b64 exec, -1")
    a(f"s_mov_b32 s{sT0}, {L_CNT}")
    a("s_waitcnt vmcnt(0) lgkmcnt(0)")
    stamp()
    for j in range(RMAX):
        a(f"v_cmp_lt_u32 vcc, {j}, v36")
        a("s_and_b64 exec, exec, vcc")
        a("s_cbranch_execz K2_AFTER_REC")
        a(f"v_lshl_add_u32 v{AD+j}, v{REC+8*j+1}, 2, s{sT0}")
        a(f"ds_add_rtn_u32 v{RK+j}, v{AD+j}, v37 ; NOWAIT")
    a.label("K2_AFTER_REC")
    a("s_mov_b64 exec, -1")
    a("s_waitcnt lgkmcnt(0)")
    a("s_barrier")
    a.label("K2_AFTER_B1")
    stamp()
    SC = 176
    a(f"v_lshlrev_b32 v{SC}, 3, v{vLANE}")
    a(f"v_add_u32 v{SC}, {L_CNT}, v{SC}")
    a(f"v_mov_b32 v{SC+1}, {L_FLAG}")
    a(f"ds_read_b32 v{SC+1}, v{SC+1}")
    a(f"ds_read_b64 v[{SC+2}:{SC+3}], v{SC}")
    a(f"v_add_u32 v{SC+4}, v{SC+2}, v{SC+3}")
    a(f"v_mov_b32 v{SC+5}, v{SC+4}")
    wave_scan(a, SC + 5)
    a(f"v_sub_u32 v{SC+6}, v{SC+5}, v{SC+4}")
    a(f"v_add_u32 v{SC+7}, v{SC+6}, v{SC+2}")
    a(f"ds_write_b64 v{SC}, v[{SC+6}:{SC+7}] offset:{L_P-L_CNT} ; NOWAIT")
    a(f"v_readlane_b32 s{sTOT}, v{SC+5}, 63")
    a(f"v_readfirstlane_b32 s{sMORE}, v{SC+1}")
    a(f"v_lshl_or_b32 v{vP}, v{SC+7}, 16, v{SC+6}")
    a(f"s_cmp_le_u32 s{sTOT}, {CAP}")
    a("s_cbranch_scc1 K2_FITS")
    a(f"s_mov_b32 s{sR}, {RSLOW}")
    a("s_waitcnt lgkmcnt(0)")
    a("s_barrier")
    zero_counters()
    a("s_branch K2_ROUND")
    a.label("K2_FITS")
    a(f"s_cmp_ge_u32 s{sWAVE}, 4")
    a("s_cbranch_scc1 K2_PREAD")
    for j in range(RMAX):
        a(f"v_cmp_lt_u32 vcc, {j}, v36")
        a("s_and_b64 exec, exec, vcc")
        a("s_cbranch_execz K2_PREAD")
        a(f"ds_read_b32 v{AD+j}, v{AD+j} offset:{L_P-L_CNT} ; NOWAIT")
    a.label("K2_PREAD")
    a("s_mov_b64 exec, -1")
    for i in range(1, 5):
        a(f"ds_read_b64 v[{SC+6+2*i}:{SC+7+2*i}], v{SC} offset:{L_P-L_CNT+8*i} ; NOWAIT")
    a("s_waitcnt lgkmcnt(0)")
    a(f"s_cmp_ge_u32 s{sWAVE}, 4")
    a("s_cbranch_scc1 K2_SCATTERED")
    for j in range(RMAX):
        a(f"v_cmp_lt_u32 vcc, {j}, v36")
        a("s_and_b64 exec, exec, vcc")
        a("s_cbranch_execz K2_SCATTERED")
        a(f"v_add_lshl_u32 v{AD+j}, v{AD+j}, v{RK+j}, 5")
        a(f"v_add_u32 v{AD+j}, {L_REC}, v{AD+j}")
        a(f"ds_write_b128 v{AD+j}, {q(REC+8*j)} ; NOWAIT")
        a(f"ds_write_b128 v{AD+j}, {q(REC+8*j+4)} offset:16 ; NOWAIT")
    a.label("K2_SCATTERED")
    a("s_mov_b64 exec, -1")
    PV = SC + 6
    for h in range(2):
        lim, cnt = SC + 20 + 2 * h, SC + 21 + 2 * h
        a(f"v_add_u32 v{lim}, 16, v{PV+h}")
        a(f"v_lshl_add_u32 v{cnt}, v{vLANE}, 1, {h+1}")
        for k in range(2, 9):
            a(f"v_cmp_le_u32_e64 s[{sMK+2*k}:{sMK+2*k+1}], v{PV+h+k}, v{lim}")
        for k in range(2, 9):
            a(f"v_addc_co_u32_e64 v{cnt}, vcc, 0, v{cnt}, s[{sMK+2*k}:{sMK+2*k+1}]")
        a(f"v_min_u32 v{cnt}, s{sNB}, v{cnt}")
    a(f"v_lshl_or_b32 v{vNEXT}, v{SC+23}, 8, v{SC+21}")
    a(f"s_mov_b32 s{sPOS}, 0")
    a(f"s_mov_b32 s{cN0}, s{sWAVE}")
    a.label("K2_WALK0")
    a(f"s_cmp_eq_u32 s{cN0}, 0")
    a("s_cbranch_scc1 K2_WALK0_DONE")
    advance(a)
    a(f"s_sub_u32 s{cN0}, s{cN0}, 1")
    a("s_branch K2_WALK0")
    a.label("K2_WALK0_DONE")
    next_item(a, 0, allow_cont=False)
    a(f"s_mov_b32 s{sFIRST}, 1")
    a(f"s_cmp_lg_u32 s{sWAVE}, 7")
    a("s_cbranch_scc1 K2_NOPUB")
    a(f"v_mov_b32 v{SC}, {L_FLAG+12}")
    a(f"v_mov_b32 v{SC+1}, s{sPOS}")
    a(f"ds_write_b32 v{SC}, v{SC+1}")
    a.label("K2_NOPUB")
    stamp()
    a("s_waitcnt lgkmcnt(0)")
    a("s_barrier")
    stamp()
    mk = MaskAlloc()
    emit_h_addr(a, mk, vHA)
    emit_h_loads(a)
    def b3_code(tag, younger=12):
        a(f"s_waitcnt vmcnt({younger + (touch if w1 == 25 else 0)})")
        a("s_barrier")
        a(f"s_mov_b32 s{sB3}, 0")
        a(f"s_cmp_eq_u32 s{sSIG}, 0")
        a(f"s_cbranch_scc1 K2_NOSTG{tag}")
        a(f"s_add_u32 s{sT0}, s{sBASE}, s{sL0}")
        a(f"s_lshl_b32 s{sT0}, s{sT0}, 10")
        a(f"s_add_u32 s{sT0}, s{sT0}, s{sDMA}")
        a(f"s_add_u32 m0, s{sDMA}, {L_OWN}")
        for i in range(NL // 4):
            a(f"buffer_load_dwordx4 v{vWB0}, s[{SRD_SV}:{SRD_SV+3}], s{sT0} offen lds")
            a("s_add_u32 m0, m0, 0x1000")
            a(f"s_add_u32 s{sT0}, s{sT0}, 0x1000")
        if tag == "A":
            a(f"s_add_u32 s{sHW}, s{sHW}, 1")
        else:
            a(f"s_mov_b32 s{sFIRST}, 0")
        a.label(f"K2_NOSTG{tag}")

    if vt:
        a(f"s_cmp_ge_u32 s{sWAVE}, {vt}")
        a("s_cbranch_scc1 K2_NOVT")
        t = PH0
        a(f"v_lshrrev_b32 v{t}, 2, v{vLANE}")
        a(f"v_cmp_gt_u32_e64 s[{sMK}:{sMK+1}], s{nNE}, v{t}")
        a(f"v_lshlrev_b32 v{t}, 5, v{t}")
        a(f"v_add_u32 v{t}, {L_REC}, v{t}")
        a(f"v_add_u32 v{t}, s{sNE32}, v{t}")
        a(f"ds_read_b32 v{t+1}, v{t}")
        a(f"v_and_b32 v{t+2}, 3, v{vLANE}")
        a(f"v_cmp_gt_u32_e64 s[{sMK+2}:{sMK+3}], 2, v{t+2}")
        a(f"v_lshl_add_u32 v{t+1}, v{t+2}, 7, v{t+1}")
        a(f"v_cndmask_b32_e64 v{t+1}, v{vOOB}, v{t+1}, s[{sMK}:{sMK+1}]")
        a(f"v_cndmask_b32_e64 v{t+2}, v{vOOB}, v{t+1}, s[{sMK+2}:{sMK+3}]")
        a(f"buffer_load_dword v{V0}, v{t+1}, s[{SRD_SV}:{SRD_SV+3}], 0 offen offset:256")
        a(f"buffer_load_dword v{V0+1}, v{t+2}, s[{SRD_SV}:{SRD_SV+3}], 0 offen offset:768")
        a(f"s_mov_b32 s{sFIRST}, 3")
        a.label("K2_NOVT")
    if b3in:
        a(f"s_mov_b32 s{sB3}, 1")
    else:
        b3_code("P", 4)
    a.label("K2_LOOP")
    stamp()
    for cs, ns in ((cN0, nN0), (cNN, nNN), (cEB, nEB), (cNE, nNE), (cE1, nE1), (cOFF, nOFF), (sCE32, sNE32),
                   (SRD_OWN, nSRC), (SRD_OWN + 1, nSRC + 1)):
        a(f"s_mov_b32 s{cs}, s{ns}")
    a(f"s_cmp_eq_u32 s{cNN}, 0")
    a("s_cbranch_scc1 K2_DONE")
    a(f"v_mov_b32 v{T[18]}, {L_FLAG+8}")
    a(f"v_add_u32 v{T[16]}, s{sCE32}, v{vRB}")
    a(f"v_add_u32 v{T[17]}, s{sCE32}, v{vRECQ}")
    a(f"ds_read_b64 v[{T[24]}:{T[25]}], v{T[18]}")
    for r in range(4):
        a(f"ds_read_b128 {q(T[4*r])}, v{T[17]} offset:{32*r}")
    a(f"ds_read_b64 {d(vRBOP)}, v{T[16]}")
    mk = MaskAlloc()
    m0_, m1_ = mk(), mk()
    a(f"v_cmp_gt_u32_e64 {m0_}, s{cNN}, v{v2Q}")
    a(f"v_add_u32 v{T[30]}, 1, v{v2Q}")
    a(f"v_add_u32 v{T[31]}, 0x400, v{vOWN0}")
    a(f"v_cmp_gt_u32_e64 {m1_}, s{cNN}, v{T[30]}")
    a(f"v_cndmask_b32_e64 v{vOA0}, v{vOOB}, v{vOWN0}, {m0_}")
    ms = []
    for r in range(4):
        m = mk()
        ms.append(m)
        a(f"v_add_u32 v{T[20+r]}, {r}, v{vQ4}")
        a(f"v_cmp_gt_u32_e64 {m}, s{cNE}, v{T[20+r]}")
    a(f"v_cndmask_b32_e64 v{vOA1}, v{vOOB}, v{T[31]}, {m1_}")
    a(f"s_sub_u32 s{sT0}, s{cN0}, s{sL0}")
    a(f"s_lshl_b32 s{sT0}, s{sT0}, 10")
    a(f"s_add_u32 s{sT0}, s{sT0}, {L_OWN}")
    a(f"v_add_u32 v{T[19]}, s{sT0}, v{vOWN0}")
    a(f"s_xor_b32 s{sHW}, s{sFIRST}, 1")
    a(f"s_mov_b32 s{sFIRST}, 0")
    a(f"v_readfirstlane_b32 s{sT0}, v{T[24]}")
    a(f"v_readfirstlane_b32 s{tPOS}, v{T[25]}")
    for r in range(4):
        a(f"v_add_u32 v{vVA+r}, v{T[4*r]}, v{vN16}")
        a(f"v_cndmask_b32_e64 v{vVA+r}, v{vOOB}, v{vVA+r}, {ms[r]}")
        a(f"v_subrev_u32 v{T[4*r+1]}, s{cN0}, v{T[4*r+1]}")
        a(f"v_cndmask_b32_e64 v{T[4*r+1]}, -2, v{T[4*r+1]}, {ms[r]}")
    a("s_waitcnt lgkmcnt(0)")
    if exp == 1:
        a("s_waitcnt vmcnt(0)")
    a(f"s_cmp_eq_u32 s{sT0}, {4 if usel else 77}")
    a(f"s_cselect_b32 s{sT0}, s{nLDS}, 0")
    if ownin:
        a("s_branch K2_OWN_DONE")
    a(f"s_cmp_eq_u32 s{sT0}, 0")
    a("s_cbranch_scc1 K2_OWN_GLOBAL")
    for c in range(4):
        for h in range(2):
            a(f"ds_read_b128 {q(Oq(c,h))}, v{T[19]} offset:{1024*h+256*c} ; NOWAIT")
    a("s_branch K2_OWN_DONE")
    a.label("K2_OWN_GLOBAL")
    a(f"s_cmp_eq_u32 s{tCONT}, 0")
    a("s_cbranch_scc1 K2_OWN_GO")
    a("s_waitcnt vmcnt(0)")
    a.label("K2_OWN_GO")
    for c in range(4):
        for h, va in ((0, vOA0), (1, vOA1)):
            a(f"buffer_load_dwordx4 {q(Oq(c,h))}, v{va}, s[{SRD_OWN}:{SRD_OWN+3}], s{cOFF} offen offset:{256*c}{NTO if c == 0 else ''}")
    a(f"s_add_u32 s{sHW}, s{sHW}, 1")
    a.label("K2_OWN_DONE")
    if b3in:
        a(f"s_cmp_eq_u32 s{sB3}, 0")
        a("s_cbranch_scc1 K2_NOB3")
        b3_code("A")
        a.label("K2_NOB3")
    stamp()
    a(f"s_cmp_eq_u32 s{sHW}, 1")
    a("s_cbranch_scc1 K2_HW1")
    a(f"s_cmp_eq_u32 s{sHW}, 2")
    a("s_cbranch_scc1 K2_HW2")
    a(f"s_cmp_eq_u32 s{sHW}, 3")
    a("s_cbranch_scc1 K2_HW3")
    a(f"s_cmp_eq_u32 s{sHW}, 4")
    a("s_cbranch_scc1 K2_HW2")
    a("s_waitcnt vmcnt(0)")
    a.label("K2_HW1")
    a("s_waitcnt vmcnt(8)")
    a.label("K2_HW3")
    a("s_waitcnt vmcnt(10)")
    a.label("K2_HW2")
    a("s_waitcnt vmcnt(16) lgkmcnt(0)")
    stamp()
    a(f"s_cmp_eq_u32 s{cNE}, 0")
    a("s_cbranch_scc1 K2_COPY")
    if not memonly:
        SPLITS.clear()
        full = item_block().ins
        b0, t0 = schedule(full[:SPLITS[0]], lds_lat=ldsl)
        blk, t = schedule(full[SPLITS[0]:], lds_lat=ldsl)
        print("item block: %d + %d instructions, modelled %d + %d cycles" % (len(b0), len(blk), t0, t))
        i1 = next(i for i, x in enumerate(blk) if "vmcnt(16)" in x.text)
        blk = blk[:i1] + [Ins("s_setprio 0")] + blk[i1:]
        a("s_setprio 2")
        a.extend(b0)
        claim(a, "", MVV0)
        i1 = next(i for i, x in enumerate(blk) if "vmcnt(16)" in x.text)
        a.extend(blk[:i1 + 1])
        a(f"s_cmp_eq_u32 s{sSIG}, 0")
        a("s_cbranch_scc1 K2_NOSIG")
        a(f"v_mov_b32 v{PH0}, {L_FLAG+8}")
        a(f"v_mov_b32 v{PH0+1}, 1")
        a("s_mov_b64 exec, 1")
        a(f"ds_add_u32 v{PH0}, v{PH0+1}")
        a("s_mov_b64 exec, -1")
        a(f"s_mov_b32 s{sSIG}, 0")
        a.label("K2_NOSIG")
        a.extend(blk[i1 + 1:])
        a("s_branch K2_LOOP")
    a.label("K2_COPY")
    a.extend(item_block(memonly=True).ins)
    a("s_branch K2_LOOP")
    a.label("K2_DONE")
    if b3in:
        a(f"s_cmp_eq_u32 s{sB3}, 0")
        a("s_cbranch_scc1 K2_DONE2")
        a("s_waitcnt vmcnt(0)")
        a("s_barrier")
        a(f"s_mov_b32 s{sB3}, 0")
        a.label("K2_DONE2")
    if stamps:
        a("s_waitcnt vmcnt(0)")
        stamp()
        rstamp(31)
        a(f"v_lshlrev_b32 v252, 2, v{vLANE}")
        a(f"v_add_u32 v253, s{sST+1}, v252")
        a("ds_read_b32 v254, v253")
        a("s_lshl_b32 s10, s2, 3")
        a(f"s_add_u32 s10, s10, s{sWAVE}")
        a("s_lshl_b32 s10, s10, 7")
        a(f"s_add_u32 s10, s10, {WS_STAMP2}")
        a(f"s_mov_b64 exec, 0xffffffff")
        a(f"buffer_store_dword v254, v252, s[{SRD_WS}:{SRD_WS+3}], s10 offen")
        a("s_mov_b64 exec, -1")
    a(f"s_cmp_eq_u32 s{sMORE}, 0")
    a("s_cbranch_scc1 K2_END")
    a(f"s_add_u32 s{sJ0}, s{sJ0}, s{sR}")
    a(f"s_mov_b32 s{sROUND}, 1")
    a(f"s_mov_b32 s{sSIG}, 0")
    a("s_waitcnt vmcnt(0)")
    desc_addr()
    desc_load()
    a("s_waitcnt vmcnt(0)")
    a("s_barrier")
    zero_counters()
    a("s_branch K2_ROUND")
    a.label("K2_END")
    a("s_endpgm")
    return a
```

```python
from asmlib import Asm, Ins, schedule

N = 25000
E = 400000
G = 125
EPG = 3200
BIN_MAGIC = 43980480

WS_W2 = 0
WS_WR = 98304
WS_WEND = 101376
WS_DESC = 0x40000
WS_REC = 0x100000
WS_H = 0xE00000
WS_STAMP1 = 0x1500000
WS_STAMP2 = 0x1600000
WS_SIZE = 0x2000000

K1_CNT = 150528
K1_P = K1_CNT + 1024
K1_LDS = K1_P + 1024
K1_STAMP = K1_LDS


def srd(a, d, base, size):
    a(f"s_mov_b32 s{d}, s{base}")
    a(f"s_mov_b32 s{d+1}, s{base+1}")
    a(f"s_mov_b32 s{d+2}, {size}")
    a(f"s_mov_b32 s{d+3}, 0x00020000")


def wave_scan(a, v):
    for sh in (1, 2, 4, 8):
        a(f"v_add_u32_dpp v{v}, v{v}, v{v} row_shr:{sh} row_mask:0xf bank_mask:0xf bound_ctrl:0")
    a(f"v_add_u32_dpp v{v}, v{v}, v{v} row_bcast:15 row_mask:0xa bank_mask:0xf")
    a(f"v_add_u32_dpp v{v}, v{v}, v{v} row_bcast:31 row_mask:0xc bank_mask:0xf")


def q(b):
    return f"v[{b}:{b+3}]"


def gen_k1(stamps=False, pf=2, early_s=False, rot=True, nte=False, ntp=False, nts=False, ntw=False, st1="", sth="", pfv=0, scan1=False, te=False, th=False, ua=0, cpf=0, cp0=0, tlbw=0, pfrows=98, sloop=True, cpe=False):
    a = Asm()
    NTE = " nt" if nte else ""
    NTP = " nt" if ntp else ""
    NTS = " nt" if nts else ""
    NTW = " nt" if ntw else ""

    def touch():
        if not pf:
            return
        a("s_mul_i32 s92, s2, 3125")
        a("s_add_u32 s92, s92, 31")
        a("s_lshr_b32 s92, s92, 5")
        a("s_lshl_b32 s92, s92, 10")
        a("v_lshlrev_b32 v122, 7, v0")
        a(f"v_cmp_gt_u32 vcc, {8*pfrows}, v0")
        a("v_mov_b32 v123, 0x40000000")
        a("v_cndmask_b32 v122, v123, v122, vcc")
        a("buffer_load_dword v120, v122, s[84:87], s92 offen" + (" nt" if pf == 1 else ""))

    def stamp():
        if not stamps:
            return
        a("s_mov_b64 s[76:77], exec")
        a("s_mov_b64 exec, -1")
        a("s_memtime s[74:75]")
        a("s_waitcnt lgkmcnt(0)")
        a("v_mov_b32 v124, s74")
        a("v_mov_b32 v125, s78")
        a("ds_write_b32 v125, v124")
        a("s_add_u32 s78, s78, 4")
        a("s_mov_b64 exec, s[76:77]")

    a.label("edge_bin_kernel")
    a("s_cmp_ge_u32 s2, 256")
    a("s_cbranch_scc1 K1_END")
    if stamps:
        a("v_lshrrev_b32 v124, 6, v0")
        a("v_readfirstlane_b32 s78, v124")
        a("s_lshl_b32 s78, s78, 6")
        a(f"s_add_u32 s78, s78, {K1_STAMP}")
        a("s_mov_b32 s79, s78")
        a("v_and_b32 v124, 15, v0")
        a("v_lshlrev_b32 v124, 2, v124")
        a("v_add_u32 v124, s78, v124")
        a("v_mov_b32 v125, 0")
        a("ds_write_b32 v124, v125")
        stamp()
    a("s_load_dwordx2 s[24:25], s[0:1], 16")
    a("s_load_dwordx2 s[28:29], s[0:1], 24")
    a("s_load_dwordx2 s[20:21], s[0:1], 8")
    a("s_load_dwordx2 s[36:37], s[0:1], 40")
    a("s_load_dwordx2 s[84:85], s[0:1], 0")
    a("v_lshrrev_b32 v1, 6, v0")
    a("v_and_b32 v6, 63, v0")
    a("s_lshr_b32 s53, s2, 4")
    a("v_readfirstlane_b32 s3, v1")
    a("s_lshl_b32 s53, s53, 3")
    a("s_and_b32 s54, s2, 7")
    a("s_or_b32 s73, s53, s54")
    a("v_lshlrev_b32 v9, 4, v6")
    a("s_mov_b32 s27, 0x00020000")

    def rest_setup(tag):
        a("s_load_dwordx2 s[32:33], s[0:1], 80")
        a("s_load_dwordx2 s[10:11], s[0:1], 32")
        a("s_load_dwordx2 s[40:41], s[0:1], 48")
        a("s_load_dwordx2 s[44:45], s[0:1], 56")
        a("s_mov_b32 s52, 0xffff0000")
        for d_, size in ((84, N * 1024), (32, WS_SIZE), (40, 128 * 384 * 2), (44, 4 * 384 * 2), (88, N * 256)):
            a(f"s_mov_b32 s{d_+2}, {size}")
            a(f"s_mov_b32 s{d_+3}, s27")
        a("s_waitcnt lgkmcnt(0)")
        a(f"s_add_u32 s88, s32, {WS_H}")
        a("s_addc_u32 s89, s33, 0")

    def code_prefetch(tag):
        if not cp0:
            return
        a("s_getpc_b64 s[60:61]")
        a.ins.append(Ins(f"K1_PC{tag}: ; SOFT"))
        a(f"s_sub_u32 s60, s60, K1_PC{tag}-edge_bin_kernel")
        a("s_subb_u32 s61, s61, 0")
        a("v_lshlrev_b32 v12, 7, v0")
        a(f"v_min_u32 v12, K2_END-edge_bin_kernel, v12")
        a("v_cmp_gt_u32 vcc, 0xc0, v0")
        a("s_and_b64 exec, exec, vcc")
        a("global_load_dword v121, v12, s[60:61]")
        a("s_mov_b64 exec, -1")

    a("s_bitcmp1_b32 s2, 3 ; KEEP")
    a.ins.append(Ins("s_cbranch_scc1 K1_HROLE ; NODRAIN"))
    a(f"s_cmp_ge_u32 s73, {G}")
    a.ins.append(Ins("s_cbranch_scc1 K1_HROLE2 ; NODRAIN"))
    if cpe:
        a("s_getpc_b64 s[60:61]")
        a.ins.append(Ins("K1_PCE: ; SOFT"))
        a("v_lshlrev_b32 v12, 7, v0")
        a("v_min_u32 v12, K1_END-K1_PCE, v12")
        a("v_cmp_gt_u32 vcc, 64, v0")
        a("s_and_b64 exec, exec, vcc")
        a("global_load_dword v121, v12, s[60:61]")
        a("s_mov_b64 exec, -1")
    a(f"s_mov_b32 s26, {E*4}")
    a("s_mov_b32 s30, s26")
    a("s_mov_b32 s31, s27")
    a(f"s_mul_i32 s53, s73, {EPG*4}")
    a("v_lshlrev_b32 v7, 4, v0")
    a("v_cmp_gt_u32 vcc, 800, v0")
    a("v_mov_b32 v8, 0x40000000")
    a("s_mov_b64 s[50:51], vcc")
    a("v_cndmask_b32 v7, v8, v7, vcc")
    a(f"s_mov_b32 s22, {N*6}")
    a("s_mov_b32 s23, s27")
    a("s_waitcnt lgkmcnt(0)")
    stamp()
    if te:
        a("s_cmp_ge_u32 s3, 4")
        a("s_cbranch_scc1 K1_NOTOUCH")
        a("v_and_b32 v10, 0x7f, v0")
        a("v_lshlrev_b32 v10, 7, v10")
        a(f"v_cmp_gt_u32 vcc, {EPG*4}, v10")
        a("v_cndmask_b32 v10, v8, v10, vcc")
        a("s_cmp_ge_u32 s3, 2")
        a("s_cbranch_scc1 K1_TOUCHD")
        a("buffer_load_dword v120, v10, s[24:27], s53 offen" + NTE)
        a("s_branch K1_NOTOUCH")
        a.label("K1_TOUCHD")
        a("buffer_load_dword v120, v10, s[28:31], s53 offen" + NTE)
        a.label("K1_NOTOUCH")
    a("buffer_load_dwordx4 v[56:59], v7, s[24:27], s53 offen" + NTE)
    a("buffer_load_dwordx4 v[60:63], v7, s[28:31], s53 offen" + NTE)
    a("s_lshr_b32 s54, s73, 3")
    a("s_mul_i32 s54, s54, 5")
    a("s_lshr_b32 s54, s54, 3")
    if not rot:
        a("s_mov_b32 s54, 0")
    a("s_lshl_b32 s54, s54, 4")
    a("s_add_u32 s54, s54, s3")
    a("s_lshl_b32 m0, s54, 10")
    if sloop:
        a("s_movk_i32 s56, 10")
        a.label("K1_STG")
        a(f"s_cmp_ge_u32 m0, {147*1024}")
        a("s_cbranch_scc1 K1_SKIP")
        a(f"buffer_load_dwordx4 v9, s[20:23], m0 offen{NTP} lds")
        a.label("K1_SKIP")
        a("s_add_u32 m0, m0, 0x4000")
        a(f"s_sub_u32 s54, m0, {160*1024}")
        a("s_cselect_b32 m0, m0, s54")
        a("s_sub_u32 s56, s56, 1")
        a("s_cmp_lg_u32 s56, 0")
        a("s_cbranch_scc1 K1_STG")
    else:
        for k in range(10):
            a(f"s_cmp_ge_u32 m0, {147*1024}")
            a(f"s_cbranch_scc1 K1_SKIP{k}")
            a(f"buffer_load_dwordx4 v9, s[20:23], m0 offen{NTP} lds")
            a.label(f"K1_SKIP{k}")
            if k < 9:
                a("s_add_u32 m0, m0, 0x4000")
                a(f"s_sub_u32 s54, m0, {160*1024}")
                a(f"s_cmp_ge_u32 m0, {160*1024}")
                a("s_cselect_b32 m0, s54, m0")
    rest_setup("E")
    a("s_load_dwordx2 s[48:49], s[10:11], 0")
    a("v_lshlrev_b32 v10, 2, v0")
    a(f"v_add_u32 v10, {K1_CNT}, v10")
    a("v_mov_b32 v11, 0")
    a("v_cmp_gt_u32 vcc, 256, v0")
    a("s_and_saveexec_b64 s[56:57], vcc")
    a("ds_write_b32 v10, v11")
    a("s_mov_b64 exec, s[56:57]")
    a(f"s_mov_b32 s55, {BIN_MAGIC}")
    a(f"s_mov_b32 s58, {K1_CNT}")
    a("s_movk_i32 s59, 0x200")
    a("v_mov_b32 v5, 1")
    for e in range(4):
        a(f"s_mov_b64 s[{60+2*e}:{61+2*e}], 0")
    SRC, DST = 56, 60
    AD = 64
    SH = 72
    CA = 80
    RK = 84
    PP = 88
    EN = 104
    a("s_waitcnt vmcnt(9)")
    for i in range(8):
        r = SRC + i
        a(f"v_mul_u32_u24 v{AD+i}, 6, v{r}")
        if ua != 2:
            a(f"v_and_b32 v{AD+i}, -4, v{AD+i}")
            a(f"v_and_b32 v{SH+i}, 1, v{r}")
            a(f"v_lshlrev_b32 v{SH+i}, 4, v{SH+i}")
    for e in range(4):
        a(f"v_mul_hi_u32 v{CA+e}, v{DST+e}, s55")
        a(f"v_lshl_add_u32 v{CA+e}, v{CA+e}, 2, s58")
        a(f"v_mov_b32 v{EN+4*e}, v{SRC+e}")
        a(f"v_mov_b32 v{EN+4*e+1}, v{DST+e}")
    stamp()
    a("s_waitcnt vmcnt(0) lgkmcnt(0)")
    stamp()
    a("s_barrier")
    stamp()
    touch()
    a("s_mov_b64 exec, s[50:51]")
    a("s_cbranch_execz K1_PHASE_B")
    for e in range(4):
        for i in (e, 4 + e):
            if ua:
                a(f"ds_read_b64 v[{PP+2*i}:{PP+2*i+1}], v{AD+i}")
            else:
                a(f"ds_read2_b32 v[{PP+2*i}:{PP+2*i+1}], v{AD+i} offset0:0 offset1:1")
    for e in range(4):
        s, d = PP + 2 * e, PP + 8 + 2 * e
        t = 12 + 8 * e
        if ua != 2:
            a(f"v_lshrrev_b64 v[{s}:{s+1}], v{SH+e}, v[{s}:{s+1}]")
            a(f"v_lshrrev_b64 v[{d}:{d+1}], v{SH+4+e}, v[{d}:{d+1}]")
        a(f"v_lshlrev_b32 v{t}, 16, v{s}")
        a(f"v_lshlrev_b32 v{t+1}, 16, v{d}")
        a(f"v_and_b32 v{t+2}, s52, v{s}")
        a(f"v_and_b32 v{t+3}, s52, v{d}")
        a(f"v_lshlrev_b32 v{t+4}, 16, v{s+1}")
        a(f"v_lshlrev_b32 v{t+5}, 16, v{d+1}")
        a(f"v_sub_f32 v{t}, v{t}, v{t+1}")
        a(f"v_sub_f32 v{t+2}, v{t+2}, v{t+3}")
        a(f"v_sub_f32 v{EN+4*e+3}, v{t+4}, v{t+5}")
        a(f"v_cvt_pk_bf16_f32 v{EN+4*e+2}, v{t}, v{t+2}")
        a(f"v_mul_f32 v{t+1}, v{t}, v{t}")
        a(f"v_fmac_f32 v{t+1}, v{t+2}, v{t+2}")
        a(f"v_fmac_f32 v{t+1}, v{EN+4*e+3}, v{EN+4*e+3}")
        a(f"v_cmp_nlt_f32 vcc, 0x41c20000, v{t+1}")
        a(f"v_cmp_class_f32_e64 s[{60+2*e}:{61+2*e}], v{t+1}, s59")
        a(f"s_or_b64 s[{60+2*e}:{61+2*e}], s[{60+2*e}:{61+2*e}], vcc")
        a(f"s_mov_b64 exec, s[{60+2*e}:{61+2*e}]")
        a(f"ds_add_rtn_u32 v{RK+e}, v{CA+e}, v5")
        a("s_mov_b64 exec, s[50:51]")
    a.label("K1_PHASE_B")
    a("s_mov_b64 exec, -1")
    stamp()
    a("s_barrier")
    stamp()
    if scan1:
        a("s_cmp_lg_u32 s3, 15")
        a("s_cbranch_scc1 K1_NODESC")
        a("s_setprio 3")
    a(f"v_add_u32 v10, {K1_CNT}, v9")
    a("ds_read_b128 v[12:15], v10")
    a("v_add_u32 v17, v12, v13")
    a("v_add_u32 v18, v17, v14")
    a("v_add_u32 v19, v18, v15")
    a("v_mov_b32 v20, v19")
    wave_scan(a, 20)
    a("v_sub_u32 v24, v20, v19")
    a("v_add_u32 v25, v24, v12")
    a("v_add_u32 v26, v24, v17")
    a("v_add_u32 v27, v24, v18")
    a("ds_write_b128 v10, v[24:27] offset:1024")
    if scan1:
        a("ds_write_b32 v10, v20")
        a("s_waitcnt lgkmcnt(0)")
        a("s_barrier")
    else:
        a("v_readlane_b32 s68, v20, 63")
        a("s_cmp_lg_u32 s3, 15")
        a("s_cbranch_scc1 K1_NODESC")
    for i in range(4):
        a(f"v_lshl_or_b32 v{28+i}, v{12+i}, 16, v{24+i}")
    a("s_lshl_b32 s69, s73, 10")
    a(f"s_add_u32 s69, s69, {WS_DESC}")
    a("buffer_store_dwordx4 v[28:31], v9, s[32:35], s69 offen")
    if scan1:
        a("s_branch K1_SCANNED")
    a.label("K1_NODESC")
    if scan1:
        a("s_barrier")
        a.label("K1_SCANNED")
        a(f"v_mov_b32 v20, {K1_CNT + 63*16}")
        a("ds_read_b32 v20, v20")
    for e in range(4):
        a(f"s_mov_b64 exec, s[{60+2*e}:{61+2*e}]")
        a(f"ds_read_b32 v{12+e}, v{CA+e} offset:1024")
    for e in range(4):
        a(f"s_mov_b64 exec, s[{60+2*e}:{61+2*e}]")
        a(f"v_add_lshl_u32 v{12+e}, v{12+e}, v{RK+e}, 4")
        a(f"ds_write_b128 v{12+e}, {q(EN+4*e)}")
    a("s_mov_b64 exec, -1")
    if scan1:
        a("v_readfirstlane_b32 s68, v20")
    a("s_lshl_b32 s60, s48, 16")
    a("s_and_b32 s61, s48, s52")
    a("s_lshl_b32 s62, s49, 16")
    a("s_and_b32 s63, s49, s52")
    a(f"s_mul_i32 s69, s73, {EPG*32}")
    a(f"s_add_u32 s69, s69, {WS_REC}")
    a("s_movk_i32 s70, 3125")
    a("s_mov_b32 s71, 0x40a00000")
    stamp()
    a("s_barrier")
    stamp()
    a("v_mov_b32 v8, v0")
    a("s_lshl_b32 s72, s3, 6")
    a.label("K1_DENSE")
    a("s_cmp_ge_u32 s72, s68")
    a("s_cbranch_scc1 K1_FIN")
    a("v_cmp_gt_u32 vcc, s68, v8")
    a("s_and_b64 exec, exec, vcc")
    b = Asm()
    b("v_lshlrev_b32 v10, 4, v8")
    b("ds_read_b128 v[12:15], v10")
    b("v_cvt_pk_bf16_f32 v15, v15, v15")
    b("v_and_b32 v15, s52, v15")
    b("v_lshlrev_b32 v16, 16, v14")
    b("v_and_b32 v17, s52, v14")
    b("v_mul_f32 v18, v16, v16")
    b("v_mul_f32 v19, v17, v17")
    b("v_mul_f32 v20, v15, v15")
    b("v_cvt_pk_bf16_f32 v18, v18, v19")
    b("v_cvt_pk_bf16_f32 v20, v20, v20")
    b("v_and_b32 v19, s52, v18")
    b("v_lshlrev_b32 v18, 16, v18")
    b("v_and_b32 v20, s52, v20")
    b("v_add_f32 v18, v18, v19")
    b("v_add_f32 v18, v18, v20")
    b("v_cvt_pk_bf16_f32 v18, v18, v18")
    b("v_and_b32 v18, s52, v18")
    b("v_add_f32 v18, 0x322bcc77, v18")
    b("v_cvt_pk_bf16_f32 v18, v18, v18")
    b("v_and_b32 v18, s52, v18")
    b("v_sqrt_f32 v18, v18")
    b("v_mul_hi_u32 v21, v13, s55")
    b("v_mul_u32_u24 v21, s70, v21")
    b("v_add_u32 v21, 31, v21")
    b("v_lshrrev_b32 v21, 5, v21")
    b("v_lshlrev_b32 v44, 10, v12")
    b("v_sub_u32 v45, v13, v21")
    b("v_cvt_pk_bf16_f32 v18, v18, v18")
    b("v_and_b32 v18, s52, v18")
    b("v_rcp_f32 v19, v18")
    for k in range(4):
        b(f"v_mul_f32 v{22+k}, s{60+k}, v18")
    b("v_mul_f32 v26, 0x40490fdb, v18")
    b("v_cvt_pk_bf16_f32 v22, v22, v23")
    b("v_cvt_pk_bf16_f32 v24, v24, v25")
    b("v_cvt_pk_bf16_f32 v26, v26, v26")
    b("v_and_b32 v23, s52, v22")
    b("v_lshlrev_b32 v22, 16, v22")
    b("v_and_b32 v25, s52, v24")
    b("v_lshlrev_b32 v24, 16, v24")
    b("v_and_b32 v26, s52, v26")
    b("v_mul_f32 v26, 0x3e4ccccd, v26")
    b("v_cvt_pk_bf16_f32 v26, v26, v26")
    b("v_and_b32 v26, s52, v26")
    for k in range(5):
        b(f"v_mul_f32 v{22+k}, 0.15915494, v{22+k}")
    for k in range(5):
        b(f"v_rndne_f32 v{28+k}, v{22+k}")
    for k in range(5):
        b(f"v_sub_f32 v{22+k}, v{22+k}, v{28+k}")
    for k in range(4):
        b(f"v_sin_f32 v{22+k}, v{22+k}")
    b("v_cos_f32 v26, v26")
    b("v_mul_f32 v16, v16, v19")
    b("v_mul_f32 v17, v17, v19")
    b("v_mul_f32 v15, v15, v19")
    b("v_cvt_pk_bf16_f32 v46, v16, v17")
    b("v_cvt_pk_bf16_f32 v47, v15, 0")
    b("v_cvt_pk_bf16_f32 v22, v22, v23")
    b("v_cvt_pk_bf16_f32 v24, v24, v25")
    b("v_cvt_pk_bf16_f32 v26, v26, v26")
    b("v_and_b32 v23, s52, v22")
    b("v_lshlrev_b32 v22, 16, v22")
    b("v_and_b32 v25, s52, v24")
    b("v_lshlrev_b32 v24, 16, v24")
    b("v_and_b32 v26, s52, v26")
    for k in range(4):
        b(f"v_mul_f32 v{22+k}, v{22+k}, v19")
    b("v_add_f32 v26, 1.0, v26")
    b("v_cvt_pk_bf16_f32 v22, v22, v23")
    b("v_cvt_pk_bf16_f32 v24, v24, v25")
    b("v_cvt_pk_bf16_f32 v26, v26, v26")
    b("v_and_b32 v23, s52, v22")
    b("v_lshlrev_b32 v22, 16, v22")
    b("v_and_b32 v25, s52, v24")
    b("v_lshlrev_b32 v24, 16, v24")
    b("v_and_b32 v26, s52, v26")
    b("v_mul_f32 v26, 0.5, v26")
    b("v_mul_f32 v27, 0, v18")
    b("v_cmp_gt_f32 vcc, s71, v18")
    b("v_cndmask_b32 v26, v27, v26, vcc")
    for k in range(4):
        b(f"v_mul_f32 v{22+k}, v{22+k}, v26")
    b("v_cvt_pk_bf16_f32 v48, v22, v23")
    b("v_cvt_pk_bf16_f32 v49, v24, v25")
    b("v_lshlrev_b32 v28, 16, v48")
    b("v_and_b32 v29, s52, v48")
    b("v_lshlrev_b32 v30, 16, v49")
    b("v_and_b32 v31, s52, v49")
    for k in range(4):
        b(f"v_sub_f32 v{22+k}, v{22+k}, v{28+k}")
    b("v_cvt_pk_bf16_f32 v50, v22, v23")
    b("v_cvt_pk_bf16_f32 v51, v24, v25")
    b("v_lshlrev_b32 v11, 5, v8")
    b("buffer_store_dwordx4 v[44:47], v11, s[32:35], s69 offen " + st1)
    b("buffer_store_dwordx4 v[48:51], v11, s[32:35], s69 offen offset:16 " + st1)
    a.extend(schedule(b.ins)[0])
    a("v_add_u32 v8, 0x400, v8")
    a("s_add_u32 s72, s72, 0x400")
    a("s_branch K1_DENSE")
    a.label("K1_WJOB")
    a("s_cmp_eq_u32 s74, 12")
    a("s_cbranch_scc1 K1_WRBF")
    a("v_mul_u32_u24 v10, 6144, v8")
    a("v_lshl_add_u32 v10, v7, 4, v10")
    a("v_add_u32 v11, 3072, v10")
    a("s_and_b32 s55, s74, 3")
    a("s_lshr_b32 s57, s74, 2")
    a("s_mul_i32 s59, s55, 24576")
    a("s_lshl_b32 s60, s57, 8")
    a("s_add_u32 s59, s59, s60")
    for j in range(8):
        a(f"buffer_load_dwordx4 {q(12+4*j)}, v{10 + j//4}, s[40:43], s59 offen offset:{768*(j%4)}{NTW}")
    a("s_lshl_b32 s62, s57, 15")
    a("s_lshl_b32 s60, s55, 10")
    a("s_add_u32 s62, s62, s60")
    a("s_waitcnt vmcnt(0)")
    for T in range(8):
        o = 48 + 4 * T
        for jj in range(4):
            a(f"v_perm_b32 v{o+jj}, v{12+4*(2*jj+1)+T//2}, v{12+4*(2*jj)+T//2}, s{64+T%2}")
        a(f"buffer_store_dwordx4 {q(o)}, v9, s[32:35], s62 offen")
        a("s_add_u32 s62, s62, 0x1000")
    a("s_branch K1_END")
    a.label("K1_WRBF")
    for j in range(4):
        a(f"buffer_load_dwordx4 {q(12+4*j)}, v9, s[44:47], 0 offen offset:{768*j}")
    a("v_lshlrev_b32 v10, 10, v8")
    a("v_lshl_add_u32 v10, v7, 3, v10")
    a(f"s_mov_b32 s62, {WS_WR}")
    a("s_mov_b32 exec_hi, 0xffff")
    a("s_waitcnt vmcnt(0)")
    for T in range(8):
        o = 48 + 2 * T
        a(f"v_perm_b32 v{o}, v{16+T//2}, v{12+T//2}, s{64+T%2}")
        a(f"v_perm_b32 v{o+1}, v{24+T//2}, v{20+T//2}, s{64+T%2}")
        a(f"buffer_store_dwordx2 v[{o}:{o+1}], v10, s[32:35], s62 offen offset:{128*T}")
    a("s_branch K1_END")
    a.label("K1_HROLE2")
    a(f"s_add_u32 s73, s73, {128-G}")
    a.label("K1_HROLE")
    a(f"s_mov_b32 s38, {128*128*2}")
    a("s_mov_b32 s39, s27")
    a(f"s_mov_b32 s86, {N*1024}")
    a("s_mov_b32 s87, s27")
    a("v_and_b32 v7, 15, v0")
    a("v_bfe_u32 v8, v0, 4, 2")
    a("s_mov_b32 s64, 0x05040100")
    a("s_mov_b32 s65, 0x07060302")
    SA = 40
    a("s_cmp_ge_u32 s3, 4")
    a.ins.append(Ins("s_cbranch_scc1 K1_NOW1 ; NODRAIN"))
    a("v_lshlrev_b32 v10, 11, v8")
    a("v_lshl_add_u32 v10, v7, 4, v10")
    a("s_lshl_b32 s59, s3, 13")
    a("s_waitcnt lgkmcnt(0)")
    WR_ = 56
    for j in range(8):
        a(f"buffer_load_dwordx4 {q(WR_+4*j)}, v10, s[36:39], s59 offen offset:{256*j}")
    ncp = 0
    if cp0:
        a("s_getpc_b64 s[60:61]")
        a.ins.append(Ins("K1_PCH: ; SOFT"))
        a("s_sub_u32 s60, s60, K1_PCH-edge_bin_kernel")
        a("s_subb_u32 s61, s61, 0")
        a("v_lshlrev_b32 v12, 7, v0")
        a("v_min_u32 v12, K2_END-edge_bin_kernel, v12")
        a("global_load_dword v121, v12, s[60:61]")
        ncp = 1
    a("s_lshl_b32 s59, s3, 10")
    a("v_add_u32 v28, s59, v9")
    rest_setup("H")
    a(f"s_waitcnt vmcnt({ncp})")
    for T in range(8):
        o = 88 + 4 * T
        for jj in range(4):
            a(f"v_perm_b32 v{o+jj}, v{WR_+4*(2*jj+1)+T//2}, v{WR_+4*(2*jj)+T//2}, s{64+T%2}")
        a(f"ds_write_b128 v28, {q(o)} offset:{4096*T}")
    stamp()
    a("s_barrier")
    a("s_cmp_eq_u32 s3, 1")
    a("s_cbranch_scc1 K1_TLB")
    a("s_cmp_lg_u32 s3, 0")
    a("s_cbranch_scc1 K1_FIN")
    a("s_mov_b32 s74, s73")
    a("s_cmp_le_u32 s74, 12")
    a("s_cbranch_scc1 K1_WJOB")
    a("s_branch K1_FIN")
    a.label("K1_TLB")
    if tlbw:
        a("s_load_dwordx2 s[60:61], s[0:1], 64")
        a("v_lshlrev_b32 v12, 19, v6")
        a("buffer_load_dword v13, v12, s[84:87], 0 offen")
        a("s_waitcnt lgkmcnt(0)")
        a(f"s_mov_b32 s62, {N*1024}")
        a("s_mov_b32 s63, 0x00020000")
        a("buffer_load_dword v15, v12, s[60:63], 0 offen")
    a("s_branch K1_FIN")
    a.label("K1_NOW1")
    a("s_mul_i32 s57, s73, 12")
    a("s_add_u32 s57, s57, s3")
    a("s_sub_u32 s57, s57, 4")
    a("s_lshl_b32 s57, s57, 4")
    a("s_lshl_b32 s58, s57, 10")
    a("v_lshlrev_b32 v11, 10, v7")
    a("v_lshl_add_u32 v11, v8, 4, v11")
    rest_setup("T")
    if early_s:
        for t in range(4):
            a(f"buffer_load_dwordx4 {q(SA+4*t)}, v11, s[84:87], s58 offen offset:{64*t}{NTS}")
    stamp()
    a("s_barrier")
    stamp()
    a(f"s_cmp_ge_u32 s57, {N}")
    a("s_cbranch_scc1 K1_FIN")
    if not early_s:
        for t in range(4):
            a(f"buffer_load_dwordx4 {q(SA+4*t)}, v11, s[84:87], s58 offen offset:{64*t}{NTS}")
    b = Asm()
    RING = [56 + 4 * i for i in range(4)]
    D0 = 72
    TM = 12
    OUT = 104
    kf = [0]

    def pfw():
        if kf[0] < 32:
            b(f"ds_read_b128 {q(RING[kf[0] % 4])}, v9 offset:{1024*kf[0]}")
            kf[0] += 1
    for _ in range(4):
        pfw()
    b("s_waitcnt vmcnt(0)", guards=[f"v{SA+i}" for i in range(16)])
    k = 0
    for T in range(8):
        D = D0 + 4 * T
        for t in range(4):
            c = "0" if t == 0 else q(D)
            b(f"v_mfma_f32_16x16x32_bf16 {q(D)}, {q(SA+4*t)}, {q(RING[k % 4])}, {c}")
            k += 1
            pfw()
        for r in range(4):
            t = TM + (4 * T + r) % 16
            b(f"v_mul_f32 v{t}, 0xbfb8aa3b, v{D+r}")
            b(f"v_exp_f32 v{t}, v{t}")
            b(f"v_add_f32 v{t}, 1.0, v{t}")
            b(f"v_rcp_f32 v{t}, v{t}")
            b(f"v_mul_f32 v{D+r}, v{D+r}, v{t}")
        if T % 2 == 1:
            for r in range(4):
                b(f"v_cvt_pk_bf16_f32 v{OUT+4*r+T//2}, v{D-4+r}, v{D+r}")
    b("v_lshlrev_b32 v30, 10, v8")
    b("v_lshl_add_u32 v30, v7, 4, v30")
    b("s_lshl_b32 s58, s57, 8")
    for r in range(4):
        b(f"buffer_store_dwordx4 {q(OUT+4*r)}, v30, s[88:91], s58 offen offset:{256*r} {sth}")
    sch, tt = schedule(b.ins)
    print("K1 H tile: %d instructions, modelled %d cycles" % (len(sch), tt))
    a.extend(sch)
    a.label("K1_FIN")
    if stamps:
        stamp()
        a("s_waitcnt vmcnt(0)")
        stamp()
        a("s_mov_b64 exec, 0xffff")
        a("v_lshlrev_b32 v124, 2, v6")
        a("v_add_u32 v125, s79, v124")
        a("ds_read_b32 v126, v125")
        a("s_lshl_b32 s74, s2, 4")
        a("s_add_u32 s74, s74, s3")
        a("s_lshl_b32 s74, s74, 6")
        a(f"s_add_u32 s74, s74, {WS_STAMP1}")
        a("buffer_store_dword v126, v124, s[32:35], s74 offen")
    a.label("K1_END")
    a("s_endpgm")
    return a
```

```python
from asmlib import Asm, Ins, schedule

N = 25000
E = 400000
G = 125
EPG = 3200
BIN_MAGIC = 43980480

WS_W2 = 0
WS_WR = 98304
WS_WEND = 101376
WS_DESC = 0x40000
WS_REC = 0x100000
WS_H = 0xE00000
WS_STAMP1 = 0x1500000
WS_STAMP2 = 0x1600000
WS_SIZE = 0x2000000

K1_CNT = 150528
K1_P = K1_CNT + 1024
K1_LDS = K1_P + 1024
K1_STAMP = K1_LDS


def srd(a, d, base, size):
    a(f"s_mov_b32 s{d}, s{base}")
    a(f"s_mov_b32 s{d+1}, s{base+1}")
    a(f"s_mov_b32 s{d+2}, {size}")
    a(f"s_mov_b32 s{d+3}, 0x00020000")


def wave_scan(a, v):
    for sh in (1, 2, 4, 8):
        a(f"v_add_u32_dpp v{v}, v{v}, v{v} row_shr:{sh} row_mask:0xf bank_mask:0xf bound_ctrl:0")
    a(f"v_add_u32_dpp v{v}, v{v}, v{v} row_bcast:15 row_mask:0xa bank_mask:0xf")
    a(f"v_add_u32_dpp v{v}, v{v}, v{v} row_bcast:31 row_mask:0xc bank_mask:0xf")


def q(b):
    return f"v[{b}:{b+3}]"


def gen_k1(stamps=False, pf=2, early_s=False, rot=True, nte=False, ntp=False, nts=False, ntw=False, st1="", sth="", pfv=0, scan1=False, te=False, th=False, ua=0, cpf=0, cp0=0, tlbw=0, pfrows=98, sloop=True, cpe=False):
    a = Asm()
    NTE = " nt" if nte else ""
    NTP = " nt" if ntp else ""
    NTS = " nt" if nts else ""
    NTW = " nt" if ntw else ""

    def touch():
        if not pf:
            return
        a("s_mul_i32 s92, s2, 3125")
        a("s_add_u32 s92, s92, 31")
        a("s_lshr_b32 s92, s92, 5")
        a("s_lshl_b32 s92, s92, 10")
        a("v_lshlrev_b32 v122, 7, v0")
        a(f"v_cmp_gt_u32 vcc, {8*pfrows}, v0")
        a("v_mov_b32 v123, 0x40000000")
        a("v_cndmask_b32 v122, v123, v122, vcc")
        a("buffer_load_dword v120, v122, s[84:87], s92 offen" + (" nt" if pf == 1 else ""))

    def stamp():
        if not stamps:
            return
        a("s_mov_b64 s[76:77], exec")
        a("s_mov_b64 exec, -1")
        a("s_memtime s[74:75]")
        a("s_waitcnt lgkmcnt(0)")
        a("v_mov_b32 v124, s74")
        a("v_mov_b32 v125, s78")
        a("ds_write_b32 v125, v124")
        a("s_add_u32 s78, s78, 4")
        a("s_mov_b64 exec, s[76:77]")

    a.label("edge_bin_kernel")
    a("s_cmp_ge_u32 s2, 256")
    a("s_cbranch_scc1 K1_END")
    if stamps:
        a("v_lshrrev_b32 v124, 6, v0")
        a("v_readfirstlane_b32 s78, v124")
        a("s_lshl_b32 s78, s78, 6")
        a(f"s_add_u32 s78, s78, {K1_STAMP}")
        a("s_mov_b32 s79, s78")
        a("v_and_b32 v124, 15, v0")
        a("v_lshlrev_b32 v124, 2, v124")
        a("v_add_u32 v124, s78, v124")
        a("v_mov_b32 v125, 0")
        a("ds_write_b32 v124, v125")
        stamp()
    a("s_load_dwordx2 s[24:25], s[0:1], 16")
    a("s_load_dwordx2 s[28:29], s[0:1], 24")
    a("s_load_dwordx2 s[20:21], s[0:1], 8")
    a("s_load_dwordx2 s[36:37], s[0:1], 40")
    a("s_load_dwordx2 s[84:85], s[0:1], 0")
    a("v_lshrrev_b32 v1, 6, v0")
    a("v_and_b32 v6, 63, v0")
    a("s_lshr_b32 s53, s2, 4")
    a("v_readfirstlane_b32 s3, v1")
    a("s_lshl_b32 s53, s53, 3")
    a("s_and_b32 s54, s2, 7")
    a("s_or_b32 s73, s53, s54")
    a("v_lshlrev_b32 v9, 4, v6")
    a("s_mov_b32 s27, 0x00020000")

    def rest_setup(tag):
        a("s_load_dwordx2 s[32:33], s[0:1], 80")
        a("s_load_dwordx2 s[10:11], s[0:1], 32")
        a("s_load_dwordx2 s[40:41], s[0:1], 48")
        a("s_load_dwordx2 s[44:45], s[0:1], 56")
        a("s_mov_b32 s52, 0xffff0000")
        for d_, size in ((84, N * 1024), (32, WS_SIZE), (40, 128 * 384 * 2), (44, 4 * 384 * 2), (88, N * 256)):
            a(f"s_mov_b32 s{d_+2}, {size}")
            a(f"s_mov_b32 s{d_+3}, s27")
        a("s_waitcnt lgkmcnt(0)")
        a(f"s_add_u32 s88, s32, {WS_H}")
        a("s_addc_u32 s89, s33, 0")

    def code_prefetch(tag):
        if not cp0:
            return
        a("s_getpc_b64 s[60:61]")
        a.ins.append(Ins(f"K1_PC{tag}: ; SOFT"))
        a(f"s_sub_u32 s60, s60, K1_PC{tag}-edge_bin_kernel")
        a("s_subb_u32 s61, s61, 0")
        a("v_lshlrev_b32 v12, 7, v0")
        a(f"v_min_u32 v12, K2_END-edge_bin_kernel, v12")
        a("v_cmp_gt_u32 vcc, 0xc0, v0")
        a("s_and_b64 exec, exec, vcc")
        a("global_load_dword v121, v12, s[60:61]")
        a("s_mov_b64 exec, -1")

    a("s_bitcmp1_b32 s2, 3 ; KEEP")
    a.ins.append(Ins("s_cbranch_scc1 K1_HROLE ; NODRAIN"))
    a(f"s_cmp_ge_u32 s73, {G}")
    a.ins.append(Ins("s_cbranch_scc1 K1_WEIGHTS ; NODRAIN"))
    if cpe:
        a("s_getpc_b64 s[60:61]")
        a.ins.append(Ins("K1_PCE: ; SOFT"))
        a("v_lshlrev_b32 v12, 7, v0")
        a("v_min_u32 v12, K1_END-K1_PCE, v12")
        a("v_cmp_gt_u32 vcc, 64, v0")
        a("s_and_b64 exec, exec, vcc")
        a("global_load_dword v121, v12, s[60:61]")
        a("s_mov_b64 exec, -1")
    a(f"s_mov_b32 s26, {E*4}")
    a("s_mov_b32 s30, s26")
    a("s_mov_b32 s31, s27")
    a(f"s_mul_i32 s53, s73, {EPG*4}")
    a("v_lshlrev_b32 v7, 4, v0")
    a("v_cmp_gt_u32 vcc, 800, v0")
    a("v_mov_b32 v8, 0x40000000")
    a("s_mov_b64 s[50:51], vcc")
    a("v_cndmask_b32 v7, v8, v7, vcc")
    a(f"s_mov_b32 s22, {N*6}")
    a("s_mov_b32 s23, s27")
    a("s_waitcnt lgkmcnt(0)")
    stamp()
    if te:
        a("s_cmp_ge_u32 s3, 4")
        a("s_cbranch_scc1 K1_NOTOUCH")
        a("v_and_b32 v10, 0x7f, v0")
        a("v_lshlrev_b32 v10, 7, v10")
        a(f"v_cmp_gt_u32 vcc, {EPG*4}, v10")
        a("v_cndmask_b32 v10, v8, v10, vcc")
        a("s_cmp_ge_u32 s3, 2")
        a("s_cbranch_scc1 K1_TOUCHD")
        a("buffer_load_dword v120, v10, s[24:27], s53 offen" + NTE)
        a("s_branch K1_NOTOUCH")
        a.label("K1_TOUCHD")
        a("buffer_load_dword v120, v10, s[28:31], s53 offen" + NTE)
        a.label("K1_NOTOUCH")
    a("buffer_load_dwordx4 v[56:59], v7, s[24:27], s53 offen" + NTE)
    a("buffer_load_dwordx4 v[60:63], v7, s[28:31], s53 offen" + NTE)
    a("s_lshr_b32 s54, s73, 3")
    a("s_mul_i32 s54, s54, 5")
    a("s_lshr_b32 s54, s54, 3")
    if not rot:
        a("s_mov_b32 s54, 0")
    a("s_lshl_b32 s54, s54, 4")
    a("s_add_u32 s54, s54, s3")
    a("s_lshl_b32 m0, s54, 10")
    if sloop:
        a("s_movk_i32 s56, 10")
        a.label("K1_STG")
        a(f"s_cmp_ge_u32 m0, {147*1024}")
        a("s_cbranch_scc1 K1_SKIP")
        a(f"buffer_load_dwordx4 v9, s[20:23], m0 offen{NTP} lds")
        a.label("K1_SKIP")
        a("s_add_u32 m0, m0, 0x4000")
        a(f"s_sub_u32 s54, m0, {160*1024}")
        a("s_cselect_b32 m0, m0, s54")
        a("s_sub_u32 s56, s56, 1")
        a("s_cmp_lg_u32 s56, 0")
        a("s_cbranch_scc1 K1_STG")
    else:
        for k in range(10):
            a(f"s_cmp_ge_u32 m0, {147*1024}")
            a(f"s_cbranch_scc1 K1_SKIP{k}")
            a(f"buffer_load_dwordx4 v9, s[20:23], m0 offen{NTP} lds")
            a.label(f"K1_SKIP{k}")
            if k < 9:
                a("s_add_u32 m0, m0, 0x4000")
                a(f"s_sub_u32 s54, m0, {160*1024}")
                a(f"s_cmp_ge_u32 m0, {160*1024}")
                a("s_cselect_b32 m0, s54, m0")
    rest_setup("E")
    a("s_load_dwordx2 s[48:49], s[10:11], 0")
    a("v_lshlrev_b32 v10, 2, v0")
    a(f"v_add_u32 v10, {K1_CNT}, v10")
    a("v_mov_b32 v11, 0")
    a("v_cmp_gt_u32 vcc, 256, v0")
    a("s_and_saveexec_b64 s[56:57], vcc")
    a("ds_write_b32 v10, v11")
    a("s_mov_b64 exec, s[56:57]")
    a(f"s_mov_b32 s55, {BIN_MAGIC}")
    a(f"s_mov_b32 s58, {K1_CNT}")
    a("s_movk_i32 s59, 0x200")
    a("v_mov_b32 v5, 1")
    for e in range(4):
        a(f"s_mov_b64 s[{60+2*e}:{61+2*e}], 0")
    SRC, DST = 56, 60
    AD = 64
    SH = 72
    CA = 80
    RK = 84
    PP = 88
    EN = 104
    a("s_waitcnt vmcnt(9)")
    for i in range(8):
        r = SRC + i
        a(f"v_mul_u32_u24 v{AD+i}, 6, v{r}")
        if ua != 2:
            a(f"v_and_b32 v{AD+i}, -4, v{AD+i}")
            a(f"v_and_b32 v{SH+i}, 1, v{r}")
            a(f"v_lshlrev_b32 v{SH+i}, 4, v{SH+i}")
    for e in range(4):
        a(f"v_mul_hi_u32 v{CA+e}, v{DST+e}, s55")
        a(f"v_lshl_add_u32 v{CA+e}, v{CA+e}, 2, s58")
        a(f"v_mov_b32 v{EN+4*e}, v{SRC+e}")
        a(f"v_mov_b32 v{EN+4*e+1}, v{DST+e}")
    stamp()
    a("s_waitcnt vmcnt(0) lgkmcnt(0)")
    stamp()
    a("s_barrier")
    stamp()
    touch()
    a("s_mov_b64 exec, s[50:51]")
    a("s_cbranch_execz K1_PHASE_B")
    for e in range(4):
        for i in (e, 4 + e):
            if ua:
                a(f"ds_read_b64 v[{PP+2*i}:{PP+2*i+1}], v{AD+i}")
            else:
                a(f"ds_read2_b32 v[{PP+2*i}:{PP+2*i+1}], v{AD+i} offset0:0 offset1:1")
    for e in range(4):
        s, d = PP + 2 * e, PP + 8 + 2 * e
        t = 12 + 8 * e
        if ua != 2:
            a(f"v_lshrrev_b64 v[{s}:{s+1}], v{SH+e}, v[{s}:{s+1}]")
            a(f"v_lshrrev_b64 v[{d}:{d+1}], v{SH+4+e}, v[{d}:{d+1}]")
        a(f"v_lshlrev_b32 v{t}, 16, v{s}")
        a(f"v_lshlrev_b32 v{t+1}, 16, v{d}")
        a(f"v_and_b32 v{t+2}, s52, v{s}")
        a(f"v_and_b32 v{t+3}, s52, v{d}")
        a(f"v_lshlrev_b32 v{t+4}, 16, v{s+1}")
        a(f"v_lshlrev_b32 v{t+5}, 16, v{d+1}")
        a(f"v_sub_f32 v{t}, v{t}, v{t+1}")
        a(f"v_sub_f32 v{t+2}, v{t+2}, v{t+3}")
        a(f"v_sub_f32 v{EN+4*e+3}, v{t+4}, v{t+5}")
        a(f"v_cvt_pk_bf16_f32 v{EN+4*e+2}, v{t}, v{t+2}")
        a(f"v_mul_f32 v{t+1}, v{t}, v{t}")
        a(f"v_fmac_f32 v{t+1}, v{t+2}, v{t+2}")
        a(f"v_fmac_f32 v{t+1}, v{EN+4*e+3}, v{EN+4*e+3}")
        a(f"v_cmp_nlt_f32 vcc, 0x41c20000, v{t+1}")
        a(f"v_cmp_class_f32_e64 s[{60+2*e}:{61+2*e}], v{t+1}, s59")
        a(f"s_or_b64 s[{60+2*e}:{61+2*e}], s[{60+2*e}:{61+2*e}], vcc")
        a(f"s_mov_b64 exec, s[{60+2*e}:{61+2*e}]")
        a(f"ds_add_rtn_u32 v{RK+e}, v{CA+e}, v5")
        a("s_mov_b64 exec, s[50:51]")
    a.label("K1_PHASE_B")
    a("s_mov_b64 exec, -1")
    stamp()
    a("s_barrier")
    stamp()
    if scan1:
        a("s_cmp_lg_u32 s3, 15")
        a("s_cbranch_scc1 K1_NODESC")
        a("s_setprio 3")
    a(f"v_add_u32 v10, {K1_CNT}, v9")
    a("ds_read_b128 v[12:15], v10")
    a("v_add_u32 v17, v12, v13")
    a("v_add_u32 v18, v17, v14")
    a("v_add_u32 v19, v18, v15")
    a("v_mov_b32 v20, v19")
    wave_scan(a, 20)
    a("v_sub_u32 v24, v20, v19")
    a("v_add_u32 v25, v24, v12")
    a("v_add_u32 v26, v24, v17")
    a("v_add_u32 v27, v24, v18")
    a("ds_write_b128 v10, v[24:27] offset:1024")
    if scan1:
        a("ds_write_b32 v10, v20")
        a("s_waitcnt lgkmcnt(0)")
        a("s_barrier")
    else:
        a("v_readlane_b32 s68, v20, 63")
        a("s_cmp_lg_u32 s3, 15")
        a("s_cbranch_scc1 K1_NODESC")
    for i in range(4):
        a(f"v_lshl_or_b32 v{28+i}, v{12+i}, 16, v{24+i}")
    a("s_lshl_b32 s69, s73, 10")
    a(f"s_add_u32 s69, s69, {WS_DESC}")
    a("buffer_store_dwordx4 v[28:31], v9, s[32:35], s69 offen")
    if scan1:
        a("s_branch K1_SCANNED")
    a.label("K1_NODESC")
    if scan1:
        a("s_barrier")
        a.label("K1_SCANNED")
        a(f"v_mov_b32 v20, {K1_CNT + 63*16}")
        a("ds_read_b32 v20, v20")
    for e in range(4):
        a(f"s_mov_b64 exec, s[{60+2*e}:{61+2*e}]")
        a(f"ds_read_b32 v{12+e}, v{CA+e} offset:1024")
    for e in range(4):
        a(f"s_mov_b64 exec, s[{60+2*e}:{61+2*e}]")
        a(f"v_add_lshl_u32 v{12+e}, v{12+e}, v{RK+e}, 4")
        a(f"ds_write_b128 v{12+e}, {q(EN+4*e)}")
    a("s_mov_b64 exec, -1")
    if scan1:
        a("v_readfirstlane_b32 s68, v20")
    a("s_lshl_b32 s60, s48, 16")
    a("s_and_b32 s61, s48, s52")
    a("s_lshl_b32 s62, s49, 16")
    a("s_and_b32 s63, s49, s52")
    a(f"s_mul_i32 s69, s73, {EPG*32}")
    a(f"s_add_u32 s69, s69, {WS_REC}")
    a("s_movk_i32 s70, 3125")
    a("s_mov_b32 s71, 0x40a00000")
    stamp()
    a("s_barrier")
    stamp()
    a("v_mov_b32 v8, v0")
    a("s_lshl_b32 s72, s3, 6")
    a.label("K1_DENSE")
    a("s_cmp_ge_u32 s72, s68")
    a("s_cbranch_scc1 K1_FIN")
    a("v_cmp_gt_u32 vcc, s68, v8")
    a("s_and_b64 exec, exec, vcc")
    b = Asm()
    b("v_lshlrev_b32 v10, 4, v8")
    b("ds_read_b128 v[12:15], v10")
    b("v_cvt_pk_bf16_f32 v15, v15, v15")
    b("v_and_b32 v15, s52, v15")
    b("v_lshlrev_b32 v16, 16, v14")
    b("v_and_b32 v17, s52, v14")
    b("v_mul_f32 v18, v16, v16")
    b("v_mul_f32 v19, v17, v17")
    b("v_mul_f32 v20, v15, v15")
    b("v_cvt_pk_bf16_f32 v18, v18, v19")
    b("v_cvt_pk_bf16_f32 v20, v20, v20")
    b("v_and_b32 v19, s52, v18")
    b("v_lshlrev_b32 v18, 16, v18")
    b("v_and_b32 v20, s52, v20")
    b("v_add_f32 v18, v18, v19")
    b("v_add_f32 v18, v18, v20")
    b("v_cvt_pk_bf16_f32 v18, v18, v18")
    b("v_and_b32 v18, s52, v18")
    b("v_add_f32 v18, 0x322bcc77, v18")
    b("v_cvt_pk_bf16_f32 v18, v18, v18")
    b("v_and_b32 v18, s52, v18")
    b("v_sqrt_f32 v18, v18")
    b("v_mul_hi_u32 v21, v13, s55")
    b("v_mul_u32_u24 v21, s70, v21")
    b("v_add_u32 v21, 31, v21")
    b("v_lshrrev_b32 v21, 5, v21")
    b("v_lshlrev_b32 v44, 10, v12")
    b("v_sub_u32 v45, v13, v21")
    b("v_cvt_pk_bf16_f32 v18, v18, v18")
    b("v_and_b32 v18, s52, v18")
    b("v_rcp_f32 v19, v18")
    for k in range(4):
        b(f"v_mul_f32 v{22+k}, s{60+k}, v18")
    b("v_mul_f32 v26, 0x40490fdb, v18")
    b("v_cvt_pk_bf16_f32 v22, v22, v23")
    b("v_cvt_pk_bf16_f32 v24, v24, v25")
    b("v_cvt_pk_bf16_f32 v26, v26, v26")
    b("v_and_b32 v23, s52, v22")
    b("v_lshlrev_b32 v22, 16, v22")
    b("v_and_b32 v25, s52, v24")
    b("v_lshlrev_b32 v24, 16, v24")
    b("v_and_b32 v26, s52, v26")
    b("v_mul_f32 v26, 0x3e4ccccd, v26")
    b("v_cvt_pk_bf16_f32 v26, v26, v26")
    b("v_and_b32 v26, s52, v26")
    for k in range(5):
        b(f"v_mul_f32 v{22+k}, 0.15915494, v{22+k}")
    for k in range(5):
        b(f"v_rndne_f32 v{28+k}, v{22+k}")
    for k in range(5):
        b(f"v_sub_f32 v{22+k}, v{22+k}, v{28+k}")
    for k in range(4):
        b(f"v_sin_f32 v{22+k}, v{22+k}")
    b("v_cos_f32 v26, v26")
    b("v_mul_f32 v16, v16, v19")
    b("v_mul_f32 v17, v17, v19")
    b("v_mul_f32 v15, v15, v19")
    b("v_cvt_pk_bf16_f32 v46, v16, v17")
    b("v_cvt_pk_bf16_f32 v47, v15, 0")
    b("v_cvt_pk_bf16_f32 v22, v22, v23")
    b("v_cvt_pk_bf16_f32 v24, v24, v25")
    b("v_cvt_pk_bf16_f32 v26, v26, v26")
    b("v_and_b32 v23, s52, v22")
    b("v_lshlrev_b32 v22, 16, v22")
    b("v_and_b32 v25, s52, v24")
    b("v_lshlrev_b32 v24, 16, v24")
    b("v_and_b32 v26, s52, v26")
    for k in range(4):
        b(f"v_mul_f32 v{22+k}, v{22+k}, v19")
    b("v_add_f32 v26, 1.0, v26")
    b("v_cvt_pk_bf16_f32 v22, v22, v23")
    b("v_cvt_pk_bf16_f32 v24, v24, v25")
    b("v_cvt_pk_bf16_f32 v26, v26, v26")
    b("v_and_b32 v23, s52, v22")
    b("v_lshlrev_b32 v22, 16, v22")
    b("v_and_b32 v25, s52, v24")
    b("v_lshlrev_b32 v24, 16, v24")
    b("v_and_b32 v26, s52, v26")
    b("v_mul_f32 v26, 0.5, v26")
    b("v_mul_f32 v27, 0, v18")
    b("v_cmp_gt_f32 vcc, s71, v18")
    b("v_cndmask_b32 v26, v27, v26, vcc")
    for k in range(4):
        b(f"v_mul_f32 v{22+k}, v{22+k}, v26")
    b("v_cvt_pk_bf16_f32 v48, v22, v23")
    b("v_cvt_pk_bf16_f32 v49, v24, v25")
    b("v_lshlrev_b32 v28, 16, v48")
    b("v_and_b32 v29, s52, v48")
    b("v_lshlrev_b32 v30, 16, v49")
    b("v_and_b32 v31, s52, v49")
    for k in range(4):
        b(f"v_sub_f32 v{22+k}, v{22+k}, v{28+k}")
    b("v_cvt_pk_bf16_f32 v50, v22, v23")
    b("v_cvt_pk_bf16_f32 v51, v24, v25")
    b("v_lshlrev_b32 v11, 5, v8")
    b("buffer_store_dwordx4 v[44:47], v11, s[32:35], s69 offen " + st1)
    b("buffer_store_dwordx4 v[48:51], v11, s[32:35], s69 offen offset:16 " + st1)
    a.extend(schedule(b.ins)[0])
    a("v_add_u32 v8, 0x400, v8")
    a("s_add_u32 s72, s72, 0x400")
    a("s_branch K1_DENSE")
    a.label("K1_WEIGHTS")
    rest_setup("W")
    touch()
    a(f"s_cmp_lg_u32 s73, {G}")
    a("s_cbranch_scc1 K1_END")
    a("s_mov_b32 s64, 0x05040100")
    a("s_mov_b32 s65, 0x07060302")
    a("v_and_b32 v7, 15, v0")
    a("v_bfe_u32 v8, v0, 4, 2")
    a("s_cmp_ge_u32 s3, 12")
    a("s_cbranch_scc1 K1_WRBF")
    a("v_mul_u32_u24 v10, 6144, v8")
    a("v_lshl_add_u32 v10, v7, 4, v10")
    a("v_add_u32 v11, 3072, v10")
    a("s_and_b32 s55, s3, 3")
    a("s_lshr_b32 s57, s3, 2")
    a("s_mul_i32 s59, s55, 24576")
    a("s_lshl_b32 s60, s57, 8")
    a("s_add_u32 s59, s59, s60")
    for j in range(8):
        a(f"buffer_load_dwordx4 {q(12+4*j)}, v{10 + j//4}, s[40:43], s59 offen offset:{768*(j%4)}{NTW}")
    a("s_lshl_b32 s62, s57, 15")
    a("s_lshl_b32 s60, s55, 10")
    a("s_add_u32 s62, s62, s60")
    a("s_waitcnt vmcnt(0)")
    for T in range(8):
        o = 48 + 4 * T
        for jj in range(4):
            a(f"v_perm_b32 v{o+jj}, v{12+4*(2*jj+1)+T//2}, v{12+4*(2*jj)+T//2}, s{64+T%2}")
        a(f"buffer_store_dwordx4 {q(o)}, v9, s[32:35], s62 offen")
        a("s_add_u32 s62, s62, 0x1000")
    a("s_branch K1_END")
    a.label("K1_WRBF")
    a("s_cmp_lg_u32 s3, 12")
    a("s_cbranch_scc1 K1_END")
    for j in range(4):
        a(f"buffer_load_dwordx4 {q(12+4*j)}, v9, s[44:47], 0 offen offset:{768*j}")
    a("v_lshlrev_b32 v10, 10, v8")
    a("v_lshl_add_u32 v10, v7, 3, v10")
    a(f"s_mov_b32 s62, {WS_WR}")
    a("s_mov_b32 exec_hi, 0xffff")
    a("s_waitcnt vmcnt(0)")
    for T in range(8):
        o = 48 + 2 * T
        a(f"v_perm_b32 v{o}, v{16+T//2}, v{12+T//2}, s{64+T%2}")
        a(f"v_perm_b32 v{o+1}, v{24+T//2}, v{20+T//2}, s{64+T%2}")
        a(f"buffer_store_dwordx2 v[{o}:{o+1}], v10, s[32:35], s62 offen offset:{128*T}")
    a("s_branch K1_END")
    a.label("K1_HROLE")
    a(f"s_mov_b32 s38, {128*128*2}")
    a("s_mov_b32 s39, s27")
    a(f"s_mov_b32 s86, {N*1024}")
    a("s_mov_b32 s87, s27")
    a("s_waitcnt lgkmcnt(0)")
    stamp()
    a("v_and_b32 v7, 15, v0")
    a("v_bfe_u32 v8, v0, 4, 2")
    a("s_cmp_ge_u32 s3, 7")
    a("s_cselect_b32 s56, 0, 8")
    a("s_cselect_b32 s57, 7, 0")
    a("s_sub_u32 s56, s2, s56")
    a("s_sub_u32 s57, s3, s57")
    a("s_mul_i32 s56, s56, 3125")
    a("s_add_u32 s56, s56, 31")
    a("s_lshr_b32 s56, s56, 5")
    a("s_lshl_b32 s57, s57, 4")
    a("s_add_u32 s57, s57, s56")
    a("s_lshl_b32 s58, s57, 10")
    a("v_lshlrev_b32 v11, 10, v7")
    a("v_lshl_add_u32 v11, v8, 4, v11")
    SA = 40
    a("s_cmp_ge_u32 s3, 4")
    a("s_cbranch_scc1 K1_NOW1")
    a("s_mov_b32 s64, 0x05040100")
    a("s_mov_b32 s65, 0x07060302")
    a("v_lshlrev_b32 v10, 11, v8")
    a("v_lshl_add_u32 v10, v7, 4, v10")
    a("s_lshl_b32 s59, s3, 13")
    WR_ = 56
    for j in range(8):
        a(f"buffer_load_dwordx4 {q(WR_+4*j)}, v10, s[36:39], s59 offen offset:{256*j}{NTW}")
    if early_s:
        for t in range(4):
            a(f"buffer_load_dwordx4 {q(SA+4*t)}, v11, s[84:87], s58 offen offset:{64*t}{NTS}")
    a("s_lshl_b32 s59, s3, 10")
    a("v_add_u32 v28, s59, v9")
    a(f"s_waitcnt vmcnt({4 if early_s else 0})")
    for T in range(8):
        o = 88 + 4 * T
        for jj in range(4):
            a(f"v_perm_b32 v{o+jj}, v{WR_+4*(2*jj+1)+T//2}, v{WR_+4*(2*jj)+T//2}, s{64+T%2}")
        a(f"ds_write_b128 v28, {q(o)} offset:{4096*T}")
    a("s_branch K1_W1DONE")
    a.label("K1_NOW1")
    if cp0:
        a("s_cmp_lt_u32 s3, 14")
        a("s_cbranch_scc1 K1_NOCP")
        a("s_getpc_b64 s[60:61]")
        a.ins.append(Ins("K1_PCH: ; SOFT"))
        a("s_sub_u32 s60, s60, K1_PCH-edge_bin_kernel")
        a("s_subb_u32 s61, s61, 0")
        a("v_and_b32 v12, 0x7f, v0")
        a("v_lshlrev_b32 v12, 7, v12")
        a("v_min_u32 v13, K2_END-edge_bin_kernel, v12")
        a("global_load_dword v121, v13, s[60:61]")
        a("v_add_u32 v12, 0x4000, v12")
        a("v_min_u32 v13, K2_END-edge_bin_kernel, v12")
        a("global_load_dword v122, v13, s[60:61]")
        a.label("K1_NOCP")
    if th:
        a("s_cmp_ge_u32 s3, 11")
        a("s_cbranch_scc1 K1_W1DONE")
        a("s_sub_u32 s60, s3, 4")
        a("s_lshl_b32 s60, s60, 1")
        a("v_lshrrev_b32 v12, 5, v6")
        a("v_add_u32 v12, s60, v12")
        a("v_cmp_le_u32 vcc, 7, v12")
        a("v_subrev_u32 v13, 7, v12")
        a("v_cndmask_b32 v12, v12, v13, vcc")
        a("s_sub_u32 s61, s2, 8")
        a("s_mul_i32 s61, s61, 3125")
        a("s_add_u32 s61, s61, 31")
        a("s_lshr_b32 s61, s61, 5")
        a("s_mul_i32 s62, s2, 3125")
        a("s_add_u32 s62, s62, 31")
        a("s_lshr_b32 s62, s62, 5")
        a("v_mov_b32 v13, s61")
        a("v_mov_b32 v14, s62")
        a("v_cndmask_b32 v13, v13, v14, vcc")
        a("v_lshl_add_u32 v13, v12, 4, v13")
        a("v_bfe_u32 v14, v6, 1, 4")
        a("v_add_u32 v13, v13, v14")
        a("v_and_b32 v14, 1, v6")
        a("v_lshlrev_b32 v13, 10, v13")
        a("v_lshl_add_u32 v13, v14, 7, v13")
        a("buffer_load_dword v120, v13, s[84:87], 0 offen" + NTS)
    if early_s:
        a("s_cmp_ge_u32 s3, 14")
        a("s_cbranch_scc1 K1_W1DONE")
        for t in range(4):
            a(f"buffer_load_dwordx4 {q(SA+4*t)}, v11, s[84:87], s58 offen offset:{64*t}{NTS}")
    a.label("K1_W1DONE")
    rest_setup("H")
    stamp()
    a("s_barrier")
    stamp()
    if cpf:
        a("s_cmp_lg_u32 s3, 15")
        a("s_cbranch_scc1 K1_NOCPF")
        a("s_getpc_b64 s[60:61]")
        a.label("K1_PC")
        a("s_add_u32 s60, s60, message_kernel-K1_PC")
        a("s_addc_u32 s61, s61, 0")
        a("v_lshlrev_b32 v12, 7, v6")
        for i in range(cpf):
            a("v_cmp_gt_u32 vcc, K2_END-message_kernel, v12")
            a("s_and_b64 exec, exec, vcc")
            a(f"global_load_dword v{13+i}, v12, s[60:61]")
            a("v_add_u32 v12, 0x2000, v12")
        a("s_mov_b64 exec, -1")
        a.label("K1_NOCPF")
    if tlbw:
        a("s_cmp_lg_u32 s3, 14")
        a("s_cbranch_scc1 K1_NOTLB")
        a("s_load_dwordx2 s[60:61], s[0:1], 64")
        a("v_lshlrev_b32 v12, 19, v6")
        a("buffer_load_dword v13, v12, s[84:87], 0 offen")
        a("s_waitcnt lgkmcnt(0)")
        a(f"s_mov_b32 s62, {N*1024}")
        a("s_mov_b32 s63, 0x00020000")
        a("buffer_load_dword v15, v12, s[60:63], 0 offen")
        a.label("K1_NOTLB")
    a("s_cmp_ge_u32 s3, 14")
    a("s_cbranch_scc1 K1_FIN")
    if not early_s:
        for t in range(4):
            a(f"buffer_load_dwordx4 {q(SA+4*t)}, v11, s[84:87], s58 offen offset:{64*t}{NTS}")
    if pf:
        a("s_waitcnt vmcnt(0)")
    touch()
    if pfv:
        a("v_lshrrev_b32 v122, 2, v6")
        a("v_and_b32 v123, 3, v6")
        a("v_lshlrev_b32 v122, 10, v122")
        a("v_lshl_add_u32 v122, v123, 7, v122")
        a(f"v_cmp_gt_u32 vcc, {pfv % 10}, v123")
        a("v_mov_b32 v123, 0x40000000")
        a("v_cndmask_b32 v122, v123, v122, vcc")
        if pfv >= 10:
            a("s_waitcnt vmcnt(0)")
        a("buffer_load_dword v120, v122, s[84:87], s58 offen offset:256")
    b = Asm()
    RING = [56 + 4 * i for i in range(4)]
    D0 = 72
    TM = 12
    OUT = 104
    kf = [0]

    def pfw():
        if kf[0] < 32:
            b(f"ds_read_b128 {q(RING[kf[0] % 4])}, v9 offset:{1024*kf[0]}")
            kf[0] += 1
    for _ in range(4):
        pfw()
    b(f"s_waitcnt vmcnt({1 if (pf or pfv) else 0})", guards=[f"v{SA+i}" for i in range(16)])
    k = 0
    for T in range(8):
        D = D0 + 4 * T
        for t in range(4):
            c = "0" if t == 0 else q(D)
            b(f"v_mfma_f32_16x16x32_bf16 {q(D)}, {q(SA+4*t)}, {q(RING[k % 4])}, {c}")
            k += 1
            pfw()
        for r in range(4):
            t = TM + (4 * T + r) % 16
            b(f"v_mul_f32 v{t}, 0xbfb8aa3b, v{D+r}")
            b(f"v_exp_f32 v{t}, v{t}")
            b(f"v_add_f32 v{t}, 1.0, v{t}")
            b(f"v_rcp_f32 v{t}, v{t}")
            b(f"v_mul_f32 v{D+r}, v{D+r}, v{t}")
        if T % 2 == 1:
            for r in range(4):
                b(f"v_cvt_pk_bf16_f32 v{OUT+4*r+T//2}, v{D-4+r}, v{D+r}")
    b("v_lshlrev_b32 v30, 10, v8")
    b("v_lshl_add_u32 v30, v7, 4, v30")
    b("s_lshl_b32 s58, s57, 8")
    for r in range(4):
        b(f"buffer_store_dwordx4 {q(OUT+4*r)}, v30, s[88:91], s58 offen offset:{256*r} {sth}")
    sch, tt = schedule(b.ins)
    print("K1 H tile: %d instructions, modelled %d cycles" % (len(sch), tt))
    a.extend(sch)
    a.label("K1_FIN")
    if stamps:
        stamp()
        a("s_waitcnt vmcnt(0)")
        stamp()
        a("s_mov_b64 exec, 0xffff")
        a("v_lshlrev_b32 v124, 2, v6")
        a("v_add_u32 v125, s79, v124")
        a("ds_read_b32 v126, v125")
        a("s_lshl_b32 s74, s2, 4")
        a("s_add_u32 s74, s74, s3")
        a("s_lshl_b32 s74, s74, 6")
        a(f"s_add_u32 s74, s74, {WS_STAMP1}")
        a("buffer_store_dword v126, v124, s[32:35], s74 offen")
    a.label("K1_END")
    a("s_endpgm")
    return a
```

```python
import sys
from asmlib import finalize, render
from gen14_k1 import gen_k1, K1_LDS
from gen13_k2 import gen_k2, K2_LDS
from gen import HEADER, kd

def build(path, **kw):
    st = kw.get("stamps", False)
    pf = kw.pop("pf", 2)
    k1kw = {k: kw.pop(k) for k in ("early_s", "rot", "nte", "ntp", "nts", "ntw", "st1", "sth", "pfv", "scan1", "te", "th", "ua", "cpf", "cp0", "tlbw", "pfrows", "sloop", "cpe") if k in kw}
    k1 = render(finalize(gen_k1(stamps=st, pf=pf, **k1kw).ins))
    k2 = render(finalize(gen_k2(**kw).ins))
    out = HEADER
    out += """; Two launches (file produced by the author's own generator scripts; every instruction is hand-specified there).
"""
    out += f"; @launch kernel=edge_bin_kernel grid=(256,1,1) block=(1024,1,1) lds={K1_LDS + (1024 if st else 0)}\n"
    out += f"; @launch kernel=message_kernel grid=(256,1,1) block=(512,1,1) lds={K2_LDS}\n"
    out += '.amdgcn_target "amdgcn-amd-amdhsa--gfx950"\n.text\n'
    for name, body in (("edge_bin_kernel", k1), ("message_kernel", k2)):
        out += f".globl {name}\n.p2align 8\n.type {name},@function\n" + body
    out += '.section .rodata,"a"\n.p2align 6\n' + kd("edge_bin_kernel", 128, 96) + ".p2align 6\n" + kd("message_kernel", 256, 102)
    open(path, "w").write(out)

if __name__ == "__main__":
    kw = {}
    for x in sys.argv[2:]:
        k, v = x.split("=")
        kw[k] = eval(v)
    build(sys.argv[1], **kw)
```
